```python
import torch

def _softmax(x, axis=-1):
    return torch.softmax(x, dim=axis)
def _gelu(x):
    return torch.nn.functional.gelu(x, approximate="tanh")
def _silu(x):
    return torch.nn.functional.silu(x)
def _sigmoid(x):
    return torch.sigmoid(x)
def _layernorm(x, axis=-1, eps=1e-5):
    m = x.mean(dim=axis, keepdim=True)
    v = x.var(dim=axis, keepdim=True, unbiased=False)
    return (x - m) / torch.sqrt(v + eps)
def _scatter_add(tgt, idx, src, axis=0):
    return tgt.clone().index_add_(axis, idx, src)
def _segment_sum(src, seg, n):
    out = torch.zeros((n,) + src.shape[1:], dtype=src.dtype)
    return out.index_add_(0, seg, src)
def _pad(x, pw):
    flat = tuple(v for pair in reversed(pw) for v in pair)
    return torch.nn.functional.pad(x, flat)

kernel_name = 'gated_mix__linear_attn_block__glu_gated_swiglu__prompt'

def setup_inputs():

    _w = (lambda a: (lambda t: t.to(torch.bfloat16) if t.is_floating_point() else t)(torch.as_tensor(a)))
    def _A_setup():
        B, S, D = 1, 2048, 448
        return {
            "x": _w((lambda *s: torch.randn(*s, dtype=torch.bfloat16) * 0.05)(B, S, D)),
            "wqkv": _w((lambda *s: torch.randn(*s, dtype=torch.bfloat16) * 0.8)(D, 3 * D)),
            "wo": _w((lambda *s: torch.randn(*s, dtype=torch.bfloat16) * 0.05)(D, D)),
        }
    _A_in = _A_setup()

    def _B_setup():
        B, S, D, F = 1, 2048, 448, 1792
        return {
            "x": _w((lambda *s: torch.randn(*s, dtype=torch.bfloat16) * 0.05)(B, S, D)),
            "w1": _w((lambda *s: torch.randn(*s, dtype=torch.bfloat16) * 1.6)(D, F) * (2.0 / D) ** 0.5),
            "w3": _w((lambda *s: torch.randn(*s, dtype=torch.bfloat16) * 1.6)(D, F) * (2.0 / D) ** 0.5),
            "w2": _w((lambda *s: torch.randn(*s, dtype=torch.bfloat16) * 1.6)(F, D) * (2.0 / F) ** 0.5),
        }
    _B_in = _B_setup()

    return {
        "A_x": _A_in["x"],
        "A_wqkv": _A_in["wqkv"],
        "A_wo": _A_in["wo"],
        "B_x": _B_in["x"],
        "B_w1": _B_in["w1"],
        "B_w3": _B_in["w3"],
        "B_w2": _B_in["w2"],
        "gate_w": _w((lambda *s: torch.randn(*s, dtype=torch.bfloat16) * 0.05)(448) * 16.0),
    }

def reference(A_x, A_wqkv, A_wo, B_x, B_w1, B_w3, B_w2, gate_w):
    def _A_ref(x, wqkv, wo):
        B, S, D = x.shape
        H = 16; Dh = D // H
        qkv = (lambda x, *d: x.permute(*d))((x @ wqkv).reshape(B, S, 3, H, Dh), 2, 0, 3, 1, 4)
        q, k, v = qkv[0], qkv[1], qkv[2]
        phi = lambda t: torch.where(t > 0, t + 1, torch.exp(t)) + 1e-6
        pq, pk = phi(q), phi(k)
        kv = torch.einsum("bhsd,bhse->bhde", pk, v)
        z = torch.einsum("bhsd->bhd", pk)
        num = torch.einsum("bhqd,bhde->bhqe", pq, kv)
        den = torch.einsum("bhqd,bhd->bhq", pq, z)[..., None] + 1e-6
        o = num / den
        return (lambda x, *d: x.permute(*d))(o, 0, 2, 1, 3).reshape(B, S, D) @ wo

    def _B_ref(x, w1, w3, w2):
        gate = torch.einsum("bsd,df->bsf", x, w1)
        up = torch.einsum("bsd,df->bsf", x, w3)
        h = _silu(gate) * up
        out = torch.einsum("bsf,fd->bsd", h, w2)
        return out

    x = A_x
    g = _sigmoid((x * gate_w).sum(-1, keepdims=True))
    a = _A_ref(x, A_wqkv, A_wo)
    b = _B_ref(x, B_w1, B_w3, B_w2)
    return g * a + (1 - g) * b
```

```python
import re

REG_RE = re.compile(r'\b([vas])\[(\d+):(\d+)\]|\b([vas])(\d+)\b|\b(vcc|exec|m0|scc)\b')
TRANS = ('v_exp_f32', 'v_log_f32', 'v_rcp_f32', 'v_rsq_f32', 'v_sqrt_f32', 'v_sin_f32', 'v_cos_f32')


def regs_of(op):
    out = set()
    for m in REG_RE.finditer(op):
        if m.group(1):
            for i in range(int(m.group(2)), int(m.group(3)) + 1):
                out.add(m.group(1) + str(i))
        elif m.group(4):
            out.add(m.group(4) + m.group(5))
        else:
            out.add(m.group(6))
    return out


def split_ops(s):
    ops, depth, cur = [], 0, ''
    for ch in s:
        if ch == '[':
            depth += 1
        if ch == ']':
            depth -= 1
        if ch == ',' and depth == 0:
            ops.append(cur.strip())
            cur = ''
        else:
            cur += ch
    if cur.strip():
        ops.append(cur.strip())
    return ops


class Ins:
    def __init__(self, text):
        self.text = text
        t = text.split(';')[0].strip()
        self.is_label = t.endswith(':')
        self.empty = (t == '') or self.is_label or t.startswith('.')
        self.dst, self.src = set(), set()
        self.kind = 'none'
        self.states = 0
        self.mn = ''
        if self.empty:
            return
        parts = t.split(None, 1)
        mn = parts[0]
        self.mn = mn
        ops = split_ops(parts[1]) if len(parts) > 1 else []
        self.ops = ops
        self.states = 1
        if mn == 's_nop':
            self.states = int(ops[0], 0) + 1
            self.kind = 'nop'
            return
        R = [regs_of(o) for o in ops]
        allr = set().union(*R) if R else set()
        if mn.startswith('v_mfma'):
            self.kind = 'mfma'
            self.dst = R[0]
            self.srcA, self.srcB = R[1], R[2]
            self.srcC = R[3] if len(R) > 3 else set()
            self.src = R[1] | R[2] | self.srcC
            self.passes = 8 if '32x32x16' in mn else 4
        elif mn.startswith('v_'):
            self.kind = 'trans' if mn in TRANS else 'valu'
            if mn.startswith('v_cmp'):
                self.dst = R[0]
                self.src = set().union(*R[1:])
            elif mn in ('v_add_co_u32', 'v_sub_co_u32', 'v_addc_co_u32', 'v_subb_co_u32'):
                self.dst = R[0] | R[1]
                self.src = set().union(*R[2:])
            elif mn.startswith('v_permlane'):
                self.dst = R[0] | R[1]
                self.src = R[0] | R[1]
            else:
                self.dst = R[0]
                self.src = set().union(*R[1:]) if len(R) > 1 else set()
                if mn.startswith('v_fmac') or mn.startswith('v_writelane'):
                    self.src |= R[0]
        elif mn.startswith('ds_'):
            self.kind = 'ds'
            if mn.startswith('ds_read') or mn.startswith('ds_bpermute') or mn.startswith('ds_swizzle'):
                self.dst = R[0]
                self.src = set().union(*R[1:])
            else:
                self.src = allr
        elif mn.startswith('buffer_') or mn.startswith('global_'):
            self.kind = 'vmem'
            self.lds = bool(re.search(r'\blds\b', t)) or 'load_lds' in mn
            if 'load' in mn and not self.lds:
                self.dst = R[0]
                self.src = set().union(*R[1:])
            elif 'atomic' in mn and 'sc0' in t:
                self.dst = R[0]
                self.src = allr
            else:
                self.src = allr
                if self.lds:
                    self.src = self.src | {'m0'}
            self.store_data = set()
            if 'store' in mn and ('x4' in mn or 'x3' in mn):
                self.store_data = R[0] if mn.startswith('buffer_') else R[1]
        elif mn.startswith('s_load') or mn.startswith('s_memtime') or mn.startswith('s_memrealtime'):
            self.kind = 'smem'
            self.dst = R[0]
            self.src = set().union(*R[1:]) if len(R) > 1 else set()
        elif mn.startswith('s_'):
            self.kind = 'salu'
            if mn.startswith(('s_cmp', 's_waitcnt', 's_barrier', 's_branch', 's_cbranch', 's_endpgm', 's_setprio',
                              's_bitcmp', 's_sleep')):
                self.src = allr
            else:
                self.dst = R[0] if R else set()
                self.src = set().union(*R[1:]) if len(R) > 1 else set()
                if 'saveexec' in mn:
                    self.dst = self.dst | {'exec'}


def is_sreg(r):
    return r[0] == 's' or r in ('vcc', 'exec', 'm0')


def is_vreg(r):
    return r[0] in 'va' and r not in ('vcc',)


def need(prev, cur):
    n = 0
    pk, ck = prev.kind, cur.kind
    pv = pk in ('valu', 'trans')
    cv = ck in ('valu', 'trans')
    if pv:
        sd = {r for r in prev.dst if is_sreg(r)}
        vd = {r for r in prev.dst if is_vreg(r)}
        if sd & cur.src:
            if cv:
                n = max(n, 4 if cur.mn.startswith(('v_readlane', 'v_writelane')) else 2)
            if ck == 'vmem':
                n = max(n, 5)
            if ck == 'salu':
                n = max(n, 1)
        if 'exec' in prev.dst and ck == 'mfma':
            n = max(n, 4)
        if vd & cur.src:
            if cur.mn.startswith(('v_readfirstlane', 'v_readlane')):
                n = max(n, 1)
            if cur.mn.startswith('v_permlane'):
                n = max(n, 2)
            if ck == 'mfma':
                n = max(n, 2)
            if pk == 'trans' and ck != 'trans':
                n = max(n, 1)
        if pk == 'trans' and (vd & cur.dst) and cv:
            n = max(n, 1)
    if pk == 'salu' and 'm0' in prev.dst and ck == 'vmem' and getattr(cur, 'lds', False):
        n = max(n, 1)
    if pk == 'vmem' and getattr(prev, 'store_data', None):
        if prev.store_data & cur.dst:
            n = max(n, 2 if cv else 1)
    if pk == 'mfma':
        big = prev.passes == 8
        d = prev.dst
        if ck == 'mfma':
            if d & (cur.srcA | cur.srcB):
                n = max(n, 12 if big else 8)
            if d & cur.srcC:
                if not (d == cur.srcC and prev.passes == cur.passes):
                    n = max(n, 10 if big else 6)
        else:
            if d & (cur.src | cur.dst):
                n = max(n, 12 if big else 8)
            if cv and (prev.srcC & cur.dst):
                n = max(n, 7 if big else 3)
    return n


def hazard_pass(lines):
    out = []
    hist = []
    inserted = 0
    for ln in lines:
        ins = Ins(ln)
        if ins.empty:
            out.append(ln)
            continue
        dist = 0
        req = 0
        for p in reversed(hist):
            if dist >= 20:
                break
            r = need(p, ins) - dist
            if r > req:
                req = r
            dist += p.states
        while req > 0:
            k = min(req, 16)
            nop = Ins('s_nop %d' % (k - 1))
            out.append('  s_nop %d' % (k - 1))
            hist.append(nop)
            req -= k
            inserted += 1
        out.append(ln)
        hist.append(ins)
        if len(hist) > 64:
            hist = hist[-64:]
    return out


class Asm:
    def __init__(self):
        self.lines = []

    def e(self, s):
        self.lines.append('  ' + s)

    def lab(self, s):
        self.lines.append(s + ':')

    def c(self, s):
        self.lines.append('  ; ' + s)

    def final(self):
        return '\n'.join(hazard_pass(self.lines)) + '\n'
```

```python
import sys
sys.path.insert(0, 'gen')
from asmlib import Asm

NAME = 'gated_mix__linear_attn_block__glu_gated_swiglu__prompt'
PQ_OFF = 0
H_OFF = PQ_OFF + 64 * 16 * 2 * 1024
KVP_OFF = H_OFF + 64 * 112 * 1024
KVT_OFF = KVP_OFF + 16 * 8 * 4096
W2P_OFF = KVT_OFF + 16 * 2 * 1024
WOP_OFF = W2P_OFF + 14 * 112 * 1024
G_OFF = WOP_OFF + 14 * 16 * 2 * 1024
WS_BYTES = G_OFF + 2048 * 4

SZ_X = 2048 * 448 * 2
SZ_WQKV = 448 * 1344 * 2
SZ_WO = 448 * 448 * 2
SZ_W1 = 448 * 1792 * 2
SZ_W2 = 1792 * 448 * 2
SZ_GW = 448 * 2
SZ_OUT = 2048 * 448 * 2

STAGE = 53376
XREG = 32768
WOFF_A = [0, 4096, 8192, 12288, 16384 + 32]
WOFF_B = [0, 10368]
GWX = 3 * STAGE
LDS_K1 = 163840
LOG2E = '0x3fb8aa3b'
NLOG2E = '0xbfb8aa3b'
EPS = '0x358637bd'


def v(i):
    return 'v%d' % i


def vr(i, n):
    return 'v[%d:%d]' % (i, i + n - 1)


def sr(i, n):
    return 's[%d:%d]' % (i, i + n - 1)


def srd(a, d, lo, size):
    a.e('s_mov_b32 s%d, s%d' % (d, lo))
    a.e('s_and_b32 s%d, s%d, 0xffff' % (d + 1, lo + 1))
    a.e('s_mov_b32 s%d, 0x%x' % (d + 2, size))
    a.e('s_mov_b32 s%d, 0x00020000' % (d + 3))


def round_bf16(a, regs, tmps):
    n = len(regs) // 2
    for i in range(n):
        a.e('v_cvt_pk_bf16_f32 %s, %s, %s' % (tmps[i], regs[2 * i], regs[2 * i + 1]))
    for i in range(n):
        a.e('v_lshlrev_b32 %s, 16, %s' % (regs[2 * i], tmps[i]))
        a.e('v_and_b32 %s, 0xffff0000, %s' % (regs[2 * i + 1], tmps[i]))


def phi16(a, regs, tmps, msk, outp):
    for g in range(2):
        rg = regs[8 * g:8 * g + 8]
        round_bf16(a, rg, tmps[:4])
        for i in range(8):
            a.e('v_mul_f32 %s, %s, %s' % (tmps[i], LOG2E, rg[i]))
        for i in range(8):
            a.e('v_exp_f32 %s, %s' % (tmps[i], tmps[i]))
        for i in range(8):
            a.e('v_cmp_gt_f32 %s, %s, 0' % (sr(msk + 2 * i, 2), rg[i]))
        for i in range(8):
            a.e('v_add_f32 %s, 1.0, %s' % (rg[i], rg[i]))
        for i in range(8):
            a.e('v_cndmask_b32 %s, %s, %s, %s' % (rg[i], tmps[i], rg[i], sr(msk + 2 * i, 2)))
        round_bf16(a, rg, tmps[:4])
        for i in range(8):
            a.e('v_add_f32 %s, %s, %s' % (rg[i], EPS, rg[i]))
        for i in range(4):
            a.e('v_cvt_pk_bf16_f32 %s, %s, %s' % (outp[4 * g + i], rg[2 * i], rg[2 * i + 1]))


def silu_mul(a, regs, tmps, outp):
    g = regs[:8]
    u = regs[8:]
    round_bf16(a, regs, tmps[:8])
    for i in range(8):
        a.e('v_mul_f32 %s, %s, %s' % (tmps[i], NLOG2E, g[i]))
    for i in range(8):
        a.e('v_exp_f32 %s, %s' % (tmps[i], tmps[i]))
    for i in range(8):
        a.e('v_add_f32 %s, 1.0, %s' % (tmps[i], tmps[i]))
    for i in range(8):
        a.e('v_rcp_f32 %s, %s' % (tmps[i], tmps[i]))
    for i in range(8):
        a.e('v_mul_f32 %s, %s, %s' % (g[i], g[i], tmps[i]))
    round_bf16(a, g, tmps[:4])
    for i in range(8):
        a.e('v_mul_f32 %s, %s, %s' % (g[i], g[i], u[i]))
    for i in range(4):
        a.e('v_cvt_pk_bf16_f32 %s, %s, %s' % (outp[i], g[2 * i], g[2 * i + 1]))


def gen_k1():
    a = Asm()
    SX, SWQKV, SW1, SW3, SWS, SW2, SWO, SGW = 24, 28, 32, 36, 40, 44, 48, 52
    SL = [56, 60, 64]
    SOFF = [68, 69, 70]
    STEP = [71, 72, 73]
    DEST = [74, 75, 76]
    sW, sRB, sC, sCB, sXD, sT, sT2, sT3 = 77, 78, 79, 80, 81, 82, 83, 84
    MSK = 86
    sGWM = 22
    ACC = 16
    WF = [96, 116]
    XF = [136, 140]
    vL, vTID = 0, 1
    vXO = [2, 3]
    vWO = [4, 5, 6]
    vXA = [144, 145, 146, 147]
    vKV, vGU, vQ0, vQ1, vQI, vC128 = 148, 149, 150, 151, 152, 153
    vT = [8, 9, 10, 11, 12, 13, 14, 15]
    vST = 7

    a.lab('k1_kernel')
    a.e('s_cmp_ge_u32 s2, 256')
    a.e('s_cbranch_scc1 K1_END')
    a.e('s_load_dwordx4 s[4:7], s[0:1], 0')
    a.e('s_load_dwordx2 s[8:9], s[0:1], 16')
    a.e('s_load_dwordx4 s[12:15], s[0:1], 32')
    a.e('s_load_dwordx4 s[16:19], s[0:1], 48')
    a.e('s_load_dwordx2 s[20:21], s[0:1], 80')
    a.e('v_mov_b32 v%d, v0' % vTID)
    a.e('v_lshrrev_b32 v8, 6, v0')
    a.e('v_and_b32 v0, 63, v0')
    a.e('v_readfirstlane_b32 s%d, v8' % sW)
    a.e('s_and_b32 s3, s2, 7')
    a.e('s_lshr_b32 s%d, s2, 3' % sT)
    a.e('s_and_b32 s%d, s%d, 3' % (sT2, sT))
    a.e('s_lshl_b32 s3, s3, 2')
    a.e('s_add_u32 s%d, s3, s%d' % (sCB, sT2))
    a.e('s_lshr_b32 s%d, s%d, 2' % (sRB, sT))
    a.e('s_lshr_b32 s%d, s%d, 1' % (sC, sCB))
    a.e('s_waitcnt lgkmcnt(0)')
    srd(a, SX, 4, SZ_X)
    srd(a, SWQKV, 6, SZ_WQKV)
    srd(a, SW1, 12, SZ_W1)
    srd(a, SW3, 14, SZ_W1)
    srd(a, SWS, 20, WS_BYTES)
    srd(a, SW2, 16, SZ_W2)
    srd(a, SWO, 8, SZ_WO)
    srd(a, SGW, 18, SZ_GW)
    a.e('s_lshl_b32 s%d, s%d, 8' % (sT, sRB))
    a.e('s_lshl_b32 s%d, s%d, 5' % (sT2, sW))
    a.e('s_add_u32 s%d, s%d, s%d' % (sT, sT, sT2))
    a.e('v_lshrrev_b32 v8, 3, v0')
    a.e('v_add_u32 v8, s%d, v8' % sT)
    a.e('v_mul_u32_u24 v8, 896, v8')
    a.e('v_and_b32 v9, 7, v0')
    a.e('v_lshrrev_b32 v10, 4, v0')
    a.e('v_xor_b32 v11, v9, v10')
    a.e('v_lshl_add_u32 v%d, v11, 4, v8' % vXO[0])
    a.e('v_xor_b32 v11, 4, v11')
    a.e('v_lshl_add_u32 v%d, v11, 4, v8' % vXO[1])
    a.e('s_lshl_b32 s%d, s%d, 12' % (sXD, sW))
    a.e('v_and_b32 v8, 31, v0')
    a.e('v_lshrrev_b32 v9, 5, v0')
    a.e('v_bfe_u32 v10, v8, 1, 3')
    a.e('v_lshlrev_b32 v11, 7, v8')
    a.e('v_add_u32 v11, s%d, v11' % sXD)
    for ks in range(4):
        a.e('v_add_u32 v12, %d, v9' % (2 * ks))
        a.e('v_xor_b32 v12, v12, v10')
        a.e('v_lshl_add_u32 v%d, v12, 4, v11' % vXA[ks])
    a.e('v_lshlrev_b32 v%d, 4, v0' % vST)
    a.e('v_bfe_u32 v10, v0, 4, 1')
    a.e('v_bfe_u32 v11, v0, 2, 2')
    a.e('v_and_b32 v12, 3, v0')
    a.e('v_lshl_add_u32 v13, v9, 3, v11')
    a.e('v_and_b32 v14, 1, v12')
    a.e('v_lshlrev_b32 v14, 1, v14')
    a.e('v_lshrrev_b32 v15, 1, v12')
    a.e('v_add_u32 v14, v14, v15')
    a.e('v_lshlrev_b32 v14, 3, v14')
    a.e('s_and_b32 s%d, s%d, 1' % (sT, sCB))
    a.e('s_cmp_eq_u32 s%d, 1' % sT)
    a.e('s_cbranch_scc1 K1_TYPEB')

    def dma_chunk(i):
        sb = (i % 3) * STAGE
        for q in range(4):
            a.e('s_add_u32 m0, s%d, %d' % (sXD, sb + q * 1024))
            a.e('s_mov_b32 s%d, %d' % (sT, i * 128 + q * 7168))
            a.e('buffer_load_dwordx4 v%d, %s, s%d offen lds' % (vXO[q & 1], sr(SX, 4), sT))
        for j in range(3):
            a.e('s_add_u32 m0, s%d, %d' % (DEST[j], sb))
            a.e('buffer_load_dwordx4 v%d, %s, s%d offen lds' % (vWO[j], sr(SL[j], 4), SOFF[j]))
            a.e('s_add_u32 s%d, s%d, s%d' % (SOFF[j], SOFF[j], STEP[j]))

    def main_loop(typ, extra_at_b5=None, pre_wait=None):
        pitch = 64 if typ == 'A' else 160

        def reads(n):
            i, ks = divmod(n, 4)
            st = n & 1
            L = []
            L.append('ds_read_b128 %s, v%d' % (vr(XF[st], 4), vXA[ks]))
            for t in range(5):
                for rd in range(2):
                    dst = vr(WF[st] + 4 * t + 2 * rd, 2)
                    if typ == 'A':
                        if t == 0:
                            L.append('ds_read_b64_tr_b16 %s, v%d' % (dst, vQ0 if rd == 0 else vQ1))
                        elif t in (1, 2):
                            L.append('ds_read_b64_tr_b16 %s, v%d offset:%d' % (dst, vKV, 4096 * t + ks * 1024 + rd * 256))
                        else:
                            L.append('ds_read_b64_tr_b16 %s, v%d offset:%d' % (dst, vGU, 32 * (t - 3) + ks * 1024 + rd * 256))
                    else:
                        L.append('ds_read_b64_tr_b16 %s, v%d offset:%d' % (dst, vGU, 32 * t + ks * 2560 + rd * 640))
            return L

        def addr_adv(n):
            i, ks = divmod(n, 4)
            if ks == 0:
                delta = STAGE if (i % 3) != 0 else -2 * STAGE
                for r in vXA + [vGU] + ([vKV] if typ == 'A' else []):
                    a.e('v_add_u32 v%d, %d, v%d' % (r, delta, r) if delta > 0 else
                        'v_subrev_u32 v%d, %d, v%d' % (r, -delta, r))
                if typ == 'A':
                    d2 = (delta - 3 * 1024) & 0xffffffff
                    a.e('v_mov_b32 v8, 0x%x' % d2)
                    a.e('v_cndmask_b32 v8, v8, v%d, %s' % (vC128, sr(sGWM, 2)))
                    a.e('v_add_u32 v%d, v8, v%d' % (vQ0, vQ0))
                    a.e('v_add_u32 v%d, v8, v%d' % (vQ1, vQ1))
            elif typ == 'A':
                a.e('v_add_u32 v%d, v%d, v%d' % (vQ0, vQI, vQ0))
                a.e('v_add_u32 v%d, v%d, v%d' % (vQ1, vQI, vQ1))

        def mfma(n, t):
            st = n & 1
            acc = vr(ACC + 16 * t, 16)
            wf = vr(WF[st] + 4 * t, 4)
            xf = vr(XF[st], 4)
            c = acc if n > 0 else '0'
            if typ == 'A' and t in (1, 2):
                a.e('v_mfma_f32_32x32x16_bf16 %s, %s, %s, %s' % (acc, xf, wf, c))
            else:
                a.e('v_mfma_f32_32x32x16_bf16 %s, %s, %s, %s' % (acc, wf, xf, c))

        outstanding = []
        for i in range(3):
            dma_chunk(i)
            outstanding.append(7)
        if pre_wait:
            pre_wait(sum(outstanding))
        a.e('s_waitcnt vmcnt(%d) lgkmcnt(0)' % sum(outstanding[1:]))
        outstanding.pop(0)
        a.e('s_barrier')
        for s in reads(0):
            a.e(s)
        for n in range(28):
            i, ks = divmod(n, 4)
            a.c('step %d' % n)
            if ks == 3 and i < 6:
                a.e('s_waitcnt vmcnt(%d) lgkmcnt(0)' % sum(outstanding[1:]))
                outstanding.pop(0)
                a.e('s_barrier')
                if i + 3 <= 6:
                    dma_chunk(i + 3)
                    outstanding.append(7)
                elif i == 4 and extra_at_b5:
                    outstanding.append(extra_at_b5())
            else:
                a.e('s_waitcnt lgkmcnt(0)')
            R = []
            if n + 1 < 28:
                addr_adv(n + 1)
                R = reads(n + 1)
            sched = [R[0:4], R[4:8], R[8:11], [], []]
            for t in range(5):
                mfma(n, t)
                for s in sched[t]:
                    a.e(s)
        return outstanding

    def f_epilogue(tile_acc, ftile_sgpr_expr):
        pass

    a.e('v_lshl_add_u32 v15, v10, 2, v12')
    a.e('v_and_b32 v8, 6, v15')
    a.e('v_cmp_eq_u32 vcc, 6, v8')
    a.e('v_xor_b32 v8, 1, v15')
    a.e('v_cndmask_b32 v8, v15, v8, vcc')
    a.e('v_lshlrev_b32 v8, 3, v8')
    a.e('v_lshl_add_u32 v8, v13, 6, v8')
    a.e('v_add_u32 v%d, %d, v8' % (vKV, XREG))
    a.e('v_cmp_eq_u32 %s, 7, v15' % sr(sGWM, 2))
    a.e('v_lshlrev_b32 v9, 3, v13')
    a.e('v_add_u32 v9, %d, v9' % GWX)
    a.e('v_cndmask_b32 v%d, v%d, v9, %s' % (vQ0, vKV, sr(sGWM, 2)))
    a.e('v_add_u32 v8, 256, v%d' % vKV)
    a.e('v_add_u32 v9, 32, v9')
    a.e('v_cndmask_b32 v%d, v8, v9, %s' % (vQ1, sr(sGWM, 2)))
    a.e('v_mov_b32 v%d, 128' % vC128)
    a.e('v_mov_b32 v8, 1024')
    a.e('v_cndmask_b32 v%d, v8, v%d, %s' % (vQI, vC128, sr(sGWM, 2)))
    a.e('v_mul_u32_u24 v8, %d, v10' % (WOFF_A[4] - WOFF_A[3]))
    a.e('v_lshl_add_u32 v8, v13, 6, v8')
    a.e('v_add_u32 v8, v14, v8')
    a.e('v_add_u32 v%d, %d, v8' % (vGU, XREG + WOFF_A[3]))
    a.e('s_and_b32 s%d, s%d, 3' % (sT2, sW))
    a.e('s_lshr_b32 s%d, s%d, 2' % (sT3, sW))
    a.e('v_lshrrev_b32 v8, 2, v0')
    a.e('v_and_b32 v9, 3, v0')
    a.e('v_lshlrev_b32 v10, 4, v9')
    a.e('v_cmp_eq_u32 vcc, 3, v9')
    a.e('v_mov_b32 v11, 40')
    a.e('v_cndmask_b32 v11, v10, v11, vcc')
    a.e('v_mul_u32_u24 v12, 2688, v8')
    a.e('v_add_u32 v12, v12, v11')
    a.e('v_mul_u32_u24 v13, 3584, v8')
    a.e('v_add_u32 v13, v13, v10')
    a.e('s_mul_i32 s%d, s%d, 56' % (sT, sC))
    a.e('s_mul_i32 s3, s%d, 896' % sT3)
    a.e('s_add_u32 s3, s3, s%d' % sT)
    a.e('v_add_u32 v%d, s3, v12' % vWO[0])
    for k in range(4):
        a.e('s_mov_b32 s%d, s%d' % (SL[0] + k, SWQKV + k))
    a.e('s_mul_i32 s%d, s%d, %d' % (SOFF[0], sT2, 16 * 2688))
    a.e('s_mov_b32 s%d, %d' % (STEP[0], 64 * 2688))
    a.e('s_lshl_b32 s3, s%d, 12' % sT3)
    a.e('s_lshl_b32 s%d, s%d, 10' % (DEST[0], sT2))
    a.e('s_add_u32 s%d, s%d, s3' % (DEST[0], DEST[0]))
    a.e('s_add_u32 s%d, s%d, %d' % (DEST[0], DEST[0], XREG))
    a.e('s_lshl_b32 s3, s%d, 6' % sC)
    a.e('v_add_u32 v%d, s3, v13' % vWO[2])
    for k in range(4):
        a.e('s_mov_b32 s%d, s%d' % (SL[2] + k, SW3 + k))
    a.e('s_mul_i32 s%d, s%d, %d' % (SOFF[2], sT2, 16 * 3584))
    a.e('s_mov_b32 s%d, %d' % (STEP[2], 64 * 3584))
    a.e('s_lshl_b32 s%d, s%d, 10' % (DEST[2], sT2))
    a.e('s_add_u32 s%d, s%d, %d' % (DEST[2], DEST[2], XREG + WOFF_A[4]))
    a.e('s_add_u32 s%d, s%d, %d' % (sT, sT, 2 * 896))
    a.e('v_add_u32 v14, s%d, v12' % sT)
    a.e('s_cmp_eq_u32 s%d, 0' % sT3)
    a.e('s_cselect_b64 %s, %s, %s' % (sr(SL[1], 2), sr(SWQKV, 2), sr(SW1, 2)))
    a.e('s_cselect_b64 %s, %s, %s' % (sr(SL[1] + 2, 2), sr(SWQKV + 2, 2), sr(SW1 + 2, 2)))
    a.e('s_cselect_b32 s%d, s%d, s%d' % (SOFF[1], SOFF[0], SOFF[2]))
    a.e('s_cselect_b32 s%d, s%d, s%d' % (STEP[1], STEP[0], STEP[2]))
    a.e('s_mov_b32 s3, %d' % WOFF_A[3])
    a.e('s_cselect_b32 s3, %d, s3' % WOFF_A[2])
    a.e('s_cselect_b64 vcc, -1, 0')
    a.e('s_lshl_b32 s%d, s%d, 10' % (DEST[1], sT2))
    a.e('s_add_u32 s%d, s%d, s3' % (DEST[1], DEST[1]))
    a.e('s_add_u32 s%d, s%d, %d' % (DEST[1], DEST[1], XREG))
    a.e('v_cndmask_b32 v%d, v%d, v14, vcc' % (vWO[1], vWO[2]))
    a.e('v_lshlrev_b32 v8, 1, v%d' % vTID)
    a.e('buffer_load_ushort v10, v8, %s, 0 offen' % sr(SGW, 4))

    def pre_wait_A(nout):
        a.e('s_waitcnt vmcnt(%d)' % nout)
        a.e('v_lshl_or_b32 v10, v10, 16, v10')
        a.e('v_mov_b32 v11, v10')
        a.e('v_lshlrev_b32 v8, 3, v%d' % vTID)
        a.e('v_add_u32 v8, %d, v8' % GWX)
        a.e('v_cmp_gt_u32 vcc, 448, v%d' % vTID)
        a.e('s_and_saveexec_b64 %s, vcc' % sr(MSK, 2))
        a.e('ds_write_b64 v8, v[10:11]')
        a.e('s_mov_b64 exec, %s' % sr(MSK, 2))

    main_loop('A', None, pre_wait_A)
    TMP = [v(WF[0] + i) for i in range(16)]
    PK = WF[1]
    PV = WF[1] + 8
    acc = lambda t: [v(ACC + 16 * t + r) for r in range(16)]
    a.e('s_lshl_b32 s%d, s%d, 3' % (sT3, sRB))
    a.e('s_add_u32 s%d, s%d, s%d' % (sT3, sT3, sW))
    phi16(a, acc(1), TMP, MSK, [v(PK + i) for i in range(8)])
    va = acc(2)
    for i in range(8):
        a.e('v_cvt_pk_bf16_f32 v%d, %s, %s' % (PV + i, va[2 * i], va[2 * i + 1]))
    a.e('v_and_b32 v8, 31, v0')
    a.e('v_cmp_le_u32 vcc, 28, v8')
    a.e('v_mov_b32 v9, 0x3f803f80')
    for i in range(8):
        a.e('v_cndmask_b32 v%d, v%d, v9, vcc' % (PV + i, PV + i))
    KVA = ACC + 16
    a.e('v_mfma_f32_32x32x16_bf16 %s, %s, %s, 0' % (vr(KVA, 16), vr(PK, 4), vr(PV, 4)))
    a.e('v_mfma_f32_32x32x16_bf16 %s, %s, %s, %s' % (vr(KVA, 16), vr(PK + 4, 4), vr(PV + 4, 4), vr(KVA, 16)))
    RED = STAGE
    a.e('s_lshl_b32 s3, s%d, 12' % sW)
    a.e('v_add_u32 v8, s3, v%d' % vST)
    a.e('v_add_u32 v8, %d, v8' % RED)
    for q in range(4):
        a.e('ds_write_b128 v8, %s offset:%d' % (vr(KVA + 4 * q, 4), 1024 * q))
    a.e('s_waitcnt lgkmcnt(0)')
    a.e('s_barrier')
    a.e('s_lshl_b32 s3, s%d, 9' % sW)
    a.e('v_lshlrev_b32 v9, 3, v0')
    a.e('v_add_u32 v9, s3, v9')
    a.e('v_add_u32 v8, %d, v9' % RED)
    for p in range(8):
        a.e('ds_read_b64 %s, v8 offset:%d' % (vr(WF[0] + 2 * p, 2), 4096 * p))
    phi_q_tmp = [v(XF[0] + i) for i in range(8)]
    a.e('v_mov_b32 v10, v%d' % (ACC + 12))
    phi16(a, acc(0), phi_q_tmp, MSK, [v(PK + i) for i in range(8)])
    a.e('s_lshl_b32 s3, s%d, 4' % sT3)
    a.e('s_add_u32 s3, s3, s%d' % sC)
    a.e('s_lshl_b32 s3, s3, 11')
    a.e('buffer_store_dwordx4 %s, v%d, %s, s3 offen' % (vr(PK, 4), vST, sr(SWS, 4)))
    a.e('buffer_store_dwordx4 %s, v%d, %s, s3 offen offset:1024' % (vr(PK + 4, 4), vST, sr(SWS, 4)))
    a.e('s_waitcnt lgkmcnt(0)')
    for p in range(1, 8):
        a.e('v_add_f32 v%d, v%d, v%d' % (WF[0], WF[0], WF[0] + 2 * p))
        a.e('v_add_f32 v%d, v%d, v%d' % (WF[0] + 1, WF[0] + 1, WF[0] + 2 * p + 1))
    a.e('s_lshl_b32 s3, s%d, 3' % sC)
    a.e('s_add_u32 s3, s3, s%d' % sRB)
    a.e('s_lshl_b32 s3, s3, 12')
    a.e('s_add_u32 s3, s3, %d' % KVP_OFF)
    a.e('buffer_store_dwordx2 %s, v9, %s, s3 offen' % (vr(WF[0], 2), sr(SWS, 4)))
    a.e('s_cmp_lg_u32 s%d, 0' % sC)
    a.e('s_cbranch_scc1 K1A_NOG')
    a.e('v_cvt_pk_bf16_f32 v10, v10, v10')
    a.e('v_lshlrev_b32 v10, 16, v10')
    a.e('v_mul_f32 v10, %s, v10' % NLOG2E)
    a.e('v_exp_f32 v10, v10')
    a.e('v_add_f32 v10, 1.0, v10')
    a.e('v_rcp_f32 v10, v10')
    a.e('v_cvt_pk_bf16_f32 v10, v10, v10')
    a.e('v_lshlrev_b32 v10, 16, v10')
    a.e('v_and_b32 v11, 31, v0')
    a.e('v_lshlrev_b32 v11, 2, v11')
    a.e('s_lshl_b32 s3, s%d, 7' % sT3)
    a.e('s_add_u32 s3, s3, %d' % G_OFF)
    a.e('v_cmp_le_u32 vcc, 32, v0')
    a.e('s_and_saveexec_b64 %s, vcc' % sr(MSK, 2))
    a.e('buffer_store_dword v10, v11, %s, s3 offen' % sr(SWS, 4))
    a.e('s_mov_b64 exec, %s' % sr(MSK, 2))
    a.lab('K1A_NOG')
    a.e('s_mul_i32 s3, s%d, 112' % sT3)
    a.e('s_lshl_b32 s%d, s%d, 1' % (sT, sC))
    a.e('s_add_u32 s3, s3, s%d' % sT)
    a.e('s_lshl_b32 s3, s3, 10')
    a.e('s_add_u32 s3, s3, %d' % H_OFF)
    for m in range(2):
        o = WF[1] + 4 * m
        silu_mul(a, acc(3 + m), TMP, [v(o + i) for i in range(4)])
        a.e('buffer_store_dwordx4 %s, v%d, %s, s3 offen offset:%d' % (vr(o, 4), vST, sr(SWS, 4), 1024 * m))
    a.e('s_endpgm')

    a.lab('K1_TYPEB')
    a.e('v_mul_u32_u24 v8, %d, v10' % WOFF_B[1])
    a.e('v_mul_u32_u24 v9, 160, v13')
    a.e('v_add3_u32 v8, v8, v9, v14')
    a.e('v_add_u32 v%d, %d, v8' % (vGU, XREG))
    a.e('s_mul_i32 s%d, s%d, 160' % (sT, sC))
    a.e('s_add_u32 s%d, s%d, 1024' % (sT, sT))

    def slotB(j, q_sgpr, isU_scc=None):
        a.e('s_lshl_b32 s3, s%d, 6' % q_sgpr)
        a.e('v_add_u32 v8, s3, v0')
        a.e('v_mul_u32_u24 v9, 6554, v8')
        a.e('v_lshrrev_b32 v9, 16, v9')
        a.e('v_mul_u32_u24 v10, 10, v9')
        a.e('v_sub_u32 v10, v8, v10')
        a.e('v_mul_u32_u24 v9, 3584, v9')
        a.e('v_lshl_add_u32 v9, v10, 4, v9')
        a.e('v_add_u32 v%d, s%d, v9' % (vWO[j], sT))
        a.e('s_mov_b32 s%d, 0' % SOFF[j])
        a.e('s_mov_b32 s%d, %d' % (STEP[j], 64 * 3584))
        a.e('s_lshl_b32 s%d, s%d, 10' % (DEST[j], q_sgpr))

    slotB(0, sW)
    for k in range(4):
        a.e('s_mov_b32 s%d, s%d' % (SL[0] + k, SW1 + k))
    a.e('s_add_u32 s%d, s%d, %d' % (DEST[0], DEST[0], XREG + WOFF_B[0]))
    a.e('s_add_u32 s%d, s%d, 8' % (sT2, sW))
    a.e('s_sub_u32 s%d, s%d, 2' % (sT3, sW))
    a.e('s_cmp_lt_u32 s%d, 2' % sW)
    a.e('s_cselect_b32 s%d, s%d, s%d' % (sT2, sT2, sT3))
    a.e('s_cselect_b64 %s, %s, %s' % (sr(SL[1], 2), sr(SW1, 2), sr(SW3, 2)))
    a.e('s_cselect_b64 %s, %s, %s' % (sr(SL[1] + 2, 2), sr(SW1 + 2, 2), sr(SW3 + 2, 2)))
    a.e('s_mov_b32 s%d, %d' % (sT3, XREG + WOFF_B[1]))
    a.e('s_cselect_b32 s%d, %d, s%d' % (sT3, XREG + WOFF_B[0], sT3))
    slotB(1, sT2)
    a.e('s_add_u32 s%d, s%d, s%d' % (DEST[1], DEST[1], sT3))
    a.e('s_and_b32 s%d, s%d, 3' % (sT2, sW))
    a.e('s_add_u32 s%d, s%d, 6' % (sT2, sT2))
    slotB(2, sT2)
    for k in range(4):
        a.e('s_mov_b32 s%d, s%d' % (SL[2] + k, SW3 + k))
    a.e('s_add_u32 s%d, s%d, %d' % (DEST[2], DEST[2], XREG + WOFF_B[1]))

    sU, sNT, sK, sISWO, sPD = 3, 85, 23, 22, 21
    PREP = STAGE

    def prep_issue():
        a.e('s_lshl_b32 s%d, s%d, 4' % (sT, sRB))
        a.e('s_add_u32 s%d, s%d, s%d' % (sT, sT, sC))
        a.e('s_lshl_b32 s%d, s%d, 3' % (sT, sT))
        a.e('s_add_u32 s%d, s%d, s%d' % (sT, sT, sW))
        a.e('s_min_u32 s%d, s%d, 1007' % (sT, sT))
        a.e('s_cmp_ge_u32 s%d, 784' % sT)
        a.e('s_cselect_b32 s%d, 1, 0' % sISWO)
        a.e('s_cselect_b32 s%d, 784, 0' % sT2)
        a.e('s_sub_u32 s%d, s%d, s%d' % (sT, sT, sT2))
        a.e('s_mul_i32 s%d, s%d, 4682' % (sK, sT))
        a.e('s_lshr_b32 s%d, s%d, 16' % (sK, sK))
        a.e('s_mul_i32 s%d, s%d, 14' % (sT2, sK))
        a.e('s_sub_u32 s%d, s%d, s%d' % (sNT, sT, sT2))
        a.e('s_cmp_eq_u32 s%d, 1' % sISWO)
        a.e('s_cselect_b32 s%d, 28, 32' % sT2)
        a.e('s_mul_i32 s%d, s%d, s%d' % (sT2, sT2, sK))
        a.e('s_mul_i32 s%d, s%d, 896' % (sT2, sT2))
        a.e('s_lshl_b32 s%d, s%d, 6' % (sT3, sNT))
        a.e('s_add_u32 s%d, s%d, s%d' % (sT2, sT2, sT3))
        a.e('s_cmp_eq_u32 s%d, 1' % sISWO)
        a.e('s_cselect_b64 %s, %s, %s' % (sr(SL[0], 2), sr(SWO, 2), sr(SW2, 2)))
        a.e('s_cselect_b64 %s, %s, %s' % (sr(SL[0] + 2, 2), sr(SWO + 2, 2), sr(SW2 + 2, 2)))
        a.e('v_lshrrev_b32 v8, 2, v0')
        a.e('v_mul_u32_u24 v8, 896, v8')
        a.e('v_and_b32 v9, 3, v0')
        a.e('v_lshl_add_u32 v8, v9, 4, v8')
        a.e('s_lshl_b32 s%d, s%d, 11' % (sPD, sW))
        a.e('s_add_u32 s%d, s%d, %d' % (sPD, sPD, PREP))
        a.e('s_mov_b32 m0, s%d' % sPD)
        a.e('s_add_u32 s%d, s%d, %d' % (sT3, sT2, 16 * 896))
        a.e('buffer_load_dwordx4 v8, %s, s%d offen lds' % (sr(SL[0], 4), sT2))
        a.e('s_add_u32 m0, s%d, 1024' % sPD)
        a.e('s_nop 0')
        a.e('buffer_load_dwordx4 v8, %s, s%d offen lds' % (sr(SL[0], 4), sT3))
        return 2

    main_loop('B', prep_issue, None)
    TMP = [v(WF[0] + i) for i in range(16)]
    a.e('s_lshl_b32 s%d, s%d, 3' % (sT3, sRB))
    a.e('s_add_u32 s%d, s%d, s%d' % (sT3, sT3, sW))
    a.e('s_mul_i32 s3, s%d, 112' % sT3)
    a.e('s_mul_i32 s%d, s%d, 5' % (sT, sC))
    a.e('s_add_u32 s3, s3, s%d' % sT)
    a.e('s_add_u32 s3, s3, 32')
    a.e('s_lshl_b32 s3, s3, 10')
    a.e('s_add_u32 s3, s3, %d' % H_OFF)
    a.e('s_add_u32 s%d, s3, 4096' % sT)
    for m in range(5):
        o = WF[1] + 4 * (m & 3)
        silu_mul(a, acc(m), TMP, [v(o + i) for i in range(4)])
        if m < 4:
            a.e('buffer_store_dwordx4 %s, v%d, %s, s3 offen offset:%d' % (vr(o, 4), vST, sr(SWS, 4), 1024 * m))
        else:
            a.e('buffer_store_dwordx4 %s, v%d, %s, s%d offen' % (vr(o, 4), vST, sr(SWS, 4), sT))
    a.e('v_lshrrev_b32 v9, 5, v0')
    a.e('v_bfe_u32 v10, v0, 4, 1')
    a.e('v_bfe_u32 v11, v0, 2, 2')
    a.e('v_and_b32 v12, 3, v0')
    a.e('v_lshl_add_u32 v15, v10, 2, v12')
    a.e('v_and_b32 v13, 1, v15')
    a.e('v_lshlrev_b32 v13, 2, v13')
    a.e('v_lshrrev_b32 v14, 1, v15')
    a.e('v_add_u32 v13, v13, v14')
    a.e('v_lshlrev_b32 v13, 3, v13')
    a.e('s_cmp_eq_u32 s%d, 1' % sISWO)
    a.e('s_cselect_b32 s%d, 2, 3' % sT)
    a.e('s_mov_b32 s%d, 256' % sT2)
    a.e('s_cselect_b32 s%d, 512, s%d' % (sT2, sT2))
    a.e('v_lshlrev_b32 v14, s%d, v9' % sT)
    a.e('v_add_u32 v14, v14, v11')
    a.e('v_lshl_add_u32 v14, v14, 6, v13')
    a.e('v_add_u32 v14, s%d, v14' % sPD)
    a.e('v_add_u32 v15, s%d, v14' % sT2)
    a.e('s_waitcnt vmcnt(5)')
    P = ACC
    a.e('ds_read_b64_tr_b16 %s, v14' % vr(P, 2))
    a.e('ds_read_b64_tr_b16 %s, v15' % vr(P + 2, 2))
    a.e('ds_read_b64_tr_b16 %s, v14 offset:1024' % vr(P + 4, 2))
    a.e('ds_read_b64_tr_b16 %s, v15 offset:1024' % vr(P + 6, 2))
    a.e('s_mul_i32 s%d, s%d, 112' % (sT, sNT))
    a.e('s_lshl_b32 s%d, s%d, 1' % (sT2, sK))
    a.e('s_add_u32 s%d, s%d, s%d' % (sT, sT, sT2))
    a.e('s_lshl_b32 s%d, s%d, 10' % (sT, sT))
    a.e('s_add_u32 s%d, s%d, %d' % (sT, sT, W2P_OFF))
    a.e('s_lshl_b32 s%d, s%d, 4' % (sT3, sNT))
    a.e('s_add_u32 s%d, s%d, s%d' % (sT3, sT3, sK))
    a.e('s_lshl_b32 s%d, s%d, 11' % (sT3, sT3))
    a.e('s_add_u32 s%d, s%d, %d' % (sT3, sT3, WOP_OFF))
    a.e('s_cmp_eq_u32 s%d, 1' % sISWO)
    a.e('s_cselect_b32 s%d, s%d, s%d' % (sT, sT3, sT))
    a.e('s_cselect_b32 s%d, 32, 64' % sT2)
    a.e('v_cmp_le_u32 vcc, s%d, v0' % sT2)
    a.e('s_waitcnt lgkmcnt(0)')
    a.e('v_cndmask_b32 v%d, v%d, 0, vcc' % (P + 6, P + 6))
    a.e('v_cndmask_b32 v%d, v%d, 0, vcc' % (P + 7, P + 7))
    a.e('buffer_store_dwordx4 %s, v%d, %s, s%d offen' % (vr(P, 4), vST, sr(SWS, 4), sT))
    a.e('buffer_store_dwordx4 %s, v%d, %s, s%d offen offset:1024' % (vr(P + 4, 4), vST, sr(SWS, 4), sT))
    a.lab('K1_END')
    a.e('s_endpgm')
    return a.final()


def gen_k1b():
    a = Asm()
    a.lab('k1b_kernel')
    a.e('s_cmp_ge_u32 s2, 16')
    a.e('s_cbranch_scc1 K1B_END')
    a.e('s_load_dwordx2 s[4:5], s[0:1], 80')
    a.e('v_lshlrev_b32 v1, 4, v0')
    a.e('s_lshl_b32 s3, s2, 15')
    a.e('s_add_u32 s3, s3, %d' % KVP_OFF)
    a.e('s_waitcnt lgkmcnt(0)')
    srd(a, 8, 4, WS_BYTES)
    for p in range(8):
        a.e('buffer_load_dwordx4 %s, v1, s[8:11], s3 offen' % vr(4 + 4 * p, 4))
        a.e('s_add_u32 s3, s3, 4096')
    a.e('v_cmp_le_u32 vcc, 224, v0')
    a.e('v_lshrrev_b32 v2, 7, v0')
    a.e('v_lshlrev_b32 v2, 10, v2')
    a.e('v_and_b32 v3, 63, v0')
    a.e('v_lshl_add_u32 v2, v3, 4, v2')
    a.e('v_bfe_u32 v3, v0, 6, 1')
    a.e('v_lshl_add_u32 v2, v3, 3, v2')
    a.e('s_lshl_b32 s3, s2, 11')
    a.e('s_add_u32 s3, s3, %d' % KVT_OFF)
    for p in range(1, 8):
        a.e('s_waitcnt vmcnt(%d)' % (7 - p))
        for k in range(4):
            a.e('v_add_f32 v%d, v%d, v%d' % (4 + k, 4 + k, 4 + 4 * p + k))
    for k in range(4):
        a.e('v_cndmask_b32 v%d, v%d, 0, vcc' % (4 + k, 4 + k))
    a.e('v_cvt_pk_bf16_f32 v8, v4, v5')
    a.e('v_cvt_pk_bf16_f32 v9, v6, v7')
    a.e('buffer_store_dwordx2 v[8:9], v2, s[8:11], s3 offen')
    a.lab('K1B_END')
    a.e('s_endpgm')
    return a.final()


def gen_k2():
    a = Asm()
    SWS, SOUT = 8, 12
    sW, sRB, sCB, sT, sT2 = 16, 17, 18, 19, 20
    sH = [24, 25]
    sW2 = [26, 27]
    sKVT, sPQ, sWO = 28, [29, 30], [31, 32]
    vST = 1
    vG = [2, 3]
    vOMG = [4, 5]
    DF = 6
    FB = 16
    HB = FB + DF * 16
    OB = HB + 80
    OP = OB + 16
    TM = OP + 8
    NV = TM + 8
    accA = lambda rt, nt: 'a[%d:%d]' % (16 * (2 * rt + nt), 16 * (2 * rt + nt) + 15)
    accB = lambda rt, nt: 'a[%d:%d]' % (64 + 16 * (2 * rt + nt), 64 + 16 * (2 * rt + nt) + 15)

    a.lab('k2_kernel')
    a.e('s_cmp_ge_u32 s2, 224')
    a.e('s_cbranch_scc1 K2_END')
    a.e('s_load_dwordx2 s[4:5], s[0:1], 80')
    a.e('s_load_dwordx2 s[6:7], s[0:1], 64')
    a.e('v_lshrrev_b32 v8, 6, v0')
    a.e('v_and_b32 v0, 63, v0')
    a.e('v_readfirstlane_b32 s%d, v8' % sW)
    a.e('v_lshlrev_b32 v%d, 4, v0' % vST)
    a.e('s_and_b32 s3, s2, 7')
    a.e('s_lshr_b32 s%d, s2, 3' % sT)
    a.e('s_mul_i32 s%d, s%d, 9363' % (sT2, sT))
    a.e('s_lshr_b32 s%d, s%d, 16' % (sT2, sT2))
    a.e('s_mul_i32 s%d, s%d, 7' % (sCB, sT2))
    a.e('s_sub_u32 s%d, s%d, s%d' % (sCB, sT, sCB))
    a.e('s_lshl_b32 s3, s3, 2')
    a.e('s_add_u32 s%d, s3, s%d' % (sRB, sT2))
    a.e('s_waitcnt lgkmcnt(0)')
    srd(a, SWS, 4, WS_BYTES)
    srd(a, SOUT, 6, SZ_OUT)
    a.e('s_mul_i32 s%d, s%d, %d' % (sT, sW, 28 * 1024))
    a.e('s_mul_i32 s%d, s%d, %d' % (sH[0], sRB, 2 * 112 * 1024))
    a.e('s_add_u32 s%d, s%d, s%d' % (sH[0], sH[0], sT))
    a.e('s_add_u32 s%d, s%d, %d' % (sH[0], sH[0], H_OFF))
    a.e('s_add_u32 s%d, s%d, %d' % (sH[1], sH[0], 112 * 1024))
    a.e('s_mul_i32 s%d, s%d, %d' % (sW2[0], sCB, 2 * 112 * 1024))
    a.e('s_add_u32 s%d, s%d, s%d' % (sW2[0], sW2[0], sT))
    a.e('s_add_u32 s%d, s%d, %d' % (sW2[0], sW2[0], W2P_OFF))
    a.e('s_add_u32 s%d, s%d, %d' % (sW2[1], sW2[0], 112 * 1024))
    a.e('s_lshl_b32 s%d, s%d, 13' % (sT, sW))
    a.e('s_add_u32 s%d, s%d, %d' % (sKVT, sT, KVT_OFF))
    a.e('s_lshl_b32 s%d, s%d, 16' % (sPQ[0], sRB))
    a.e('s_add_u32 s%d, s%d, s%d' % (sPQ[0], sPQ[0], sT))
    a.e('s_add_u32 s%d, s%d, %d' % (sPQ[0], sPQ[0], PQ_OFF))
    a.e('s_add_u32 s%d, s%d, %d' % (sPQ[1], sPQ[0], 32768))
    a.e('s_lshl_b32 s%d, s%d, 16' % (sWO[0], sCB))
    a.e('s_add_u32 s%d, s%d, s%d' % (sWO[0], sWO[0], sT))
    a.e('s_add_u32 s%d, s%d, %d' % (sWO[0], sWO[0], WOP_OFF))
    a.e('s_add_u32 s%d, s%d, %d' % (sWO[1], sWO[0], 32768))
    a.e('v_and_b32 v8, 31, v0')
    a.e('v_lshlrev_b32 v8, 2, v8')
    a.e('s_lshl_b32 s%d, s%d, 8' % (sT, sRB))
    a.e('s_add_u32 s%d, s%d, %d' % (sT, sT, G_OFF))
    issued = []

    def ld(dst, sbase, off, tag):
        a.e('buffer_load_dwordx4 %s, v%d, %s, s%d offen offset:%d' % (vr(dst, 4), vST, sr(SWS, 4), sbase, off))
        issued.append(tag)

    a.e('buffer_load_dword v%d, v8, %s, s%d offen' % (vG[0], sr(SWS, 4), sT))
    a.e('buffer_load_dword v%d, v8, %s, s%d offen offset:128' % (vG[1], sr(SWS, 4), sT))
    issued += ['g', 'g']

    items = []
    for f in range(28):
        items.append(('F', f))
        if f % 7 == 6:
            items.append(('H', f // 7))

    def issue(it):
        kind, idx = it
        if kind == 'F':
            b = FB + (idx % DF) * 16
            off = (idx % 4) * 1024
            ld(b, sH[0], off, it)
            ld(b + 4, sH[1], off, it)
            ld(b + 8, sW2[0], off, it)
            ld(b + 12, sW2[1], off, it)
            if idx % 4 == 3:
                for s in sH + sW2:
                    a.e('s_add_u32 s%d, s%d, 4096' % (s, s))
        else:
            b = HB + (idx % 2) * 40
            off = (idx % 2) * 2048
            for j in range(2):
                ld(b + 4 * j, sKVT, off + 1024 * j, it)
            for rt in range(2):
                for j in range(2):
                    ld(b + 8 + 8 * rt + 4 * j, sPQ[rt], off + 1024 * j, it)
            for nt in range(2):
                for j in range(2):
                    ld(b + 24 + 8 * nt + 4 * j, sWO[nt], off + 1024 * j, it)
            if idx % 2 == 1:
                for s in [sKVT] + sPQ + sWO:
                    a.e('s_add_u32 s%d, s%d, 4096' % (s, s))

    def wait_for(it):
        last = max(i for i, t in enumerate(issued) if t == it)
        a.e('s_waitcnt vmcnt(%d)' % (len(issued) - 1 - last))

    firstB = [True]
    firstA = [True]

    def compute(it):
        kind, idx = it
        wait_for(it)
        if kind == 'F':
            b = FB + (idx % DF) * 16
            for rt in range(2):
                for nt in range(2):
                    a.e('v_mfma_f32_32x32x16_bf16 %s, %s, %s, %s' % (accB(rt, nt), vr(b + 8 + 4 * nt, 4), vr(b + 4 * rt, 4),
                                                                   '0' if firstB[0] else accB(rt, nt)))
            firstB[0] = False
        else:
            b = HB + (idx % 2) * 40
            for rt in range(2):
                a.e('v_mfma_f32_32x32x16_bf16 %s, %s, %s, 0' % (vr(OB, 16), vr(b, 4), vr(b + 8 + 8 * rt, 4)))
                a.e('v_mfma_f32_32x32x16_bf16 %s, %s, %s, %s' % (vr(OB, 16), vr(b + 4, 4), vr(b + 8 + 8 * rt + 4, 4), vr(OB, 16)))
                o = [v(OB + r) for r in range(16)]
                round_bf16(a, o, [v(TM + i) for i in range(8)])
                a.e('v_mov_b32 v%d, v%d' % (TM, OB + 12))
                a.e('v_mov_b32 v%d, v%d' % (TM + 1, OB + 12))
                a.e('v_permlane32_swap_b32 v%d, v%d' % (TM, TM + 1))
                a.e('v_add_f32 v%d, %s, v%d' % (TM + 1, EPS, TM + 1))
                a.e('v_cvt_pk_bf16_f32 v%d, v%d, v%d' % (TM + 1, TM + 1, TM + 1))
                a.e('v_lshlrev_b32 v%d, 16, v%d' % (TM + 1, TM + 1))
                a.e('v_rcp_f32 v%d, v%d' % (TM + 1, TM + 1))
                for r in range(16):
                    a.e('v_mul_f32 %s, %s, v%d' % (o[r], o[r], TM + 1))
                for i in range(8):
                    a.e('v_cvt_pk_bf16_f32 v%d, %s, %s' % (OP + i, o[2 * i], o[2 * i + 1]))
                for j in range(2):
                    for nt in range(2):
                        a.e('v_mfma_f32_32x32x16_bf16 %s, %s, %s, %s' % (
                            accA(rt, nt), vr(b + 24 + 8 * nt + 4 * j, 4), vr(OP + 4 * j, 4),
                            '0' if (firstA[0] and j == 0) else accA(rt, nt)))
            firstA[0] = False

    nxt = 0

    def can_issue(k, cur):
        kind, idx = items[k]
        if kind == 'F':
            if idx < DF:
                return True
            pos = items.index(('F', idx - DF))
            return pos < cur
        else:
            if idx < 2:
                return True
            pos = items.index(('H', idx - 2))
            return pos < cur

    for cur in range(len(items)):
        while nxt < len(items) and can_issue(nxt, cur):
            issue(items[nxt])
            nxt += 1
        compute(items[cur])
    a.e('v_sub_f32 v%d, 1.0, v%d' % (vOMG[0], vG[0]))
    a.e('v_sub_f32 v%d, 1.0, v%d' % (vOMG[1], vG[1]))
    round_bf16(a, [v(vOMG[0]), v(vOMG[1])], [v(TM)])
    R = FB
    for rt in range(2):
        for nt in range(2):
            t = 2 * rt + nt
            for r in range(16):
                a.e('v_accvgpr_read_b32 v%d, a%d' % (R + 16 * t + r, 16 * t + r))
                a.e('v_accvgpr_read_b32 v%d, a%d' % (HB + r, 64 + 16 * t + r))
            for r in range(16):
                a.e('v_mul_f32 v%d, v%d, v%d' % (R + 16 * t + r, R + 16 * t + r, vG[rt]))
            for r in range(16):
                a.e('v_fmac_f32 v%d, v%d, v%d' % (R + 16 * t + r, HB + r, vOMG[rt]))
    a.e('s_lshl_b32 s%d, s%d, 12' % (sT, sW))
    a.e('v_add_u32 v8, s%d, v%d' % (sT, vST))
    for t in range(4):
        for q in range(4):
            a.e('ds_write_b128 v8, %s offset:%d' % (vr(R + 16 * t + 4 * q, 4), 16384 * t + 1024 * q))
    a.e('s_waitcnt lgkmcnt(0)')
    a.e('s_barrier')
    a.e('s_lshl_b32 s%d, s%d, 14' % (sT, sW))
    a.e('v_add_u32 v8, s%d, v%d' % (sT, vST))
    for p in range(4):
        for q in range(4):
            a.e('ds_read_b128 %s, v8 offset:%d' % (vr(R + 16 * p + 4 * q, 4), 4096 * p + 1024 * q))
    a.e('s_lshr_b32 s%d, s%d, 1' % (sT, sW))
    a.e('s_lshl_b32 s%d, s%d, 1' % (sT2, sRB))
    a.e('s_add_u32 s%d, s%d, s%d' % (sT, sT, sT2))
    a.e('s_mul_i32 s%d, s%d, %d' % (sT, sT, 32 * 896))
    a.e('s_and_b32 s%d, s%d, 1' % (sT2, sW))
    a.e('s_lshl_b32 s%d, s%d, 6' % (sT2, sT2))
    a.e('s_add_u32 s%d, s%d, s%d' % (sT, sT, sT2))
    a.e('s_lshl_b32 s%d, s%d, 7' % (sT2, sCB))
    a.e('s_add_u32 s%d, s%d, s%d' % (sT, sT, sT2))
    a.e('v_and_b32 v9, 31, v0')
    a.e('v_mul_u32_u24 v9, 896, v9')
    a.e('v_lshrrev_b32 v10, 5, v0')
    a.e('v_lshl_add_u32 v9, v10, 5, v9')
    a.e('s_waitcnt lgkmcnt(0)')
    for r in range(16):
        a.e('v_add_f32 v%d, v%d, v%d' % (R + r, R + r, R + 16 + r))
        a.e('v_add_f32 v%d, v%d, v%d' % (R + 32 + r, R + 32 + r, R + 48 + r))
    for r in range(16):
        a.e('v_add_f32 v%d, v%d, v%d' % (R + r, R + r, R + 32 + r))
    for i in range(8):
        a.e('v_cvt_pk_bf16_f32 v%d, v%d, v%d' % (HB + i, R + 2 * i, R + 2 * i + 1))
    a.e('buffer_store_dwordx4 %s, v9, %s, s%d offen' % (vr(HB, 4), sr(SOUT, 4), sT))
    a.e('buffer_store_dwordx4 %s, v9, %s, s%d offen offset:16' % (vr(HB + 4, 4), sr(SOUT, 4), sT))
    a.lab('K2_END')
    a.e('s_endpgm')
    return a.final(), NV


def kd(name, nv, accoff, nfv, nsg):
    return '''.amdhsa_kernel %s
  .amdhsa_next_free_vgpr %d
  .amdhsa_next_free_sgpr %d
  .amdhsa_accum_offset %d
  .amdhsa_group_segment_fixed_size 0
  .amdhsa_kernarg_size 88
  .amdhsa_user_sgpr_count 2
  .amdhsa_user_sgpr_kernarg_segment_ptr 1
  .amdhsa_system_sgpr_workgroup_id_x 1
  .amdhsa_float_denorm_mode_32 3
.end_amdhsa_kernel
''' % (name, nfv, nsg, accoff)


def main(out):
    k1 = gen_k1()
    k1b = gen_k1b()
    k2, nv2 = gen_k2()
    acc2 = (nv2 + 3) // 4 * 4
    s = '; generated by gen/gen.py\n'
    s += '; @launch kernel=k1_kernel grid=(256,1,1) block=(512,1,1) lds=%d\n' % LDS_K1
    s += '; @launch kernel=k1b_kernel grid=(16,1,1) block=(256,1,1) lds=0\n'
    s += '; @launch kernel=k2_kernel grid=(224,1,1) block=(256,1,1) lds=65536\n'
    s += '.amdgcn_target "amdgcn-amd-amdhsa--gfx950"\n.text\n'
    for nm, body in (('k1_kernel', k1), ('k1b_kernel', k1b), ('k2_kernel', k2)):
        s += '.globl %s\n.p2align 8\n.type %s,@function\n' % (nm, nm) + body
    s += '.section .rodata,"a"\n.p2align 6\n'
    s += kd('k1_kernel', 160, 160, 160, 102)
    s += '.p2align 6\n' + kd('k1b_kernel', 40, 40, 40, 16)
    s += '.p2align 6\n' + kd('k2_kernel', nv2, acc2, acc2 + 128, 40)
    open(out, 'w').write(s)


if __name__ == '__main__':
    main(sys.argv[1] if len(sys.argv) > 1 else 'cdna_kernels/%s.s' % NAME)
```

```python
import sys, os
sys.path.insert(0, 'gen')
from asmlib import Asm

NAME = 'gated_mix__linear_attn_block__glu_gated_swiglu__prompt'
PQ_OFF = 0
H_OFF = PQ_OFF + 64 * 16 * 2 * 1024
KVP_OFF = H_OFF + 64 * 112 * 1024
KVT_OFF = KVP_OFF + 16 * 8 * 4096
W2P_OFF = KVT_OFF + 16 * 2 * 1024
WOP_OFF = W2P_OFF + 14 * 112 * 1024
G_OFF = WOP_OFF + 14 * 16 * 2 * 1024
WS_BYTES = G_OFF + 2048 * 4
WS_SRD = 32 << 20

SZ_X = 2048 * 448 * 2
SZ_WQKV = 448 * 1344 * 2
SZ_WO = 448 * 448 * 2
SZ_W1 = 448 * 1792 * 2
SZ_W2 = 1792 * 448 * 2
SZ_GW = 448 * 2
SZ_OUT = 2048 * 448 * 2

STAGE = 53376
XREG = 32768
WOFF_A = [0, 4096, 8192, 12288, 16384 + 32]
WOFF_B = [0, 10368]
GWX = 3 * STAGE
LDS_K1 = 163840
LOG2E = '0x3fb8aa3b'
NLOG2E = '0xbfb8aa3b'
EPS = '0x358637bd'

STAMPS = os.environ.get('STAMPS', '0') == '1'
STAMP_OFF = 16 << 20


def stamp(a, k, vreg, sp=None, real=False):
    if not STAMPS:
        return
    sp = a.sp
    a.e('%s s[%d:%d]' % ('s_memrealtime' if real else 's_memtime', sp, sp + 1))
    a.e('s_waitcnt lgkmcnt(0)')
    a.e('v_writelane_b32 v%d, s%d, %d' % (vreg, sp, k))


def stamp_store(a, vreg, srdws, wave_sgpr, nwaves, base, tmpv, sp=None):
    if not STAMPS:
        return
    sp = a.sp
    a.e('s_mul_i32 s%d, s2, %d' % (sp, nwaves))
    a.e('s_add_u32 s%d, s%d, s%d' % (sp, sp, wave_sgpr))
    a.e('s_lshl_b32 s%d, s%d, 8' % (sp, sp))
    a.e('s_add_u32 s%d, s%d, %d' % (sp, sp, base))
    a.e('v_lshlrev_b32 v%d, 2, v0' % tmpv)
    a.e('buffer_store_dword v%d, v%d, s[%d:%d], s%d offen' % (vreg, tmpv, srdws, srdws + 3, sp))


def v(i):
    return 'v%d' % i


def vr(i, n):
    return 'v[%d:%d]' % (i, i + n - 1)


def sr(i, n):
    return 's[%d:%d]' % (i, i + n - 1)


def srd(a, d, lo, size):
    a.e('s_mov_b32 s%d, s%d' % (d, lo))
    a.e('s_and_b32 s%d, s%d, 0xffff' % (d + 1, lo + 1))
    a.e('s_mov_b32 s%d, 0x%x' % (d + 2, size))
    a.e('s_mov_b32 s%d, 0x00020000' % (d + 3))


def phi16(a, R, T, O, sC):
    for i in range(8):
        a.e('v_pk_mul_f32 %s, %s, %s' % (vr(T + 2 * i, 2), vr(R + 2 * i, 2), sr(sC, 2)))
    for i in range(16):
        a.e('v_exp_f32 v%d, v%d clamp' % (T + i, T + i))
    for i in range(16):
        a.e('v_max_f32 v%d, 0, v%d' % (R + i, R + i))
    for i in range(8):
        a.e('v_pk_add_f32 %s, %s, %s' % (vr(R + 2 * i, 2), vr(R + 2 * i, 2), sr(sC + 2, 2)))
    for i in range(8):
        a.e('v_pk_add_f32 %s, %s, %s' % (vr(R + 2 * i, 2), vr(R + 2 * i, 2), vr(T + 2 * i, 2)))
    for i in range(8):
        a.e('v_cvt_pk_bf16_f32 v%d, v%d, v%d' % (O + i, R + 2 * i, R + 2 * i + 1))


def silu_mul(a, R, T, O, sC):
    for i in range(4):
        a.e('v_pk_mul_f32 %s, %s, %s' % (vr(T + 2 * i, 2), vr(R + 2 * i, 2), sr(sC + 4, 2)))
    for i in range(8):
        a.e('v_exp_f32 v%d, v%d' % (T + i, T + i))
    for i in range(4):
        a.e('v_pk_mul_f32 %s, %s, %s' % (vr(R + 2 * i, 2), vr(R + 2 * i, 2), vr(R + 8 + 2 * i, 2)))
    for i in range(4):
        a.e('v_pk_add_f32 %s, %s, %s' % (vr(T + 2 * i, 2), vr(T + 2 * i, 2), sr(sC + 6, 2)))
    for i in range(8):
        a.e('v_rcp_f32 v%d, v%d' % (T + i, T + i))
    for i in range(4):
        a.e('v_pk_mul_f32 %s, %s, %s' % (vr(R + 2 * i, 2), vr(R + 2 * i, 2), vr(T + 2 * i, 2)))
    for i in range(4):
        a.e('v_cvt_pk_bf16_f32 v%d, v%d, v%d' % (O + i, R + 2 * i, R + 2 * i + 1))


def consts(a, sC):
    for k, val in enumerate([LOG2E, LOG2E, EPS, EPS, NLOG2E, NLOG2E, '0x3f800000', '0x3f800000']):
        a.e('s_mov_b32 s%d, %s' % (sC + k, val))


def gen_k1():
    a = Asm()
    a.sp = 100
    SX, SWQKV, SW1, SW3, SWS, SW2, SWO, SGW, SDBG = 24, 28, 32, 36, 40, 44, 48, 52, 56
    SLX = 60
    SOFF = [64, 65, 66, 67, 68]
    DEST = [69, 70, 71, 72, 73]
    sW, sRB, sC, sCB, sXD, sT, sT2, sT3 = 74, 75, 76, 77, 78, 79, 80, 81
    sCON = 84
    sEX = 92
    sW8 = 82
    sGWM = 22
    ACC = 96
    WF = [16, 36]
    XF = [56, 64]
    vTID = 1
    vXO = [2, 3]
    vWO = [4, 5, 6, 7, 72]
    vXA = [73, 74, 75, 76]
    vKV, vGU, vQ0, vQ1, vQI, vC128, vST = 77, 78, 79, 80, 81, 82, 83
    vSTAMP = 95
    accb = lambda t, r: ACC + 16 * (2 * t + r)

    a.lab('k1_kernel')
    a.e('s_cmp_ge_u32 s2, 256')
    a.e('s_cbranch_scc1 K1_END')
    a.e('s_load_dwordx4 s[4:7], s[0:1], 0')
    a.e('s_load_dwordx2 s[8:9], s[0:1], 16')
    a.e('s_load_dwordx4 s[12:15], s[0:1], 32')
    a.e('s_load_dwordx4 s[16:19], s[0:1], 48')
    a.e('s_load_dwordx4 s[96:99], s[0:1], 72')
    a.e('v_mov_b32 v%d, v0' % vTID)
    a.e('v_lshrrev_b32 v8, 6, v0')
    a.e('v_and_b32 v0, 63, v0')
    a.e('v_readfirstlane_b32 s%d, v8' % sW8)
    a.e('s_and_b32 s3, s2, 7')
    a.e('s_lshr_b32 s%d, s2, 3' % sT)
    a.e('s_and_b32 s%d, s%d, 3' % (sT2, sT))
    a.e('s_lshl_b32 s3, s3, 2')
    a.e('s_add_u32 s%d, s3, s%d' % (sCB, sT2))
    a.e('s_lshr_b32 s%d, s%d, 2' % (sRB, sT))
    a.e('s_lshr_b32 s%d, s%d, 1' % (sC, sCB))
    a.e('s_and_b32 s%d, s%d, 3' % (sW, sW8))
    a.e('v_and_b32 v%d, 255, v%d' % (vTID, vTID))
    consts(a, sCON)
    a.e('s_lshl_b32 s%d, s%d, 8' % (sT, sRB))
    a.e('s_lshl_b32 s%d, s%d, 6' % (sT2, sW))
    a.e('s_add_u32 s%d, s%d, s%d' % (sT, sT, sT2))
    a.e('v_lshrrev_b32 v8, 3, v0')
    a.e('v_add_u32 v8, s%d, v8' % sT)
    a.e('v_mul_u32_u24 v8, 896, v8')
    a.e('v_and_b32 v9, 7, v0')
    a.e('v_lshrrev_b32 v10, 4, v0')
    a.e('v_xor_b32 v11, v9, v10')
    a.e('v_lshl_add_u32 v%d, v11, 4, v8' % vXO[0])
    a.e('v_xor_b32 v11, 4, v11')
    a.e('v_lshl_add_u32 v%d, v11, 4, v8' % vXO[1])
    a.e('s_lshl_b32 s%d, s%d, 13' % (sXD, sW))
    a.e('v_and_b32 v8, 31, v0')
    a.e('v_lshrrev_b32 v9, 5, v0')
    a.e('v_bfe_u32 v10, v8, 1, 3')
    a.e('v_lshlrev_b32 v11, 7, v8')
    a.e('v_add_u32 v11, s%d, v11' % sXD)
    for ks in range(4):
        a.e('v_add_u32 v12, %d, v9' % (2 * ks))
        a.e('v_xor_b32 v12, v12, v10')
        a.e('v_lshl_add_u32 v%d, v12, 4, v11' % vXA[ks])
    a.e('v_lshlrev_b32 v%d, 4, v0' % vST)
    a.e('v_bfe_u32 v10, v0, 4, 1')
    a.e('v_bfe_u32 v11, v0, 2, 2')
    a.e('v_and_b32 v12, 3, v0')
    a.e('v_lshl_add_u32 v13, v9, 3, v11')
    a.e('v_and_b32 v14, 1, v12')
    a.e('v_lshlrev_b32 v14, 1, v14')
    a.e('v_lshrrev_b32 v15, 1, v12')
    a.e('v_add_u32 v14, v14, v15')
    a.e('v_lshlrev_b32 v14, 3, v14')
    a.e('s_waitcnt lgkmcnt(0)')
    srd(a, SX, 4, SZ_X)
    srd(a, SWQKV, 6, SZ_WQKV)
    srd(a, SW1, 12, SZ_W1)
    srd(a, SW3, 14, SZ_W1)
    srd(a, SWS, 98, WS_SRD)
    srd(a, SW2, 16, SZ_W2)
    srd(a, SWO, 8, SZ_WO)
    srd(a, SGW, 18, SZ_GW)
    srd(a, SDBG, 96, 256)
    stamp(a, 0, vSTAMP)
    stamp(a, 10, vSTAMP, real=True)
    a.e('s_and_b32 s%d, s%d, 1' % (sT, sCB))
    a.e('s_cmp_eq_u32 s%d, 1' % sT)
    a.e('s_cbranch_scc1 K1_TYPEB')

    def dma_chunk(i, slot_srd, slot_step):
        sb = (i % 3) * STAGE
        for q in range(8):
            a.e('s_add_u32 m0, s%d, %d' % (sXD, sb + q * 1024))
            a.e('s_mov_b32 s%d, %d' % (sT, i * 128 + q * 7168))
            a.e('buffer_load_dwordx4 v%d, %s, s%d offen lds' % (vXO[q & 1], sr(SX, 4), sT))
        for j in range(5):
            a.e('s_add_u32 m0, s%d, %d' % (DEST[j], sb))
            a.e('s_nop 0')
            a.e('buffer_load_dwordx4 v%d, %s, s%d offen lds' % (vWO[j], sr(slot_srd[j], 4), SOFF[j]))
            a.e('s_add_u32 s%d, s%d, %d' % (SOFF[j], SOFF[j], slot_step[j]))

    def main_loop(typ, slot_srd, slot_step, extra_at_b5=None, pre_wait=None, loader_tail=None):
        def reads(n):
            i, ks = divmod(n, 4)
            st = n & 1
            L = []
            L.append('ds_read_b128 %s, v%d' % (vr(XF[st], 4), vXA[ks]))
            L.append('ds_read_b128 %s, v%d offset:4096' % (vr(XF[st] + 4, 4), vXA[ks]))
            for t in range(5):
                for rd in range(2):
                    dst = vr(WF[st] + 4 * t + 2 * rd, 2)
                    if typ == 'A':
                        if t == 0:
                            L.append('ds_read_b64_tr_b16 %s, v%d' % (dst, vQ0 if rd == 0 else vQ1))
                        elif t in (1, 2):
                            L.append('ds_read_b64_tr_b16 %s, v%d offset:%d' % (dst, vKV, 4096 * t + ks * 1024 + rd * 256))
                        else:
                            L.append('ds_read_b64_tr_b16 %s, v%d offset:%d' % (dst, vGU, 32 * (t - 3) + ks * 1024 + rd * 256))
                    else:
                        L.append('ds_read_b64_tr_b16 %s, v%d offset:%d' % (dst, vGU, 32 * t + ks * 2560 + rd * 640))
            return L

        def addr_adv(n):
            i, ks = divmod(n, 4)
            if ks == 0:
                delta = STAGE if (i % 3) != 0 else -2 * STAGE
                for r in vXA + [vGU] + ([vKV] if typ == 'A' else []):
                    a.e('v_add_u32 v%d, %d, v%d' % (r, delta, r) if delta > 0 else
                        'v_subrev_u32 v%d, %d, v%d' % (r, -delta, r))
                if typ == 'A':
                    d2 = (delta - 3 * 1024) & 0xffffffff
                    a.e('v_mov_b32 v8, 0x%x' % d2)
                    a.e('v_cndmask_b32 v8, v8, v%d, %s' % (vC128, sr(sGWM, 2)))
                    a.e('v_add_u32 v%d, v8, v%d' % (vQ0, vQ0))
                    a.e('v_add_u32 v%d, v8, v%d' % (vQ1, vQ1))
            elif typ == 'A':
                a.e('v_add_u32 v%d, v%d, v%d' % (vQ0, vQI, vQ0))
                a.e('v_add_u32 v%d, v%d, v%d' % (vQ1, vQI, vQ1))

        def mfma(n, t, r):
            st = n & 1
            acc = vr(accb(t, r), 16)
            wf = vr(WF[st] + 4 * t, 4)
            xf = vr(XF[st] + 4 * r, 4)
            c = acc if n > 0 else '0'
            if typ == 'A' and t in (1, 2):
                a.e('v_mfma_f32_32x32x16_bf16 %s, %s, %s, %s' % (acc, xf, wf, c))
            else:
                a.e('v_mfma_f32_32x32x16_bf16 %s, %s, %s, %s' % (acc, wf, xf, c))

        a.e('s_cmp_lt_u32 s%d, 4' % sW8)
        a.e('s_cbranch_scc1 K1%s_COMPUTE' % typ)
        outstanding = []
        dma_chunk(0, slot_srd, slot_step)
        outstanding.append(13)
        stamp(a, 1, vSTAMP)
        a.e('s_barrier')
        for i in range(1, 3):
            dma_chunk(i, slot_srd, slot_step)
            outstanding.append(13)
        stamp(a, 2, vSTAMP)
        if pre_wait:
            pre_wait(sum(outstanding))
        a.e('s_waitcnt vmcnt(%d) lgkmcnt(0)' % sum(outstanding[1:]))
        outstanding.pop(0)
        stamp(a, 3, vSTAMP)
        a.e('s_barrier')
        for i in range(6):
            a.e('s_waitcnt vmcnt(%d)' % sum(outstanding[1:]))
            outstanding.pop(0)
            a.e('s_barrier')
            if i + 3 <= 6:
                dma_chunk(i + 3, slot_srd, slot_step)
                outstanding.append(13)
            elif i == 4 and extra_at_b5:
                outstanding.append(extra_at_b5())
        if loader_tail:
            loader_tail()
        stamp(a, 9, vSTAMP)
        stamp(a, 11, vSTAMP, real=True)
        stamp_store(a, vSTAMP, SWS, sW8, 8, STAMP_OFF, 8)
        a.e('s_endpgm')
        a.lab('K1%s_COMPUTE' % typ)
        a.e('s_barrier')
        a.e('s_barrier')
        stamp(a, 1, vSTAMP)
        for s in reads(0):
            a.e(s)
        for n in range(28):
            i, ks = divmod(n, 4)
            a.c('step %d' % n)
            a.e('s_waitcnt lgkmcnt(0)')
            if ks == 3 and i < 6:
                a.e('s_barrier')
                stamp(a, 2 + i, vSTAMP)
            mfma(n, 0, 0)
            R = []
            if n + 1 < 28:
                addr_adv(n + 1)
                R = reads(n + 1)
            k = 0
            for m in range(1, 10):
                for s in R[k:k + 2]:
                    a.e(s)
                k += 2
                mfma(n, m // 2, m % 2)
        stamp(a, 8, vSTAMP)

    a.e('v_lshl_add_u32 v15, v10, 2, v12')
    a.e('v_and_b32 v8, 6, v15')
    a.e('v_cmp_eq_u32 vcc, 6, v8')
    a.e('v_xor_b32 v8, 1, v15')
    a.e('v_cndmask_b32 v8, v15, v8, vcc')
    a.e('v_lshlrev_b32 v8, 3, v8')
    a.e('v_lshl_add_u32 v8, v13, 6, v8')
    a.e('v_add_u32 v%d, %d, v8' % (vKV, XREG))
    a.e('v_cmp_eq_u32 %s, 7, v15' % sr(sGWM, 2))
    a.e('v_lshlrev_b32 v9, 3, v13')
    a.e('v_add_u32 v9, %d, v9' % GWX)
    a.e('v_cndmask_b32 v%d, v%d, v9, %s' % (vQ0, vKV, sr(sGWM, 2)))
    a.e('v_add_u32 v8, 256, v%d' % vKV)
    a.e('v_add_u32 v9, 32, v9')
    a.e('v_cndmask_b32 v%d, v8, v9, %s' % (vQ1, sr(sGWM, 2)))
    a.e('v_mov_b32 v%d, 128' % vC128)
    a.e('v_mov_b32 v8, 1024')
    a.e('v_cndmask_b32 v%d, v8, v%d, %s' % (vQI, vC128, sr(sGWM, 2)))
    a.e('v_mul_u32_u24 v8, %d, v10' % (WOFF_A[4] - WOFF_A[3]))
    a.e('v_lshl_add_u32 v8, v13, 6, v8')
    a.e('v_add_u32 v8, v14, v8')
    a.e('v_add_u32 v%d, %d, v8' % (vGU, XREG + WOFF_A[3]))
    a.e('v_lshrrev_b32 v8, 2, v0')
    a.e('v_and_b32 v9, 3, v0')
    a.e('v_lshlrev_b32 v10, 4, v9')
    a.e('v_cmp_eq_u32 vcc, 3, v9')
    a.e('v_mov_b32 v11, 40')
    a.e('v_cndmask_b32 v11, v10, v11, vcc')
    a.e('v_mul_u32_u24 v12, 2688, v8')
    a.e('v_add_u32 v12, v12, v11')
    a.e('v_mul_u32_u24 v13, 3584, v8')
    a.e('v_add_u32 v13, v13, v10')
    a.e('s_mul_i32 s%d, s%d, 56' % (sT, sC))
    a.e('v_add_u32 v%d, s%d, v12' % (vWO[0], sT))
    a.e('v_mov_b32 v%d, v%d' % (vWO[1], vWO[0]))
    a.e('v_mov_b32 v%d, v%d' % (vWO[2], vWO[0]))
    a.e('s_lshl_b32 s3, s%d, 6' % sC)
    a.e('v_add_u32 v%d, s3, v13' % vWO[3])
    a.e('v_mov_b32 v%d, v%d' % (vWO[4], vWO[3]))
    a.e('s_mul_i32 s%d, s%d, %d' % (SOFF[0], sW, 16 * 2688))
    a.e('s_add_u32 s%d, s%d, 896' % (SOFF[1], SOFF[0]))
    a.e('s_add_u32 s%d, s%d, 1792' % (SOFF[2], SOFF[0]))
    a.e('s_mul_i32 s%d, s%d, %d' % (SOFF[3], sW, 16 * 3584))
    a.e('s_mov_b32 s%d, s%d' % (SOFF[4], SOFF[3]))
    a.e('s_lshl_b32 s3, s%d, 10' % sW)
    for j in range(5):
        a.e('s_add_u32 s%d, s3, %d' % (DEST[j], XREG + WOFF_A[j]))
    a.e('v_lshlrev_b32 v8, 1, v%d' % vTID)
    a.e('buffer_load_ushort v10, v8, %s, 0 offen' % sr(SGW, 4))
    a.e('buffer_load_ushort v12, v8, %s, 0 offen offset:512' % sr(SGW, 4))

    def pre_wait_A(nout):
        a.e('s_waitcnt vmcnt(%d)' % nout)
        a.e('v_lshl_or_b32 v10, v10, 16, v10')
        a.e('v_mov_b32 v11, v10')
        a.e('v_lshl_or_b32 v12, v12, 16, v12')
        a.e('v_mov_b32 v13, v12')
        a.e('v_lshlrev_b32 v8, 3, v%d' % vTID)
        a.e('v_add_u32 v8, %d, v8' % GWX)
        a.e('ds_write_b64 v8, v[10:11]')
        a.e('v_cmp_gt_u32 vcc, 192, v%d' % vTID)
        a.e('s_and_saveexec_b64 %s, vcc' % sr(sEX, 2))
        a.e('ds_write_b64 v8, v[12:13] offset:2048')
        a.e('s_mov_b64 exec, %s' % sr(sEX, 2))

    main_loop('A', [SWQKV, SWQKV, SWQKV, SW1, SW3], [64 * 2688] * 3 + [64 * 3584] * 2, None, pre_wait_A)
    TMP = WF[0]
    PK = 36
    PV = 44
    a.e('s_lshl_b32 s%d, s%d, 3' % (sT3, sRB))
    a.e('s_lshl_b32 s3, s%d, 1' % sW)
    a.e('s_add_u32 s%d, s%d, s3' % (sT3, sT3))
    a.e('v_and_b32 v8, 31, v0')
    a.e('v_cmp_le_u32 %s, 28, v8' % sr(sGWM, 2))
    a.e('v_mov_b32 v9, 0x3f803f80')
    KVA = 56
    for r in range(2):
        phi16(a, accb(1, r), TMP, PK, sCON)
        for i in range(8):
            a.e('v_cvt_pk_bf16_f32 v%d, v%d, v%d' % (PV + i, accb(2, r) + 2 * i, accb(2, r) + 2 * i + 1))
        for i in range(8):
            a.e('v_cndmask_b32 v%d, v%d, v9, %s' % (PV + i, PV + i, sr(sGWM, 2)))
        a.e('v_mfma_f32_32x32x16_bf16 %s, %s, %s, %s' % (vr(KVA, 16), vr(PK, 4), vr(PV, 4), '0' if r == 0 else vr(KVA, 16)))
        a.e('v_mfma_f32_32x32x16_bf16 %s, %s, %s, %s' % (vr(KVA, 16), vr(PK + 4, 4), vr(PV + 4, 4), vr(KVA, 16)))
    RED = STAGE
    a.e('s_lshl_b32 s3, s%d, 12' % sW)
    a.e('v_add_u32 v8, s3, v%d' % vST)
    a.e('v_add_u32 v8, %d, v8' % RED)
    for q in range(4):
        a.e('ds_write_b128 v8, %s offset:%d' % (vr(KVA + 4 * q, 4), 1024 * q))
    a.e('s_waitcnt lgkmcnt(0)')
    a.e('s_barrier')
    a.e('s_cmp_lg_u32 s%d, 0' % sW)
    a.e('s_cbranch_scc1 K1A_NOKV')
    KR = accb(1, 0)
    a.e('v_add_u32 v8, %d, v%d' % (RED, vST))
    for p in range(1, 4):
        for q in range(4):
            a.e('ds_read_b128 %s, v8 offset:%d' % (vr(KR + 16 * p + 4 * q, 4), 4096 * p + 1024 * q))
    a.e('s_lshl_b32 s3, s%d, 3' % sC)
    a.e('s_add_u32 s3, s3, s%d' % sRB)
    a.e('s_lshl_b32 s3, s3, 12')
    a.e('s_add_u32 s3, s3, %d' % KVP_OFF)
    a.e('s_waitcnt lgkmcnt(0)')
    for i in range(8):
        a.e('v_pk_add_f32 %s, %s, %s' % (vr(KVA + 2 * i, 2), vr(KVA + 2 * i, 2), vr(KR + 16 + 2 * i, 2)))
        a.e('v_pk_add_f32 %s, %s, %s' % (vr(KR + 32 + 2 * i, 2), vr(KR + 32 + 2 * i, 2), vr(KR + 48 + 2 * i, 2)))
    for i in range(8):
        a.e('v_pk_add_f32 %s, %s, %s' % (vr(KVA + 2 * i, 2), vr(KVA + 2 * i, 2), vr(KR + 32 + 2 * i, 2)))
    for q in range(4):
        a.e('buffer_store_dwordx4 %s, v%d, %s, s3 offen offset:%d sc1' % (vr(KVA + 4 * q, 4), vST, sr(SWS, 4), 1024 * q))
    a.e('s_waitcnt vmcnt(0)')
    a.e('s_lshl_b32 s3, s%d, 2' % sC)
    a.e('v_mov_b32 v94, 1')
    a.e('v_mov_b32 v8, 0')
    a.e('s_mov_b64 exec, 1')
    a.e('buffer_atomic_add v94, v8, %s, s3 offen sc0' % sr(SDBG, 4))
    a.e('s_mov_b64 exec, -1')
    a.lab('K1A_NOKV')
    a.e('v_mov_b32 v10, v%d' % (accb(0, 0) + 12))
    a.e('v_mov_b32 v11, v%d' % (accb(0, 1) + 12))
    a.e('s_lshl_b32 s3, s%d, 4' % sT3)
    a.e('s_add_u32 s3, s3, s%d' % sC)
    a.e('s_lshl_b32 s3, s3, 11')
    a.e('s_add_u32 s%d, s3, 32768' % sT)
    for r in range(2):
        o = PK + 8 * r
        phi16(a, accb(0, r), TMP, o, sCON)
        sb = 's3' if r == 0 else 's%d' % sT
        a.e('buffer_store_dwordx4 %s, v%d, %s, %s offen' % (vr(o, 4), vST, sr(SWS, 4), sb))
        a.e('buffer_store_dwordx4 %s, v%d, %s, %s offen offset:1024' % (vr(o + 4, 4), vST, sr(SWS, 4), sb))
    a.e('s_cmp_lg_u32 s%d, 0' % sC)
    a.e('s_cbranch_scc1 K1A_NOG')
    a.e('v_cvt_pk_bf16_f32 v12, v10, v11')
    a.e('v_lshlrev_b32 v10, 16, v12')
    a.e('v_and_b32 v11, 0xffff0000, v12')
    a.e('v_pk_mul_f32 v[10:11], v[10:11], %s' % sr(sCON + 4, 2))
    a.e('v_exp_f32 v10, v10')
    a.e('v_exp_f32 v11, v11')
    a.e('v_pk_add_f32 v[10:11], v[10:11], %s' % sr(sCON + 6, 2))
    a.e('v_rcp_f32 v10, v10')
    a.e('v_rcp_f32 v11, v11')
    a.e('v_cvt_pk_bf16_f32 v12, v10, v11')
    a.e('v_lshlrev_b32 v10, 16, v12')
    a.e('v_and_b32 v11, 0xffff0000, v12')
    a.e('v_and_b32 v12, 31, v0')
    a.e('v_lshlrev_b32 v12, 2, v12')
    a.e('s_lshl_b32 s3, s%d, 7' % sT3)
    a.e('s_add_u32 s3, s3, %d' % G_OFF)
    a.e('v_cmp_le_u32 vcc, 32, v0')
    a.e('s_and_saveexec_b64 %s, vcc' % sr(sEX, 2))
    a.e('buffer_store_dword v10, v12, %s, s3 offen' % sr(SWS, 4))
    a.e('buffer_store_dword v11, v12, %s, s3 offen offset:128' % sr(SWS, 4))
    a.e('s_mov_b64 exec, %s' % sr(sEX, 2))
    a.lab('K1A_NOG')
    a.e('s_mul_i32 s3, s%d, 112' % sT3)
    a.e('s_lshl_b32 s%d, s%d, 1' % (sT, sC))
    a.e('s_add_u32 s3, s3, s%d' % sT)
    a.e('s_lshl_b32 s3, s3, 10')
    a.e('s_add_u32 s3, s3, %d' % H_OFF)
    a.e('s_add_u32 s%d, s3, %d' % (sT, 112 * 1024))
    for r in range(2):
        for m in range(2):
            o = PK + 4 * (2 * r + m)
            silu_mul(a, accb(3 + m, r), TMP, o, sCON)
            a.e('buffer_store_dwordx4 %s, v%d, %s, %s offen offset:%d' % (vr(o, 4), vST, sr(SWS, 4), 's3' if r == 0 else 's%d' % sT, 1024 * m))
    a.e('s_cmp_lg_u32 s%d, 0' % sW)
    a.e('s_cbranch_scc1 K1A_DONE')
    a.e('s_waitcnt vmcnt(0)')
    a.e('v_readfirstlane_b32 s3, v94')
    a.e('s_cmp_lg_u32 s3, 7')
    a.e('s_cbranch_scc1 K1A_DONE')
    a.e('s_lshl_b32 s3, s%d, 15' % sC)
    a.e('s_add_u32 s3, s3, %d' % KVP_OFF)
    for p in range(8):
        for q in range(4):
            a.e('buffer_load_dwordx4 %s, v%d, %s, s3 offen offset:%d sc1' % (vr(ACC + 16 * p + 4 * q, 4), vST, sr(SWS, 4), 1024 * q))
        a.e('s_add_u32 s3, s3, 4096')
    a.e('v_cmp_le_u32 vcc, 32, v0')
    a.e('s_lshl_b32 s3, s%d, 11' % sC)
    a.e('s_add_u32 s3, s3, %d' % KVT_OFF)
    for p in range(1, 8):
        a.e('s_waitcnt vmcnt(%d)' % (28 - 4 * p))
        for i in range(8):
            a.e('v_pk_add_f32 %s, %s, %s' % (vr(ACC + 2 * i, 2), vr(ACC + 2 * i, 2), vr(ACC + 16 * p + 2 * i, 2)))
    for k in range(12, 16):
        a.e('v_cndmask_b32 v%d, v%d, 0, vcc' % (ACC + k, ACC + k))
    for i in range(8):
        a.e('v_cvt_pk_bf16_f32 v%d, v%d, v%d' % (PK + i, ACC + 2 * i, ACC + 2 * i + 1))
    a.e('buffer_store_dwordx4 %s, v%d, %s, s3 offen' % (vr(PK, 4), vST, sr(SWS, 4)))
    a.e('buffer_store_dwordx4 %s, v%d, %s, s3 offen offset:1024' % (vr(PK + 4, 4), vST, sr(SWS, 4)))
    a.lab('K1A_DONE')
    stamp(a, 9, vSTAMP)
    stamp(a, 11, vSTAMP, real=True)
    stamp_store(a, vSTAMP, SWS, sW8, 8, STAMP_OFF, 8)
    a.e('s_endpgm')

    a.lab('K1_TYPEB')
    a.e('v_mul_u32_u24 v8, %d, v10' % WOFF_B[1])
    a.e('v_mul_u32_u24 v9, 160, v13')
    a.e('v_add3_u32 v8, v8, v9, v14')
    a.e('v_add_u32 v%d, %d, v8' % (vGU, XREG))
    a.e('s_mul_i32 s%d, s%d, 160' % (sT, sC))
    a.e('s_add_u32 s%d, s%d, 1024' % (sT, sT))

    def slotB(j, q_sgpr):
        a.e('s_lshl_b32 s3, s%d, 6' % q_sgpr)
        a.e('v_add_u32 v8, s3, v0')
        a.e('v_mul_u32_u24 v9, 6554, v8')
        a.e('v_lshrrev_b32 v9, 16, v9')
        a.e('v_mul_u32_u24 v10, 10, v9')
        a.e('v_sub_u32 v10, v8, v10')
        a.e('v_mul_u32_u24 v9, 3584, v9')
        a.e('v_lshl_add_u32 v9, v10, 4, v9')
        a.e('v_add_u32 v%d, s%d, v9' % (vWO[j], sT))
        a.e('s_mov_b32 s%d, 0' % SOFF[j])
        a.e('s_lshl_b32 s%d, s%d, 10' % (DEST[j], q_sgpr))

    slotB(0, sW)
    a.e('s_add_u32 s%d, s%d, %d' % (DEST[0], DEST[0], XREG + WOFF_B[0]))
    a.e('s_add_u32 s%d, s%d, 4' % (sT2, sW))
    slotB(1, sT2)
    a.e('s_add_u32 s%d, s%d, %d' % (DEST[1], DEST[1], XREG + WOFF_B[0]))
    a.e('s_add_u32 s%d, s%d, 8' % (sT2, sW))
    a.e('s_sub_u32 s%d, s%d, 2' % (sT3, sW))
    a.e('s_cmp_lt_u32 s%d, 2' % sW)
    a.e('s_cselect_b32 s%d, s%d, s%d' % (sT2, sT2, sT3))
    a.e('s_cselect_b64 %s, %s, %s' % (sr(SLX, 2), sr(SW1, 2), sr(SW3, 2)))
    a.e('s_cselect_b64 %s, %s, %s' % (sr(SLX + 2, 2), sr(SW1 + 2, 2), sr(SW3 + 2, 2)))
    a.e('s_mov_b32 s%d, %d' % (sT3, XREG + WOFF_B[1]))
    a.e('s_cselect_b32 s%d, %d, s%d' % (sT3, XREG + WOFF_B[0], sT3))
    slotB(2, sT2)
    a.e('s_add_u32 s%d, s%d, s%d' % (DEST[2], DEST[2], sT3))
    a.e('s_add_u32 s%d, s%d, 2' % (sT2, sW))
    slotB(3, sT2)
    a.e('s_add_u32 s%d, s%d, %d' % (DEST[3], DEST[3], XREG + WOFF_B[1]))
    a.e('s_add_u32 s%d, s%d, 6' % (sT2, sW))
    slotB(4, sT2)
    a.e('s_add_u32 s%d, s%d, %d' % (DEST[4], DEST[4], XREG + WOFF_B[1]))

    PREP = STAGE
    sPU = [[4, 5, 6], [7, 8, 9]]
    sPD = 10

    def prep_issue():
        a.e('s_lshl_b32 s%d, s%d, 12' % (sPD, sW))
        a.e('s_add_u32 s%d, s%d, %d' % (sPD, sPD, PREP))
        a.e('v_lshrrev_b32 v8, 2, v0')
        a.e('v_mul_u32_u24 v8, 896, v8')
        a.e('v_and_b32 v9, 3, v0')
        a.e('v_lshl_add_u32 v8, v9, 4, v8')
        for u in range(2):
            sNT, sK, sISWO = sPU[u]
            a.e('s_lshl_b32 s%d, s%d, 4' % (sT, sRB))
            a.e('s_add_u32 s%d, s%d, s%d' % (sT, sT, sC))
            a.e('s_lshl_b32 s%d, s%d, 2' % (sT, sT))
            a.e('s_add_u32 s%d, s%d, s%d' % (sT, sT, sW))
            a.e('s_lshl_b32 s%d, s%d, 1' % (sT, sT))
            a.e('s_add_u32 s%d, s%d, %d' % (sT, sT, u))
            a.e('s_min_u32 s%d, s%d, 1007' % (sT, sT))
            a.e('s_cmp_ge_u32 s%d, 784' % sT)
            a.e('s_cselect_b32 s%d, 1, 0' % sISWO)
            a.e('s_cselect_b32 s%d, 784, 0' % sT2)
            a.e('s_sub_u32 s%d, s%d, s%d' % (sT, sT, sT2))
            a.e('s_mul_i32 s%d, s%d, 4682' % (sK, sT))
            a.e('s_lshr_b32 s%d, s%d, 16' % (sK, sK))
            a.e('s_mul_i32 s%d, s%d, 14' % (sT2, sK))
            a.e('s_sub_u32 s%d, s%d, s%d' % (sNT, sT, sT2))
            a.e('s_cmp_eq_u32 s%d, 1' % sISWO)
            a.e('s_cselect_b32 s%d, 28, 32' % sT2)
            a.e('s_mul_i32 s%d, s%d, s%d' % (sT2, sT2, sK))
            a.e('s_mul_i32 s%d, s%d, 896' % (sT2, sT2))
            a.e('s_lshl_b32 s%d, s%d, 6' % (sT3, sNT))
            a.e('s_add_u32 s%d, s%d, s%d' % (sT2, sT2, sT3))
            a.e('s_cmp_eq_u32 s%d, 1' % sISWO)
            a.e('s_cselect_b64 %s, %s, %s' % (sr(SLX, 2), sr(SWO, 2), sr(SW2, 2)))
            a.e('s_cselect_b64 %s, %s, %s' % (sr(SLX + 2, 2), sr(SWO + 2, 2), sr(SW2 + 2, 2)))
            a.e('s_add_u32 m0, s%d, %d' % (sPD, 2048 * u))
            a.e('s_add_u32 s%d, s%d, %d' % (sT3, sT2, 16 * 896))
            a.e('buffer_load_dwordx4 v8, %s, s%d offen lds' % (sr(SLX, 4), sT2))
            a.e('s_add_u32 m0, s%d, %d' % (sPD, 2048 * u + 1024))
            a.e('s_nop 0')
            a.e('buffer_load_dwordx4 v8, %s, s%d offen lds' % (sr(SLX, 4), sT3))
        return 4

    def prep_finish():
        a.e('v_lshrrev_b32 v9, 5, v0')
        a.e('v_bfe_u32 v10, v0, 4, 1')
        a.e('v_bfe_u32 v11, v0, 2, 2')
        a.e('v_and_b32 v12, 3, v0')
        a.e('v_lshl_add_u32 v15, v10, 2, v12')
        a.e('v_and_b32 v13, 1, v15')
        a.e('v_lshlrev_b32 v13, 2, v13')
        a.e('v_lshrrev_b32 v14, 1, v15')
        a.e('v_add_u32 v13, v13, v14')
        a.e('v_lshlrev_b32 v13, 3, v13')
        a.e('s_waitcnt vmcnt(0)')
        for u in range(2):
            sNT, sK, sISWO = sPU[u]
            P = ACC + 8 * u
            a.e('s_cmp_eq_u32 s%d, 1' % sISWO)
            a.e('s_cselect_b32 s%d, 2, 3' % sT)
            a.e('s_mov_b32 s%d, 256' % sT2)
            a.e('s_cselect_b32 s%d, 512, s%d' % (sT2, sT2))
            a.e('v_lshlrev_b32 v14, s%d, v9' % sT)
            a.e('v_add_u32 v14, v14, v11')
            a.e('v_lshl_add_u32 v14, v14, 6, v13')
            a.e('v_add_u32 v14, s%d, v14' % sPD)
            a.e('v_add_u32 v15, s%d, v14' % sT2)
            a.e('ds_read_b64_tr_b16 %s, v14 offset:%d' % (vr(P, 2), 2048 * u))
            a.e('ds_read_b64_tr_b16 %s, v15 offset:%d' % (vr(P + 2, 2), 2048 * u))
            a.e('ds_read_b64_tr_b16 %s, v14 offset:%d' % (vr(P + 4, 2), 2048 * u + 1024))
            a.e('ds_read_b64_tr_b16 %s, v15 offset:%d' % (vr(P + 6, 2), 2048 * u + 1024))
            a.e('s_mul_i32 s%d, s%d, 112' % (sT, sNT))
            a.e('s_lshl_b32 s%d, s%d, 1' % (sT2, sK))
            a.e('s_add_u32 s%d, s%d, s%d' % (sT, sT, sT2))
            a.e('s_lshl_b32 s%d, s%d, 10' % (sT, sT))
            a.e('s_add_u32 s%d, s%d, %d' % (sT, sT, W2P_OFF))
            a.e('s_lshl_b32 s%d, s%d, 4' % (sT3, sNT))
            a.e('s_add_u32 s%d, s%d, s%d' % (sT3, sT3, sK))
            a.e('s_lshl_b32 s%d, s%d, 11' % (sT3, sT3))
            a.e('s_add_u32 s%d, s%d, %d' % (sT3, sT3, WOP_OFF))
            a.e('s_cmp_eq_u32 s%d, 1' % sISWO)
            a.e('s_cselect_b32 s%d, s%d, s%d' % (sT, sT3, sT))
            a.e('s_cselect_b32 s%d, 32, 64' % sT2)
            a.e('v_cmp_le_u32 vcc, s%d, v0' % sT2)
            a.e('s_waitcnt lgkmcnt(0)')
            a.e('v_cndmask_b32 v%d, v%d, 0, vcc' % (P + 6, P + 6))
            a.e('v_cndmask_b32 v%d, v%d, 0, vcc' % (P + 7, P + 7))
            a.e('buffer_store_dwordx4 %s, v%d, %s, s%d offen' % (vr(P, 4), vST, sr(SWS, 4), sT))
            a.e('buffer_store_dwordx4 %s, v%d, %s, s%d offen offset:1024' % (vr(P + 4, 4), vST, sr(SWS, 4), sT))

    main_loop('B', [SW1, SW1, SLX, SW3, SW3], [64 * 3584] * 5, prep_issue, None, prep_finish)
    TMP = WF[0]
    a.e('s_lshl_b32 s%d, s%d, 3' % (sT3, sRB))
    a.e('s_lshl_b32 s3, s%d, 1' % sW)
    a.e('s_add_u32 s%d, s%d, s3' % (sT3, sT3))
    a.e('s_mul_i32 s3, s%d, 112' % sT3)
    a.e('s_mul_i32 s%d, s%d, 5' % (sT, sC))
    a.e('s_add_u32 s3, s3, s%d' % sT)
    a.e('s_add_u32 s3, s3, 32')
    a.e('s_lshl_b32 s3, s3, 10')
    a.e('s_add_u32 s3, s3, %d' % H_OFF)
    nst = 0
    for r in range(2):
        for m in range(5):
            o = 36 + 4 * (nst % 4)
            silu_mul(a, accb(m, r), TMP, o, sCON)
            a.e('buffer_store_dwordx4 %s, v%d, %s, s3 offen' % (vr(o, 4), vST, sr(SWS, 4)))
            a.e('s_add_u32 s3, s3, %d' % (1024 if m < 4 else (112 - 4) * 1024))
            nst += 1
    stamp(a, 9, vSTAMP)
    stamp(a, 11, vSTAMP, real=True)
    stamp_store(a, vSTAMP, SWS, sW8, 8, STAMP_OFF, 8)
    a.lab('K1_END')
    a.e('s_endpgm')
    return a.final()


def gen_k2():
    a = Asm()
    a.sp = 36
    SWS, SOUT = 8, 12
    sW, sRB, sCB, sT, sT2 = 16, 17, 18, 19, 20
    sH = [24, 25]
    sW2 = [26, 27]
    sKVT, sPQ, sWO = 28, [29, 30], [31, 32]
    vST = 1
    vG = [2, 4]
    vOMG = [6, 8]
    vSTAMP = 15
    DF = 6
    FB = 16
    HB = FB + DF * 16
    OB = HB + 40
    OP = OB + 16
    TM = OP + 8
    BB = TM + 8
    NV = BB + 64
    accA = lambda rt, nt: 'a[%d:%d]' % (16 * (2 * rt + nt), 16 * (2 * rt + nt) + 15)
    accB = lambda rt, nt: vr(BB + 16 * (2 * rt + nt), 16)

    a.lab('k2_kernel')
    a.e('s_cmp_ge_u32 s2, 224')
    a.e('s_cbranch_scc1 K2_END')
    a.e('s_load_dwordx2 s[4:5], s[0:1], 80')
    a.e('s_load_dwordx2 s[6:7], s[0:1], 64')
    a.e('v_lshrrev_b32 v8, 6, v0')
    a.e('v_and_b32 v0, 63, v0')
    a.e('v_readfirstlane_b32 s%d, v8' % sW)
    a.e('v_lshlrev_b32 v%d, 4, v0' % vST)
    a.e('s_and_b32 s3, s2, 7')
    a.e('s_lshr_b32 s%d, s2, 3' % sT)
    a.e('s_mul_i32 s%d, s%d, 9363' % (sT2, sT))
    a.e('s_lshr_b32 s%d, s%d, 16' % (sT2, sT2))
    a.e('s_mul_i32 s%d, s%d, 7' % (sCB, sT2))
    a.e('s_sub_u32 s%d, s%d, s%d' % (sCB, sT, sCB))
    a.e('s_lshl_b32 s3, s3, 2')
    a.e('s_add_u32 s%d, s3, s%d' % (sRB, sT2))
    a.e('s_mul_i32 s%d, s%d, %d' % (sT, sW, 28 * 1024))
    a.e('s_mul_i32 s%d, s%d, %d' % (sH[0], sRB, 2 * 112 * 1024))
    a.e('s_add_u32 s%d, s%d, s%d' % (sH[0], sH[0], sT))
    a.e('s_add_u32 s%d, s%d, %d' % (sH[0], sH[0], H_OFF))
    a.e('s_add_u32 s%d, s%d, %d' % (sH[1], sH[0], 112 * 1024))
    a.e('s_mul_i32 s%d, s%d, %d' % (sW2[0], sCB, 2 * 112 * 1024))
    a.e('s_add_u32 s%d, s%d, s%d' % (sW2[0], sW2[0], sT))
    a.e('s_add_u32 s%d, s%d, %d' % (sW2[0], sW2[0], W2P_OFF))
    a.e('s_add_u32 s%d, s%d, %d' % (sW2[1], sW2[0], 112 * 1024))
    a.e('s_lshl_b32 s%d, s%d, 13' % (sT, sW))
    a.e('s_add_u32 s%d, s%d, %d' % (sKVT, sT, KVT_OFF))
    a.e('s_lshl_b32 s%d, s%d, 16' % (sPQ[0], sRB))
    a.e('s_add_u32 s%d, s%d, s%d' % (sPQ[0], sPQ[0], sT))
    a.e('s_add_u32 s%d, s%d, %d' % (sPQ[0], sPQ[0], PQ_OFF))
    a.e('s_add_u32 s%d, s%d, %d' % (sPQ[1], sPQ[0], 32768))
    a.e('s_lshl_b32 s%d, s%d, 16' % (sWO[0], sCB))
    a.e('s_add_u32 s%d, s%d, s%d' % (sWO[0], sWO[0], sT))
    a.e('s_add_u32 s%d, s%d, %d' % (sWO[0], sWO[0], WOP_OFF))
    a.e('s_add_u32 s%d, s%d, %d' % (sWO[1], sWO[0], 32768))
    a.e('v_and_b32 v8, 31, v0')
    a.e('v_lshlrev_b32 v8, 2, v8')
    a.e('s_lshl_b32 s%d, s%d, 8' % (sT, sRB))
    a.e('s_add_u32 s%d, s%d, %d' % (sT, sT, G_OFF))
    a.e('s_waitcnt lgkmcnt(0)')
    srd(a, SWS, 4, WS_SRD)
    srd(a, SOUT, 6, SZ_OUT)
    stamp(a, 0, vSTAMP)
    stamp(a, 10, vSTAMP, real=True)
    issued = []

    def ld(dst, sbase, off, tag):
        a.e('buffer_load_dwordx4 %s, v%d, %s, s%d offen offset:%d' % (vr(dst, 4), vST, sr(SWS, 4), sbase, off))
        issued.append(tag)

    a.e('buffer_load_dword v%d, v8, %s, s%d offen' % (vG[0], sr(SWS, 4), sT))
    a.e('buffer_load_dword v%d, v8, %s, s%d offen offset:128' % (vG[1], sr(SWS, 4), sT))
    issued += ['g', 'g']

    items = []
    for f in range(28):
        items.append(('F', f))
        if f % 7 == 6:
            items.append(('H', f // 7))

    def issue(it):
        kind, idx = it
        if kind == 'F':
            b = FB + (idx % DF) * 16
            off = (idx % 4) * 1024
            ld(b, sH[0], off, it)
            ld(b + 4, sH[1], off, it)
            ld(b + 8, sW2[0], off, it)
            ld(b + 12, sW2[1], off, it)
            if idx % 4 == 3:
                for s in sH + sW2:
                    a.e('s_add_u32 s%d, s%d, 4096' % (s, s))
        else:
            b = HB
            off = (idx % 2) * 2048
            for j in range(2):
                ld(b + 4 * j, sKVT, off + 1024 * j, it)
            for rt in range(2):
                for j in range(2):
                    ld(b + 8 + 8 * rt + 4 * j, sPQ[rt], off + 1024 * j, it)
            for nt in range(2):
                for j in range(2):
                    ld(b + 24 + 8 * nt + 4 * j, sWO[nt], off + 1024 * j, it)
            if idx % 2 == 1:
                for s in [sKVT] + sPQ + sWO:
                    a.e('s_add_u32 s%d, s%d, 4096' % (s, s))

    def wait_for(it):
        last = max(i for i, t in enumerate(issued) if t == it)
        a.e('s_waitcnt vmcnt(%d)' % (len(issued) - 1 - last))

    firstB = [True]
    firstA = [True]

    def compute(it):
        kind, idx = it
        wait_for(it)
        if kind == 'F':
            b = FB + (idx % DF) * 16
            for rt in range(2):
                for nt in range(2):
                    a.e('v_mfma_f32_32x32x16_bf16 %s, %s, %s, %s' % (accB(rt, nt), vr(b + 8 + 4 * nt, 4), vr(b + 4 * rt, 4),
                                                                   '0' if firstB[0] else accB(rt, nt)))
            firstB[0] = False
        else:
            b = HB
            for rt in range(2):
                a.e('v_mfma_f32_32x32x16_bf16 %s, %s, %s, 0' % (vr(OB, 16), vr(b, 4), vr(b + 8 + 8 * rt, 4)))
                a.e('v_mfma_f32_32x32x16_bf16 %s, %s, %s, %s' % (vr(OB, 16), vr(b + 4, 4), vr(b + 8 + 8 * rt + 4, 4), vr(OB, 16)))
                a.e('v_add_f32 v%d, %s, v%d' % (TM, EPS, OB + 12))
                a.e('v_mov_b32 v%d, v%d' % (TM + 1, TM))
                a.e('v_permlane32_swap_b32 v%d, v%d' % (TM, TM + 1))
                a.e('v_rcp_f32 v%d, v%d' % (TM, TM + 1))
                a.e('v_mov_b32 v%d, v%d' % (TM + 1, TM))
                for i in range(8):
                    a.e('v_pk_mul_f32 %s, %s, %s' % (vr(OB + 2 * i, 2), vr(OB + 2 * i, 2), vr(TM, 2)))
                for i in range(8):
                    a.e('v_cvt_pk_bf16_f32 v%d, v%d, v%d' % (OP + i, OB + 2 * i, OB + 2 * i + 1))
                for j in range(2):
                    for nt in range(2):
                        a.e('v_mfma_f32_32x32x16_bf16 %s, %s, %s, %s' % (
                            accA(rt, nt), vr(b + 24 + 8 * nt + 4 * j, 4), vr(OP + 4 * j, 4),
                            '0' if (firstA[0] and j == 0) else accA(rt, nt)))
            firstA[0] = False

    nxt = 0

    def can_issue(k, cur):
        kind, idx = items[k]
        if kind == 'F':
            if idx < DF:
                return True
            return items.index(('F', idx - DF)) < cur
        else:
            if idx < 1:
                return True
            return items.index(('H', idx - 1)) < cur

    order = list(range(len(items)))
    pending = list(range(len(items)))
    for cur in range(len(items)):
        progressed = True
        while progressed:
            progressed = False
            for k in pending:
                kind, idx = items[k]
                if can_issue(k, cur) and (k <= cur + DF + 2):
                    issue(items[k])
                    pending.remove(k)
                    progressed = True
                    break
                if kind == 'F':
                    break
        compute(items[cur])
        if cur % 8 == 0:
            stamp(a, 1 + cur // 8, vSTAMP)
    stamp(a, 5, vSTAMP)
    for rt in range(2):
        a.e('v_sub_f32 v%d, 1.0, v%d' % (vOMG[rt], vG[rt]))
        a.e('v_cvt_pk_bf16_f32 v%d, v%d, v%d' % (vOMG[rt], vOMG[rt], vOMG[rt]))
        a.e('v_and_b32 v%d, 0xffff0000, v%d' % (vOMG[rt] + 1, vOMG[rt]))
        a.e('v_mov_b32 v%d, v%d' % (vOMG[rt], vOMG[rt] + 1))
        a.e('v_mov_b32 v%d, v%d' % (vG[rt] + 1, vG[rt]))
    a.e('s_lshl_b32 s%d, s%d, 12' % (sT, sW))
    a.e('v_add_u32 v10, s%d, v%d' % (sT, vST))
    R = BB
    for t in range(4):
        rt = t >> 1
        for r in range(16):
            a.e('v_accvgpr_read_b32 v%d, a%d' % (FB + 16 * t + r, 16 * t + r))
        for i in range(8):
            a.e('v_pk_mul_f32 %s, %s, %s' % (vr(R + 16 * t + 2 * i, 2), vr(R + 16 * t + 2 * i, 2), vr(vOMG[rt], 2)))
        for i in range(8):
            a.e('v_pk_fma_f32 %s, %s, %s, %s' % (vr(R + 16 * t + 2 * i, 2), vr(FB + 16 * t + 2 * i, 2), vr(vG[rt], 2), vr(R + 16 * t + 2 * i, 2)))
        for q in range(4):
            a.e('ds_write_b128 v10, %s offset:%d' % (vr(R + 16 * t + 4 * q, 4), 16384 * t + 1024 * q))
    a.e('s_waitcnt lgkmcnt(0)')
    a.e('s_barrier')
    stamp(a, 6, vSTAMP)
    a.e('s_lshl_b32 s%d, s%d, 14' % (sT, sW))
    a.e('v_add_u32 v10, s%d, v%d' % (sT, vST))
    for p in range(4):
        for q in range(4):
            a.e('ds_read_b128 %s, v10 offset:%d' % (vr(R + 16 * p + 4 * q, 4), 4096 * p + 1024 * q))
    a.e('s_lshr_b32 s%d, s%d, 1' % (sT, sW))
    a.e('s_lshl_b32 s%d, s%d, 1' % (sT2, sRB))
    a.e('s_add_u32 s%d, s%d, s%d' % (sT, sT, sT2))
    a.e('s_mul_i32 s%d, s%d, %d' % (sT, sT, 32 * 896))
    a.e('s_and_b32 s%d, s%d, 1' % (sT2, sW))
    a.e('s_lshl_b32 s%d, s%d, 6' % (sT2, sT2))
    a.e('s_add_u32 s%d, s%d, s%d' % (sT, sT, sT2))
    a.e('s_lshl_b32 s%d, s%d, 7' % (sT2, sCB))
    a.e('s_add_u32 s%d, s%d, s%d' % (sT, sT, sT2))
    a.e('v_and_b32 v9, 31, v0')
    a.e('v_mul_u32_u24 v9, 896, v9')
    a.e('v_lshrrev_b32 v10, 5, v0')
    a.e('v_lshl_add_u32 v9, v10, 5, v9')
    a.e('s_waitcnt lgkmcnt(0)')
    for i in range(8):
        a.e('v_pk_add_f32 %s, %s, %s' % (vr(R + 2 * i, 2), vr(R + 2 * i, 2), vr(R + 16 + 2 * i, 2)))
        a.e('v_pk_add_f32 %s, %s, %s' % (vr(R + 32 + 2 * i, 2), vr(R + 32 + 2 * i, 2), vr(R + 48 + 2 * i, 2)))
    for i in range(8):
        a.e('v_pk_add_f32 %s, %s, %s' % (vr(R + 2 * i, 2), vr(R + 2 * i, 2), vr(R + 32 + 2 * i, 2)))
    for i in range(8):
        a.e('v_cvt_pk_bf16_f32 v%d, v%d, v%d' % (HB + i, R + 2 * i, R + 2 * i + 1))
    a.e('buffer_store_dwordx4 %s, v9, %s, s%d offen' % (vr(HB, 4), sr(SOUT, 4), sT))
    a.e('buffer_store_dwordx4 %s, v9, %s, s%d offen offset:16' % (vr(HB + 4, 4), sr(SOUT, 4), sT))
    stamp(a, 9, vSTAMP)
    stamp(a, 11, vSTAMP, real=True)
    stamp_store(a, vSTAMP, SWS, sW, 4, STAMP_OFF + (1 << 20), 8)
    a.lab('K2_END')
    a.e('s_endpgm')
    return a.final(), NV


def kd(name, accoff, nfv, nsg):
    return '''.amdhsa_kernel %s
  .amdhsa_next_free_vgpr %d
  .amdhsa_next_free_sgpr %d
  .amdhsa_accum_offset %d
  .amdhsa_group_segment_fixed_size 0
  .amdhsa_kernarg_size 88
  .amdhsa_user_sgpr_count 2
  .amdhsa_user_sgpr_kernarg_segment_ptr 1
  .amdhsa_system_sgpr_workgroup_id_x 1
  .amdhsa_float_denorm_mode_32 3
.end_amdhsa_kernel
''' % (name, nfv, nsg, accoff)


def main(out):
    k1 = gen_k1()
    k2, nv2 = gen_k2()
    acc2 = (nv2 + 3) // 4 * 4
    s = '; generated by gen/gen3.py\n'
    s += '; @launch kernel=k1_kernel grid=(256,1,1) block=(512,1,1) lds=%d\n' % LDS_K1
    s += '; @launch kernel=k2_kernel grid=(224,1,1) block=(256,1,1) lds=65536\n'
    s += '.amdgcn_target "amdgcn-amd-amdhsa--gfx950"\n.text\n'
    for nm, body in (('k1_kernel', k1), ('k2_kernel', k2)):
        s += '.globl %s\n.p2align 8\n.type %s,@function\n' % (nm, nm) + body
    s += '.section .rodata,"a"\n.p2align 6\n'
    s += kd('k1_kernel', 256, 256, 102)
    s += '.p2align 6\n' + kd('k2_kernel', acc2, acc2 + 64, 40)
    open(out, 'w').write(s)


if __name__ == '__main__':
    main(sys.argv[1] if len(sys.argv) > 1 else 'cdna_kernels/%s.s' % NAME)
```

```python
import sys, os
sys.path.insert(0, 'gen')
from asmlib import Asm

NAME = 'gated_mix__linear_attn_block__glu_gated_swiglu__prompt'
PQ_OFF = 0
H_OFF = PQ_OFF + 64 * 16 * 2 * 1024
KVP_OFF = H_OFF + 64 * 112 * 1024
KVT_OFF = KVP_OFF + 16 * 8 * 4096
W2P_OFF = KVT_OFF + 16 * 2 * 1024
WOP_OFF = W2P_OFF + 14 * 112 * 1024
G_OFF = WOP_OFF + 14 * 16 * 2 * 1024
WS_BYTES = G_OFF + 2048 * 4
WS_SRD = 32 << 20

SZ_X = 2048 * 448 * 2
SZ_WQKV = 448 * 1344 * 2
SZ_WO = 448 * 448 * 2
SZ_W1 = 448 * 1792 * 2
SZ_W2 = 1792 * 448 * 2
SZ_GW = 448 * 2
SZ_OUT = 2048 * 448 * 2

STAGE = 53376
XREG = 32768
WOFF_A = [0, 4096, 8192, 12288, 16384 + 32]
WOFF_B = [0, 10368]
GWX = 3 * STAGE
LDS_K1 = 163840
LOG2E = '0x3fb8aa3b'
NLOG2E = '0xbfb8aa3b'
EPS = '0x358637bd'

STAMPS = os.environ.get('STAMPS', '0') == '1'
STAMP_OFF = 16 << 20
PREFETCH = os.environ.get('PREFETCH', '0') == '1'
ROT = os.environ.get('ROT', '0') == '1'
EARLY = os.environ.get('EARLY', '0') == '1'


def stamp(a, k, vreg, sp=None, real=False):
    if not STAMPS:
        return
    sp = a.sp
    a.e('%s s[%d:%d]' % ('s_memrealtime' if real else 's_memtime', sp, sp + 1))
    a.e('s_waitcnt lgkmcnt(0)')
    a.e('v_writelane_b32 v%d, s%d, %d' % (vreg, sp, k))


def stamp_store(a, vreg, srdws, wave_sgpr, nwaves, base, tmpv, sp=None):
    if not STAMPS:
        return
    sp = a.sp
    a.e('s_mul_i32 s%d, s2, %d' % (sp, nwaves))
    a.e('s_add_u32 s%d, s%d, s%d' % (sp, sp, wave_sgpr))
    a.e('s_lshl_b32 s%d, s%d, 8' % (sp, sp))
    a.e('s_add_u32 s%d, s%d, %d' % (sp, sp, base))
    a.e('v_lshlrev_b32 v%d, 2, v0' % tmpv)
    a.e('buffer_store_dword v%d, v%d, s[%d:%d], s%d offen' % (vreg, tmpv, srdws, srdws + 3, sp))


def v(i):
    return 'v%d' % i


def vr(i, n):
    return 'v[%d:%d]' % (i, i + n - 1)


def sr(i, n):
    return 's[%d:%d]' % (i, i + n - 1)


def srd(a, d, lo, size):
    a.e('s_mov_b32 s%d, s%d' % (d, lo))
    a.e('s_and_b32 s%d, s%d, 0xffff' % (d + 1, lo + 1))
    a.e('s_mov_b32 s%d, 0x%x' % (d + 2, size))
    a.e('s_mov_b32 s%d, 0x00020000' % (d + 3))


def phi16(a, R, T, O, sC):
    for i in range(8):
        a.e('v_pk_mul_f32 %s, %s, %s' % (vr(T + 2 * i, 2), vr(R + 2 * i, 2), sr(sC, 2)))
    for i in range(16):
        a.e('v_exp_f32 v%d, v%d clamp' % (T + i, T + i))
    for i in range(16):
        a.e('v_max_f32 v%d, 0, v%d' % (R + i, R + i))
    for i in range(8):
        a.e('v_pk_add_f32 %s, %s, %s' % (vr(R + 2 * i, 2), vr(R + 2 * i, 2), sr(sC + 2, 2)))
    for i in range(8):
        a.e('v_pk_add_f32 %s, %s, %s' % (vr(R + 2 * i, 2), vr(R + 2 * i, 2), vr(T + 2 * i, 2)))
    for i in range(8):
        a.e('v_cvt_pk_bf16_f32 v%d, v%d, v%d' % (O + i, R + 2 * i, R + 2 * i + 1))


def silu_mul(a, R, T, O, sC):
    for i in range(4):
        a.e('v_pk_mul_f32 %s, %s, %s' % (vr(T + 2 * i, 2), vr(R + 2 * i, 2), sr(sC + 4, 2)))
    for i in range(8):
        a.e('v_exp_f32 v%d, v%d' % (T + i, T + i))
    for i in range(4):
        a.e('v_pk_mul_f32 %s, %s, %s' % (vr(R + 2 * i, 2), vr(R + 2 * i, 2), vr(R + 8 + 2 * i, 2)))
    for i in range(4):
        a.e('v_pk_add_f32 %s, %s, %s' % (vr(T + 2 * i, 2), vr(T + 2 * i, 2), sr(sC + 6, 2)))
    for i in range(8):
        a.e('v_rcp_f32 v%d, v%d' % (T + i, T + i))
    for i in range(4):
        a.e('v_pk_mul_f32 %s, %s, %s' % (vr(R + 2 * i, 2), vr(R + 2 * i, 2), vr(T + 2 * i, 2)))
    for i in range(4):
        a.e('v_cvt_pk_bf16_f32 v%d, v%d, v%d' % (O + i, R + 2 * i, R + 2 * i + 1))


def consts(a, sC):
    for k, val in enumerate([LOG2E, LOG2E, EPS, EPS, NLOG2E, NLOG2E, '0x3f800000', '0x3f800000']):
        a.e('s_mov_b32 s%d, %s' % (sC + k, val))


def gen_k1():
    a = Asm()
    a.sp = 100
    SX, SWQKV, SW1, SW3, SWS, SW2, SWO, SGW, SDBG = 24, 28, 32, 36, 40, 44, 48, 52, 56
    SLX = 60
    SOFF = [64, 65, 66, 67, 68]
    DEST = [69, 70, 71, 72, 73]
    sW, sRB, sC, sCB, sXD, sT, sT2, sT3 = 74, 75, 76, 77, 78, 79, 80, 81
    sCON = 84
    sEX = 92
    sW8 = 82
    sCH, sXK, sD1, sD2 = 83, 94, 95, 23
    sGWM = 22
    ACC = 96
    WF = [16, 36]
    XF = [56, 64]
    vTID = 1
    vXO = [2, 3]
    vWO = [4, 5, 6, 7, 72]
    vXA = [73, 74, 75, 76]
    vKV, vGU, vQ0, vQ1, vQI, vC128, vST = 77, 78, 79, 80, 81, 82, 83
    vSTAMP = 95
    accb = lambda t, r: ACC + 16 * (2 * t + r)

    a.lab('k1_kernel')
    a.e('s_cmp_ge_u32 s2, 256')
    a.e('s_cbranch_scc1 K1_END')
    a.e('s_load_dwordx4 s[4:7], s[0:1], 0')
    a.e('s_load_dwordx2 s[8:9], s[0:1], 16')
    a.e('s_load_dwordx4 s[12:15], s[0:1], 32')
    a.e('s_load_dwordx4 s[16:19], s[0:1], 48')
    a.e('s_load_dwordx4 s[96:99], s[0:1], 72')
    a.e('v_mov_b32 v%d, v0' % vTID)
    a.e('v_lshrrev_b32 v8, 6, v0')
    a.e('v_and_b32 v0, 63, v0')
    a.e('v_readfirstlane_b32 s%d, v8' % sW8)
    a.e('s_and_b32 s3, s2, 7')
    a.e('s_lshr_b32 s%d, s2, 3' % sT)
    a.e('s_and_b32 s%d, s%d, 3' % (sT2, sT))
    a.e('s_lshl_b32 s3, s3, 2')
    a.e('s_add_u32 s%d, s3, s%d' % (sCB, sT2))
    a.e('s_lshr_b32 s%d, s%d, 2' % (sRB, sT))
    a.e('s_lshr_b32 s%d, s%d, 1' % (sC, sCB))
    a.e('s_and_b32 s%d, s%d, 3' % (sW, sW8))
    if ROT:
        a.e('s_and_b32 s3, s%d, 3' % sCB)
        a.e('s_lshl_b32 s3, s3, 1')
        a.e('s_add_u32 s3, s3, s%d' % sRB)
        a.e('s_sub_u32 s%d, s3, 7' % sCH)
        a.e('s_cmp_ge_u32 s3, 7')
        a.e('s_cselect_b32 s%d, s%d, s3' % (sCH, sCH))
    else:
        a.e('s_mov_b32 s%d, 0' % sCH)
    a.e('s_lshl_b32 s%d, s%d, 7' % (sXK, sCH))
    a.e('v_and_b32 v%d, 255, v%d' % (vTID, vTID))
    consts(a, sCON)
    a.e('s_lshl_b32 s%d, s%d, 8' % (sT, sRB))
    a.e('s_lshl_b32 s%d, s%d, 6' % (sT2, sW))
    a.e('s_add_u32 s%d, s%d, s%d' % (sT, sT, sT2))
    a.e('v_lshrrev_b32 v8, 3, v0')
    a.e('v_add_u32 v8, s%d, v8' % sT)
    a.e('v_mul_u32_u24 v8, 896, v8')
    a.e('v_and_b32 v9, 7, v0')
    a.e('v_lshrrev_b32 v10, 4, v0')
    a.e('v_xor_b32 v11, v9, v10')
    a.e('v_lshl_add_u32 v%d, v11, 4, v8' % vXO[0])
    a.e('v_xor_b32 v11, 4, v11')
    a.e('v_lshl_add_u32 v%d, v11, 4, v8' % vXO[1])
    a.e('s_lshl_b32 s%d, s%d, 13' % (sXD, sW))
    a.e('v_and_b32 v8, 31, v0')
    a.e('v_lshrrev_b32 v9, 5, v0')
    a.e('v_bfe_u32 v10, v8, 1, 3')
    a.e('v_lshlrev_b32 v11, 7, v8')
    a.e('v_add_u32 v11, s%d, v11' % sXD)
    for ks in range(4):
        a.e('v_add_u32 v12, %d, v9' % (2 * ks))
        a.e('v_xor_b32 v12, v12, v10')
        a.e('v_lshl_add_u32 v%d, v12, 4, v11' % vXA[ks])
    a.e('v_lshlrev_b32 v%d, 4, v0' % vST)
    a.e('v_bfe_u32 v10, v0, 4, 1')
    a.e('v_bfe_u32 v11, v0, 2, 2')
    a.e('v_and_b32 v12, 3, v0')
    a.e('v_lshl_add_u32 v13, v9, 3, v11')
    a.e('v_and_b32 v14, 1, v12')
    a.e('v_lshlrev_b32 v14, 1, v14')
    a.e('v_lshrrev_b32 v15, 1, v12')
    a.e('v_add_u32 v14, v14, v15')
    a.e('v_lshlrev_b32 v14, 3, v14')
    a.e('s_waitcnt lgkmcnt(0)')
    srd(a, SX, 4, SZ_X)
    srd(a, SWQKV, 6, SZ_WQKV)
    srd(a, SW1, 12, SZ_W1)
    srd(a, SW3, 14, SZ_W1)
    srd(a, SWS, 98, WS_SRD)
    srd(a, SW2, 16, SZ_W2)
    srd(a, SWO, 8, SZ_WO)
    srd(a, SGW, 18, SZ_GW)
    srd(a, SDBG, 96, 256)
    stamp(a, 0, vSTAMP)
    stamp(a, 10, vSTAMP, real=True)
    a.e('s_and_b32 s%d, s%d, 1' % (sT, sCB))
    a.e('s_cmp_eq_u32 s%d, 1' % sT)
    a.e('s_cbranch_scc1 K1_TYPEB')

    def dma_chunk(i, slot_srd, slot_step):
        sb = (i % 3) * STAGE
        for q in range(8):
            a.e('s_add_u32 m0, s%d, %d' % (sXD, sb + q * 1024))
            a.e('s_add_u32 s%d, s%d, %d' % (sT, sXK, q * 7168))
            a.e('buffer_load_dwordx4 v%d, %s, s%d offen lds' % (vXO[q & 1], sr(SX, 4), sT))
        a.e('s_add_u32 s%d, s%d, 1' % (sCH, sCH))
        a.e('s_cmp_eq_u32 s%d, 7' % sCH)
        a.e('s_cselect_b32 s%d, 0, s%d' % (sCH, sCH))
        a.e('s_mov_b32 s%d, %d' % (sD1, 64 * 2688))
        a.e('s_cselect_b32 s%d, 0x%x, s%d' % (sD1, (-6 * 64 * 2688) & 0xffffffff, sD1))
        a.e('s_mov_b32 s%d, %d' % (sD2, 64 * 3584))
        a.e('s_cselect_b32 s%d, 0x%x, s%d' % (sD2, (-6 * 64 * 3584) & 0xffffffff, sD2))
        a.e('s_lshl_b32 s%d, s%d, 7' % (sXK, sCH))
        for j in range(5):
            a.e('s_add_u32 m0, s%d, %d' % (DEST[j], sb))
            a.e('s_nop 0')
            a.e('buffer_load_dwordx4 v%d, %s, s%d offen lds' % (vWO[j], sr(slot_srd[j], 4), SOFF[j]))
            a.e('s_add_u32 s%d, s%d, s%d' % (SOFF[j], SOFF[j], sD1 if slot_step[j] == 64 * 2688 else sD2))

    def main_loop(typ, slot_srd, slot_step, extra_at_b5=None, pre_wait=None, loader_tail=None):
        def reads(n):
            i, ks = divmod(n, 4)
            st = n & 1
            L = []
            L.append('ds_read_b128 %s, v%d' % (vr(XF[st], 4), vXA[ks]))
            L.append('ds_read_b128 %s, v%d offset:4096' % (vr(XF[st] + 4, 4), vXA[ks]))
            for t in range(5):
                for rd in range(2):
                    dst = vr(WF[st] + 4 * t + 2 * rd, 2)
                    if typ == 'A':
                        if t == 0:
                            L.append('ds_read_b64_tr_b16 %s, v%d' % (dst, vQ0 if rd == 0 else vQ1))
                        elif t in (1, 2):
                            L.append('ds_read_b64_tr_b16 %s, v%d offset:%d' % (dst, vKV, 4096 * t + ks * 1024 + rd * 256))
                        else:
                            L.append('ds_read_b64_tr_b16 %s, v%d offset:%d' % (dst, vGU, 32 * (t - 3) + ks * 1024 + rd * 256))
                    else:
                        L.append('ds_read_b64_tr_b16 %s, v%d offset:%d' % (dst, vGU, 32 * t + ks * 2560 + rd * 640))
            return L

        def addr_adv(n):
            i, ks = divmod(n, 4)
            if ks == 0:
                delta = STAGE if (i % 3) != 0 else -2 * STAGE
                for r in vXA + [vGU] + ([vKV] if typ == 'A' else []):
                    a.e('v_add_u32 v%d, %d, v%d' % (r, delta, r) if delta > 0 else
                        'v_subrev_u32 v%d, %d, v%d' % (r, -delta, r))
                if typ == 'A':
                    d2 = (delta - 3 * 1024) & 0xffffffff
                    a.e('s_add_u32 s%d, s%d, 1' % (sCH, sCH))
                    a.e('s_cmp_eq_u32 s%d, 7' % sCH)
                    a.e('s_cselect_b32 s%d, 0, s%d' % (sCH, sCH))
                    a.e('s_mov_b32 s3, 128')
                    a.e('s_cselect_b32 s3, 0x%x, s3' % ((-3456) & 0xffffffff))
                    a.e('v_mov_b32 v8, 0x%x' % d2)
                    a.e('v_mov_b32 v9, s3')
                    a.e('v_cndmask_b32 v8, v8, v9, %s' % sr(sGWM, 2))
                    a.e('v_add_u32 v%d, v8, v%d' % (vQ0, vQ0))
                    a.e('v_add_u32 v%d, v8, v%d' % (vQ1, vQ1))
            elif typ == 'A':
                a.e('v_add_u32 v%d, v%d, v%d' % (vQ0, vQI, vQ0))
                a.e('v_add_u32 v%d, v%d, v%d' % (vQ1, vQI, vQ1))

        def mfma(n, t, r):
            st = n & 1
            acc = vr(accb(t, r), 16)
            wf = vr(WF[st] + 4 * t, 4)
            xf = vr(XF[st] + 4 * r, 4)
            c = acc if n > 0 else '0'
            if typ == 'A' and t in (1, 2):
                a.e('v_mfma_f32_32x32x16_bf16 %s, %s, %s, %s' % (acc, xf, wf, c))
            else:
                a.e('v_mfma_f32_32x32x16_bf16 %s, %s, %s, %s' % (acc, wf, xf, c))

        for j in range(5):
            a.e('s_mul_i32 s3, s%d, %d' % (sCH, slot_step[j]))
            a.e('s_add_u32 s%d, s%d, s3' % (SOFF[j], SOFF[j]))
        if typ == 'A':
            a.e('s_lshl_b32 s3, s%d, 9' % sCH)
            a.e('v_mov_b32 v8, s3')
            a.e('v_cndmask_b32 v8, 0, v8, %s' % sr(sGWM, 2))
            a.e('v_add_u32 v%d, v8, v%d' % (vQ0, vQ0))
            a.e('v_add_u32 v%d, v8, v%d' % (vQ1, vQ1))
        a.e('s_cmp_lt_u32 s%d, 4' % sW8)
        a.e('s_cbranch_scc1 K1%s_COMPUTE' % typ)
        outstanding = []
        dma_chunk(0, slot_srd, slot_step)
        outstanding.append(13)
        stamp(a, 1, vSTAMP)
        if PREFETCH:
            npf = 0
            a.e('s_lshr_b32 s3, s2, 3')
            a.e('s_lshl_b32 s3, s3, 6')
            a.e('v_add_u32 v16, s3, v0')
            a.e('v_mul_u32_u24 v16, 896, v16')
            a.e('s_lshl_b32 s3, s%d, 7' % sW)
            a.e('s_add_u32 s3, s3, 384')
            a.e('buffer_load_dword v17, v16, %s, s3 offen' % sr(SX, 4))
            npf += 1
            a.e('s_and_b32 s%d, s%d, 3' % (sT2, sRB))
            a.e('s_add_u32 s%d, s%d, 2' % (sT2, sT2))
            for j in range(5):
                a.e('s_mul_i32 s3, s%d, %d' % (sT2, slot_step[j]))
                a.e('s_add_u32 s3, s3, s%d' % SOFF[j])
                a.e('buffer_load_dwordx4 %s, v%d, %s, s3 offen' % (vr(20 + 4 * j, 4), vWO[j], sr(slot_srd[j], 4)))
                npf += 1
            outstanding[-1] += 0
            outstanding.append(npf)
        else:
            outstanding.append(0)
        if pre_wait:
            pre_wait(sum(outstanding))
        if not EARLY:
            dma_chunk(1, slot_srd, slot_step)
            outstanding.append(13)
        stamp(a, 2, vSTAMP)
        a.e('s_waitcnt vmcnt(%d) lgkmcnt(0)' % sum(outstanding[1:]))
        outstanding.pop(0)
        stamp(a, 3, vSTAMP)
        a.e('s_barrier')
        if EARLY:
            dma_chunk(1, slot_srd, slot_step)
            outstanding.append(13)
        dma_chunk(2, slot_srd, slot_step)
        outstanding.append(13)
        outstanding = [outstanding[0] + outstanding[1]] + outstanding[2:]
        for i in range(6):
            a.e('s_waitcnt vmcnt(%d)' % sum(outstanding[1:]))
            outstanding.pop(0)
            a.e('s_barrier')
            if i + 3 <= 6:
                dma_chunk(i + 3, slot_srd, slot_step)
                outstanding.append(13)
            elif i == 4 and extra_at_b5:
                outstanding.append(extra_at_b5())
        if loader_tail:
            loader_tail()
        stamp(a, 9, vSTAMP)
        stamp(a, 11, vSTAMP, real=True)
        stamp_store(a, vSTAMP, SWS, sW8, 8, STAMP_OFF, 8)
        a.e('s_endpgm')
        a.lab('K1%s_COMPUTE' % typ)
        a.e('s_barrier')
        stamp(a, 1, vSTAMP)
        for s in reads(0):
            a.e(s)
        for n in range(28):
            i, ks = divmod(n, 4)
            a.c('step %d' % n)
            a.e('s_waitcnt lgkmcnt(0)')
            if ks == 3 and i < 6:
                a.e('s_barrier')
                stamp(a, 2 + i, vSTAMP)
            mfma(n, 0, 0)
            R = []
            if n + 1 < 28:
                addr_adv(n + 1)
                R = reads(n + 1)
            k = 0
            for m in range(1, 10):
                for s in R[k:k + 2]:
                    a.e(s)
                k += 2
                mfma(n, m // 2, m % 2)
        stamp(a, 8, vSTAMP)

    a.e('v_lshl_add_u32 v15, v10, 2, v12')
    a.e('v_and_b32 v8, 6, v15')
    a.e('v_cmp_eq_u32 vcc, 6, v8')
    a.e('v_xor_b32 v8, 1, v15')
    a.e('v_cndmask_b32 v8, v15, v8, vcc')
    a.e('v_lshlrev_b32 v8, 3, v8')
    a.e('v_lshl_add_u32 v8, v13, 6, v8')
    a.e('v_add_u32 v%d, %d, v8' % (vKV, XREG))
    a.e('v_cmp_eq_u32 %s, 7, v15' % sr(sGWM, 2))
    a.e('v_lshlrev_b32 v9, 3, v13')
    a.e('v_add_u32 v9, %d, v9' % GWX)
    a.e('v_cndmask_b32 v%d, v%d, v9, %s' % (vQ0, vKV, sr(sGWM, 2)))
    a.e('v_add_u32 v8, 256, v%d' % vKV)
    a.e('v_add_u32 v9, 32, v9')
    a.e('v_cndmask_b32 v%d, v8, v9, %s' % (vQ1, sr(sGWM, 2)))
    a.e('v_mov_b32 v%d, 128' % vC128)
    a.e('v_mov_b32 v8, 1024')
    a.e('v_cndmask_b32 v%d, v8, v%d, %s' % (vQI, vC128, sr(sGWM, 2)))
    a.e('v_mul_u32_u24 v8, %d, v10' % (WOFF_A[4] - WOFF_A[3]))
    a.e('v_lshl_add_u32 v8, v13, 6, v8')
    a.e('v_add_u32 v8, v14, v8')
    a.e('v_add_u32 v%d, %d, v8' % (vGU, XREG + WOFF_A[3]))
    a.e('v_lshrrev_b32 v8, 2, v0')
    a.e('v_and_b32 v9, 3, v0')
    a.e('v_lshlrev_b32 v10, 4, v9')
    a.e('v_cmp_eq_u32 vcc, 3, v9')
    a.e('v_mov_b32 v11, 40')
    a.e('v_cndmask_b32 v11, v10, v11, vcc')
    a.e('v_mul_u32_u24 v12, 2688, v8')
    a.e('v_add_u32 v12, v12, v11')
    a.e('v_mul_u32_u24 v13, 3584, v8')
    a.e('v_add_u32 v13, v13, v10')
    a.e('s_mul_i32 s%d, s%d, 56' % (sT, sC))
    a.e('v_add_u32 v%d, s%d, v12' % (vWO[0], sT))
    a.e('v_mov_b32 v%d, v%d' % (vWO[1], vWO[0]))
    a.e('v_mov_b32 v%d, v%d' % (vWO[2], vWO[0]))
    a.e('s_lshl_b32 s3, s%d, 6' % sC)
    a.e('v_add_u32 v%d, s3, v13' % vWO[3])
    a.e('v_mov_b32 v%d, v%d' % (vWO[4], vWO[3]))
    a.e('s_mul_i32 s%d, s%d, %d' % (SOFF[0], sW, 16 * 2688))
    a.e('s_add_u32 s%d, s%d, 896' % (SOFF[1], SOFF[0]))
    a.e('s_add_u32 s%d, s%d, 1792' % (SOFF[2], SOFF[0]))
    a.e('s_mul_i32 s%d, s%d, %d' % (SOFF[3], sW, 16 * 3584))
    a.e('s_mov_b32 s%d, s%d' % (SOFF[4], SOFF[3]))
    a.e('s_lshl_b32 s3, s%d, 10' % sW)
    for j in range(5):
        a.e('s_add_u32 s%d, s3, %d' % (DEST[j], XREG + WOFF_A[j]))
    a.e('v_lshlrev_b32 v8, 1, v%d' % vTID)
    a.e('buffer_load_ushort v10, v8, %s, 0 offen' % sr(SGW, 4))
    a.e('buffer_load_ushort v12, v8, %s, 0 offen offset:512' % sr(SGW, 4))

    def pre_wait_A(nout):
        a.e('s_waitcnt vmcnt(%d)' % nout)
        a.e('v_lshl_or_b32 v10, v10, 16, v10')
        a.e('v_mov_b32 v11, v10')
        a.e('v_lshl_or_b32 v12, v12, 16, v12')
        a.e('v_mov_b32 v13, v12')
        a.e('v_lshlrev_b32 v8, 3, v%d' % vTID)
        a.e('v_add_u32 v8, %d, v8' % GWX)
        a.e('ds_write_b64 v8, v[10:11]')
        a.e('v_cmp_gt_u32 vcc, 192, v%d' % vTID)
        a.e('s_and_saveexec_b64 %s, vcc' % sr(sEX, 2))
        a.e('ds_write_b64 v8, v[12:13] offset:2048')
        a.e('s_mov_b64 exec, %s' % sr(sEX, 2))

    main_loop('A', [SWQKV, SWQKV, SWQKV, SW1, SW3], [64 * 2688] * 3 + [64 * 3584] * 2, None, pre_wait_A)
    TMP = WF[0]
    PK = 36
    PV = 44
    a.e('s_lshl_b32 s%d, s%d, 3' % (sT3, sRB))
    a.e('s_lshl_b32 s3, s%d, 1' % sW)
    a.e('s_add_u32 s%d, s%d, s3' % (sT3, sT3))
    a.e('v_and_b32 v8, 31, v0')
    a.e('v_cmp_le_u32 %s, 28, v8' % sr(sGWM, 2))
    a.e('v_mov_b32 v9, 0x3f803f80')
    KVA = 56
    for r in range(2):
        phi16(a, accb(1, r), TMP, PK, sCON)
        for i in range(8):
            a.e('v_cvt_pk_bf16_f32 v%d, v%d, v%d' % (PV + i, accb(2, r) + 2 * i, accb(2, r) + 2 * i + 1))
        for i in range(8):
            a.e('v_cndmask_b32 v%d, v%d, v9, %s' % (PV + i, PV + i, sr(sGWM, 2)))
        a.e('v_mfma_f32_32x32x16_bf16 %s, %s, %s, %s' % (vr(KVA, 16), vr(PK, 4), vr(PV, 4), '0' if r == 0 else vr(KVA, 16)))
        a.e('v_mfma_f32_32x32x16_bf16 %s, %s, %s, %s' % (vr(KVA, 16), vr(PK + 4, 4), vr(PV + 4, 4), vr(KVA, 16)))
    RED = STAGE
    a.e('s_lshl_b32 s3, s%d, 12' % sW)
    a.e('v_add_u32 v8, s3, v%d' % vST)
    a.e('v_add_u32 v8, %d, v8' % RED)
    for q in range(4):
        a.e('ds_write_b128 v8, %s offset:%d' % (vr(KVA + 4 * q, 4), 1024 * q))
    a.e('s_waitcnt lgkmcnt(0)')
    a.e('s_barrier')
    a.e('s_cmp_lg_u32 s%d, 0' % sW)
    a.e('s_cbranch_scc1 K1A_NOKV')
    KR = accb(1, 0)
    a.e('v_add_u32 v8, %d, v%d' % (RED, vST))
    for p in range(1, 4):
        for q in range(4):
            a.e('ds_read_b128 %s, v8 offset:%d' % (vr(KR + 16 * p + 4 * q, 4), 4096 * p + 1024 * q))
    a.e('s_lshl_b32 s3, s%d, 3' % sC)
    a.e('s_add_u32 s3, s3, s%d' % sRB)
    a.e('s_lshl_b32 s3, s3, 12')
    a.e('s_add_u32 s3, s3, %d' % KVP_OFF)
    a.e('s_waitcnt lgkmcnt(0)')
    for i in range(8):
        a.e('v_pk_add_f32 %s, %s, %s' % (vr(KVA + 2 * i, 2), vr(KVA + 2 * i, 2), vr(KR + 16 + 2 * i, 2)))
        a.e('v_pk_add_f32 %s, %s, %s' % (vr(KR + 32 + 2 * i, 2), vr(KR + 32 + 2 * i, 2), vr(KR + 48 + 2 * i, 2)))
    for i in range(8):
        a.e('v_pk_add_f32 %s, %s, %s' % (vr(KVA + 2 * i, 2), vr(KVA + 2 * i, 2), vr(KR + 32 + 2 * i, 2)))
    for q in range(4):
        a.e('buffer_store_dwordx4 %s, v%d, %s, s3 offen offset:%d sc1' % (vr(KVA + 4 * q, 4), vST, sr(SWS, 4), 1024 * q))
    a.lab('K1A_NOKV')
    a.e('v_mov_b32 v10, v%d' % (accb(0, 0) + 12))
    a.e('v_mov_b32 v11, v%d' % (accb(0, 1) + 12))
    a.e('s_lshl_b32 s3, s%d, 4' % sT3)
    a.e('s_add_u32 s3, s3, s%d' % sC)
    a.e('s_lshl_b32 s3, s3, 11')
    a.e('s_add_u32 s%d, s3, 32768' % sT)
    for r in range(2):
        o = PK + 8 * r
        phi16(a, accb(0, r), TMP, o, sCON)
        sb = 's3' if r == 0 else 's%d' % sT
        a.e('buffer_store_dwordx4 %s, v%d, %s, %s offen' % (vr(o, 4), vST, sr(SWS, 4), sb))
        a.e('buffer_store_dwordx4 %s, v%d, %s, %s offen offset:1024' % (vr(o + 4, 4), vST, sr(SWS, 4), sb))
    a.e('s_cmp_lg_u32 s%d, 0' % sW)
    a.e('s_cbranch_scc1 K1A_NOAT')
    a.e('s_waitcnt vmcnt(4)')
    a.e('s_lshl_b32 s3, s%d, 2' % sC)
    a.e('v_mov_b32 v94, 1')
    a.e('v_mov_b32 v8, 0')
    a.e('s_mov_b64 exec, 1')
    a.e('buffer_atomic_add v94, v8, %s, s3 offen sc0' % sr(SDBG, 4))
    a.e('s_mov_b64 exec, -1')
    a.lab('K1A_NOAT')
    a.e('s_cmp_lg_u32 s%d, 0' % sC)
    a.e('s_cbranch_scc1 K1A_NOG')
    a.e('v_cvt_pk_bf16_f32 v12, v10, v11')
    a.e('v_lshlrev_b32 v10, 16, v12')
    a.e('v_and_b32 v11, 0xffff0000, v12')
    a.e('v_pk_mul_f32 v[10:11], v[10:11], %s' % sr(sCON + 4, 2))
    a.e('v_exp_f32 v10, v10')
    a.e('v_exp_f32 v11, v11')
    a.e('v_pk_add_f32 v[10:11], v[10:11], %s' % sr(sCON + 6, 2))
    a.e('v_rcp_f32 v10, v10')
    a.e('v_rcp_f32 v11, v11')
    a.e('v_cvt_pk_bf16_f32 v12, v10, v11')
    a.e('v_lshlrev_b32 v10, 16, v12')
    a.e('v_and_b32 v11, 0xffff0000, v12')
    a.e('v_and_b32 v12, 31, v0')
    a.e('v_lshlrev_b32 v12, 2, v12')
    a.e('s_lshl_b32 s3, s%d, 7' % sT3)
    a.e('s_add_u32 s3, s3, %d' % G_OFF)
    a.e('v_cmp_le_u32 vcc, 32, v0')
    a.e('s_and_saveexec_b64 %s, vcc' % sr(sEX, 2))
    a.e('buffer_store_dword v10, v12, %s, s3 offen' % sr(SWS, 4))
    a.e('buffer_store_dword v11, v12, %s, s3 offen offset:128' % sr(SWS, 4))
    a.e('s_mov_b64 exec, %s' % sr(sEX, 2))
    a.lab('K1A_NOG')
    a.e('s_mul_i32 s3, s%d, 112' % sT3)
    a.e('s_lshl_b32 s%d, s%d, 1' % (sT, sC))
    a.e('s_add_u32 s3, s3, s%d' % sT)
    a.e('s_lshl_b32 s3, s3, 10')
    a.e('s_add_u32 s3, s3, %d' % H_OFF)
    a.e('s_add_u32 s%d, s3, %d' % (sT, 112 * 1024))
    for r in range(2):
        for m in range(2):
            o = PK + 4 * (2 * r + m)
            silu_mul(a, accb(3 + m, r), TMP, o, sCON)
            a.e('buffer_store_dwordx4 %s, v%d, %s, %s offen offset:%d' % (vr(o, 4), vST, sr(SWS, 4), 's3' if r == 0 else 's%d' % sT, 1024 * m))
    a.e('s_cmp_lg_u32 s%d, 0' % sW)
    a.e('s_cbranch_scc1 K1A_DONE')
    a.e('s_waitcnt vmcnt(0)')
    a.e('v_readfirstlane_b32 s3, v94')
    a.e('s_cmp_lg_u32 s3, 7')
    a.e('s_cbranch_scc1 K1A_DONE')
    a.e('s_lshl_b32 s3, s%d, 15' % sC)
    a.e('s_add_u32 s3, s3, %d' % KVP_OFF)
    for p in range(8):
        for q in range(4):
            a.e('buffer_load_dwordx4 %s, v%d, %s, s3 offen offset:%d sc1' % (vr(ACC + 16 * p + 4 * q, 4), vST, sr(SWS, 4), 1024 * q))
        a.e('s_add_u32 s3, s3, 4096')
    a.e('v_cmp_le_u32 vcc, 32, v0')
    a.e('s_lshl_b32 s3, s%d, 11' % sC)
    a.e('s_add_u32 s3, s3, %d' % KVT_OFF)
    for p in range(1, 8):
        a.e('s_waitcnt vmcnt(%d)' % (28 - 4 * p))
        for i in range(8):
            a.e('v_pk_add_f32 %s, %s, %s' % (vr(ACC + 2 * i, 2), vr(ACC + 2 * i, 2), vr(ACC + 16 * p + 2 * i, 2)))
    for k in range(12, 16):
        a.e('v_cndmask_b32 v%d, v%d, 0, vcc' % (ACC + k, ACC + k))
    for i in range(8):
        a.e('v_cvt_pk_bf16_f32 v%d, v%d, v%d' % (PK + i, ACC + 2 * i, ACC + 2 * i + 1))
    a.e('buffer_store_dwordx4 %s, v%d, %s, s3 offen' % (vr(PK, 4), vST, sr(SWS, 4)))
    a.e('buffer_store_dwordx4 %s, v%d, %s, s3 offen offset:1024' % (vr(PK + 4, 4), vST, sr(SWS, 4)))
    a.lab('K1A_DONE')
    stamp(a, 9, vSTAMP)
    stamp(a, 11, vSTAMP, real=True)
    stamp_store(a, vSTAMP, SWS, sW8, 8, STAMP_OFF, 8)
    a.e('s_endpgm')

    a.lab('K1_TYPEB')
    a.e('v_mul_u32_u24 v8, %d, v10' % WOFF_B[1])
    a.e('v_mul_u32_u24 v9, 160, v13')
    a.e('v_add3_u32 v8, v8, v9, v14')
    a.e('v_add_u32 v%d, %d, v8' % (vGU, XREG))
    a.e('s_mul_i32 s%d, s%d, 160' % (sT, sC))
    a.e('s_add_u32 s%d, s%d, 1024' % (sT, sT))

    def slotB(j, q_sgpr):
        a.e('s_lshl_b32 s3, s%d, 6' % q_sgpr)
        a.e('v_add_u32 v8, s3, v0')
        a.e('v_mul_u32_u24 v9, 6554, v8')
        a.e('v_lshrrev_b32 v9, 16, v9')
        a.e('v_mul_u32_u24 v10, 10, v9')
        a.e('v_sub_u32 v10, v8, v10')
        a.e('v_mul_u32_u24 v9, 3584, v9')
        a.e('v_lshl_add_u32 v9, v10, 4, v9')
        a.e('v_add_u32 v%d, s%d, v9' % (vWO[j], sT))
        a.e('s_mov_b32 s%d, 0' % SOFF[j])
        a.e('s_lshl_b32 s%d, s%d, 10' % (DEST[j], q_sgpr))

    slotB(0, sW)
    a.e('s_add_u32 s%d, s%d, %d' % (DEST[0], DEST[0], XREG + WOFF_B[0]))
    a.e('s_add_u32 s%d, s%d, 4' % (sT2, sW))
    slotB(1, sT2)
    a.e('s_add_u32 s%d, s%d, %d' % (DEST[1], DEST[1], XREG + WOFF_B[0]))
    a.e('s_add_u32 s%d, s%d, 8' % (sT2, sW))
    a.e('s_sub_u32 s%d, s%d, 2' % (sT3, sW))
    a.e('s_cmp_lt_u32 s%d, 2' % sW)
    a.e('s_cselect_b32 s%d, s%d, s%d' % (sT2, sT2, sT3))
    a.e('s_cselect_b64 %s, %s, %s' % (sr(SLX, 2), sr(SW1, 2), sr(SW3, 2)))
    a.e('s_cselect_b64 %s, %s, %s' % (sr(SLX + 2, 2), sr(SW1 + 2, 2), sr(SW3 + 2, 2)))
    a.e('s_mov_b32 s%d, %d' % (sT3, XREG + WOFF_B[1]))
    a.e('s_cselect_b32 s%d, %d, s%d' % (sT3, XREG + WOFF_B[0], sT3))
    slotB(2, sT2)
    a.e('s_add_u32 s%d, s%d, s%d' % (DEST[2], DEST[2], sT3))
    a.e('s_add_u32 s%d, s%d, 2' % (sT2, sW))
    slotB(3, sT2)
    a.e('s_add_u32 s%d, s%d, %d' % (DEST[3], DEST[3], XREG + WOFF_B[1]))
    a.e('s_add_u32 s%d, s%d, 6' % (sT2, sW))
    slotB(4, sT2)
    a.e('s_add_u32 s%d, s%d, %d' % (DEST[4], DEST[4], XREG + WOFF_B[1]))

    PREP = STAGE
    sPU = [[4, 5, 6], [7, 8, 9]]
    sPD = 10

    def prep_issue():
        a.e('s_lshl_b32 s%d, s%d, 12' % (sPD, sW))
        a.e('s_add_u32 s%d, s%d, %d' % (sPD, sPD, PREP))
        a.e('v_lshrrev_b32 v8, 2, v0')
        a.e('v_mul_u32_u24 v8, 896, v8')
        a.e('v_and_b32 v9, 3, v0')
        a.e('v_lshl_add_u32 v8, v9, 4, v8')
        for u in range(2):
            sNT, sK, sISWO = sPU[u]
            a.e('s_lshl_b32 s%d, s%d, 4' % (sT, sRB))
            a.e('s_add_u32 s%d, s%d, s%d' % (sT, sT, sC))
            a.e('s_lshl_b32 s%d, s%d, 2' % (sT, sT))
            a.e('s_add_u32 s%d, s%d, s%d' % (sT, sT, sW))
            a.e('s_lshl_b32 s%d, s%d, 1' % (sT, sT))
            a.e('s_add_u32 s%d, s%d, %d' % (sT, sT, u))
            a.e('s_min_u32 s%d, s%d, 1007' % (sT, sT))
            a.e('s_cmp_ge_u32 s%d, 784' % sT)
            a.e('s_cselect_b32 s%d, 1, 0' % sISWO)
            a.e('s_cselect_b32 s%d, 784, 0' % sT2)
            a.e('s_sub_u32 s%d, s%d, s%d' % (sT, sT, sT2))
            a.e('s_mul_i32 s%d, s%d, 4682' % (sK, sT))
            a.e('s_lshr_b32 s%d, s%d, 16' % (sK, sK))
            a.e('s_mul_i32 s%d, s%d, 14' % (sT2, sK))
            a.e('s_sub_u32 s%d, s%d, s%d' % (sNT, sT, sT2))
            a.e('s_cmp_eq_u32 s%d, 1' % sISWO)
            a.e('s_cselect_b32 s%d, 28, 32' % sT2)
            a.e('s_mul_i32 s%d, s%d, s%d' % (sT2, sT2, sK))
            a.e('s_mul_i32 s%d, s%d, 896' % (sT2, sT2))
            a.e('s_lshl_b32 s%d, s%d, 6' % (sT3, sNT))
            a.e('s_add_u32 s%d, s%d, s%d' % (sT2, sT2, sT3))
            a.e('s_cmp_eq_u32 s%d, 1' % sISWO)
            a.e('s_cselect_b64 %s, %s, %s' % (sr(SLX, 2), sr(SWO, 2), sr(SW2, 2)))
            a.e('s_cselect_b64 %s, %s, %s' % (sr(SLX + 2, 2), sr(SWO + 2, 2), sr(SW2 + 2, 2)))
            a.e('s_add_u32 m0, s%d, %d' % (sPD, 2048 * u))
            a.e('s_add_u32 s%d, s%d, %d' % (sT3, sT2, 16 * 896))
            a.e('buffer_load_dwordx4 v8, %s, s%d offen lds' % (sr(SLX, 4), sT2))
            a.e('s_add_u32 m0, s%d, %d' % (sPD, 2048 * u + 1024))
            a.e('s_nop 0')
            a.e('buffer_load_dwordx4 v8, %s, s%d offen lds' % (sr(SLX, 4), sT3))
        return 4

    def prep_finish():
        a.e('v_lshrrev_b32 v9, 5, v0')
        a.e('v_bfe_u32 v10, v0, 4, 1')
        a.e('v_bfe_u32 v11, v0, 2, 2')
        a.e('v_and_b32 v12, 3, v0')
        a.e('v_lshl_add_u32 v15, v10, 2, v12')
        a.e('v_and_b32 v13, 1, v15')
        a.e('v_lshlrev_b32 v13, 2, v13')
        a.e('v_lshrrev_b32 v14, 1, v15')
        a.e('v_add_u32 v13, v13, v14')
        a.e('v_lshlrev_b32 v13, 3, v13')
        a.e('s_waitcnt vmcnt(0)')
        for u in range(2):
            sNT, sK, sISWO = sPU[u]
            P = ACC + 8 * u
            a.e('s_cmp_eq_u32 s%d, 1' % sISWO)
            a.e('s_cselect_b32 s%d, 2, 3' % sT)
            a.e('s_mov_b32 s%d, 256' % sT2)
            a.e('s_cselect_b32 s%d, 512, s%d' % (sT2, sT2))
            a.e('v_lshlrev_b32 v14, s%d, v9' % sT)
            a.e('v_add_u32 v14, v14, v11')
            a.e('v_lshl_add_u32 v14, v14, 6, v13')
            a.e('v_add_u32 v14, s%d, v14' % sPD)
            a.e('v_add_u32 v15, s%d, v14' % sT2)
            a.e('ds_read_b64_tr_b16 %s, v14 offset:%d' % (vr(P, 2), 2048 * u))
            a.e('ds_read_b64_tr_b16 %s, v15 offset:%d' % (vr(P + 2, 2), 2048 * u))
            a.e('ds_read_b64_tr_b16 %s, v14 offset:%d' % (vr(P + 4, 2), 2048 * u + 1024))
            a.e('ds_read_b64_tr_b16 %s, v15 offset:%d' % (vr(P + 6, 2), 2048 * u + 1024))
            a.e('s_mul_i32 s%d, s%d, 112' % (sT, sNT))
            a.e('s_lshl_b32 s%d, s%d, 1' % (sT2, sK))
            a.e('s_add_u32 s%d, s%d, s%d' % (sT, sT, sT2))
            a.e('s_lshl_b32 s%d, s%d, 10' % (sT, sT))
            a.e('s_add_u32 s%d, s%d, %d' % (sT, sT, W2P_OFF))
            a.e('s_lshl_b32 s%d, s%d, 4' % (sT3, sNT))
            a.e('s_add_u32 s%d, s%d, s%d' % (sT3, sT3, sK))
            a.e('s_lshl_b32 s%d, s%d, 11' % (sT3, sT3))
            a.e('s_add_u32 s%d, s%d, %d' % (sT3, sT3, WOP_OFF))
            a.e('s_cmp_eq_u32 s%d, 1' % sISWO)
            a.e('s_cselect_b32 s%d, s%d, s%d' % (sT, sT3, sT))
            a.e('s_cselect_b32 s%d, 32, 64' % sT2)
            a.e('v_cmp_le_u32 vcc, s%d, v0' % sT2)
            a.e('s_waitcnt lgkmcnt(0)')
            a.e('v_cndmask_b32 v%d, v%d, 0, vcc' % (P + 6, P + 6))
            a.e('v_cndmask_b32 v%d, v%d, 0, vcc' % (P + 7, P + 7))
            a.e('buffer_store_dwordx4 %s, v%d, %s, s%d offen' % (vr(P, 4), vST, sr(SWS, 4), sT))
            a.e('buffer_store_dwordx4 %s, v%d, %s, s%d offen offset:1024' % (vr(P + 4, 4), vST, sr(SWS, 4), sT))

    main_loop('B', [SW1, SW1, SLX, SW3, SW3], [64 * 3584] * 5, prep_issue, None, prep_finish)
    TMP = WF[0]
    a.e('s_lshl_b32 s%d, s%d, 3' % (sT3, sRB))
    a.e('s_lshl_b32 s3, s%d, 1' % sW)
    a.e('s_add_u32 s%d, s%d, s3' % (sT3, sT3))
    a.e('s_mul_i32 s3, s%d, 112' % sT3)
    a.e('s_mul_i32 s%d, s%d, 5' % (sT, sC))
    a.e('s_add_u32 s3, s3, s%d' % sT)
    a.e('s_add_u32 s3, s3, 32')
    a.e('s_lshl_b32 s3, s3, 10')
    a.e('s_add_u32 s3, s3, %d' % H_OFF)
    nst = 0
    for r in range(2):
        for m in range(5):
            o = 36 + 4 * (nst % 4)
            silu_mul(a, accb(m, r), TMP, o, sCON)
            a.e('buffer_store_dwordx4 %s, v%d, %s, s3 offen' % (vr(o, 4), vST, sr(SWS, 4)))
            a.e('s_add_u32 s3, s3, %d' % (1024 if m < 4 else (112 - 4) * 1024))
            nst += 1
    stamp(a, 9, vSTAMP)
    stamp(a, 11, vSTAMP, real=True)
    stamp_store(a, vSTAMP, SWS, sW8, 8, STAMP_OFF, 8)
    a.lab('K1_END')
    a.e('s_endpgm')
    return a.final()


def gen_k2():
    a = Asm()
    a.sp = 36
    SWS, SOUT = 8, 12
    sW, sRB, sCB, sT, sT2 = 16, 17, 18, 19, 20
    sH = [24, 25]
    sW2 = [26, 27]
    sKVT, sPQ, sWO = 28, [29, 30], [31, 32]
    vST = 1
    vG = [2, 4]
    vOMG = [6, 8]
    vSTAMP = 15
    DF = int(os.environ.get('DF', '10'))
    FB = 16
    HB = FB + 64
    OB = HB + 40
    OP = OB + 16
    TM = OP + 8
    BB = TM + 8
    NV = BB + 64
    accA = lambda rt, nt: 'a[%d:%d]' % (16 * (2 * rt + nt), 16 * (2 * rt + nt) + 15)
    accB = lambda rt, nt: vr(BB + 16 * (2 * rt + nt), 16)

    a.lab('k2_kernel')
    a.e('s_cmp_ge_u32 s2, 224')
    a.e('s_cbranch_scc1 K2_END')
    a.e('s_load_dwordx2 s[4:5], s[0:1], 80')
    a.e('s_load_dwordx2 s[6:7], s[0:1], 64')
    a.e('v_lshrrev_b32 v8, 6, v0')
    a.e('v_and_b32 v0, 63, v0')
    a.e('v_readfirstlane_b32 s%d, v8' % sW)
    a.e('v_lshlrev_b32 v%d, 4, v0' % vST)
    a.e('s_and_b32 s3, s2, 7')
    a.e('s_lshr_b32 s%d, s2, 3' % sT)
    a.e('s_mul_i32 s%d, s%d, 9363' % (sT2, sT))
    a.e('s_lshr_b32 s%d, s%d, 16' % (sT2, sT2))
    a.e('s_mul_i32 s%d, s%d, 7' % (sCB, sT2))
    a.e('s_sub_u32 s%d, s%d, s%d' % (sCB, sT, sCB))
    a.e('s_lshl_b32 s3, s3, 2')
    a.e('s_add_u32 s%d, s3, s%d' % (sRB, sT2))
    sG, sD = 33, 34
    if ROT:
        a.e('s_lshl_b32 s3, s%d, 1' % sT2)
        a.e('s_add_u32 s3, s3, s%d' % sCB)
        a.e('s_sub_u32 s%d, s3, 7' % sG)
        a.e('s_cmp_ge_u32 s3, 7')
        a.e('s_cselect_b32 s%d, s%d, s3' % (sG, sG))
    else:
        a.e('s_mov_b32 s%d, 0' % sG)
    a.e('s_mul_i32 s%d, s%d, %d' % (sT, sW, 28 * 1024))
    a.e('s_lshl_b32 s3, s%d, 12' % sG)
    a.e('s_add_u32 s%d, s%d, s3' % (sT, sT))
    a.e('s_mul_i32 s%d, s%d, %d' % (sH[0], sRB, 2 * 112 * 1024))
    a.e('s_add_u32 s%d, s%d, s%d' % (sH[0], sH[0], sT))
    a.e('s_add_u32 s%d, s%d, %d' % (sH[0], sH[0], H_OFF))
    a.e('s_add_u32 s%d, s%d, %d' % (sH[1], sH[0], 112 * 1024))
    a.e('s_mul_i32 s%d, s%d, %d' % (sW2[0], sCB, 2 * 112 * 1024))
    a.e('s_add_u32 s%d, s%d, s%d' % (sW2[0], sW2[0], sT))
    a.e('s_add_u32 s%d, s%d, %d' % (sW2[0], sW2[0], W2P_OFF))
    a.e('s_add_u32 s%d, s%d, %d' % (sW2[1], sW2[0], 112 * 1024))
    a.e('s_lshl_b32 s%d, s%d, 13' % (sT, sW))
    a.e('s_add_u32 s%d, s%d, %d' % (sKVT, sT, KVT_OFF))
    a.e('s_lshl_b32 s%d, s%d, 16' % (sPQ[0], sRB))
    a.e('s_add_u32 s%d, s%d, s%d' % (sPQ[0], sPQ[0], sT))
    a.e('s_add_u32 s%d, s%d, %d' % (sPQ[0], sPQ[0], PQ_OFF))
    a.e('s_add_u32 s%d, s%d, %d' % (sPQ[1], sPQ[0], 32768))
    a.e('s_lshl_b32 s%d, s%d, 16' % (sWO[0], sCB))
    a.e('s_add_u32 s%d, s%d, s%d' % (sWO[0], sWO[0], sT))
    a.e('s_add_u32 s%d, s%d, %d' % (sWO[0], sWO[0], WOP_OFF))
    a.e('s_add_u32 s%d, s%d, %d' % (sWO[1], sWO[0], 32768))
    a.e('v_and_b32 v8, 31, v0')
    a.e('v_lshlrev_b32 v8, 2, v8')
    a.e('s_lshl_b32 s%d, s%d, 8' % (sT, sRB))
    a.e('s_add_u32 s%d, s%d, %d' % (sT, sT, G_OFF))
    a.e('s_waitcnt lgkmcnt(0)')
    srd(a, SWS, 4, WS_SRD)
    srd(a, SOUT, 6, SZ_OUT)
    stamp(a, 0, vSTAMP)
    stamp(a, 10, vSTAMP, real=True)
    issued = []

    def ld(dst, sbase, off, tag, agpr=False):
        d = ('a[%d:%d]' % (dst, dst + 3)) if agpr else vr(dst, 4)
        a.e('buffer_load_dwordx4 %s, v%d, %s, s%d offen offset:%d' % (d, vST, sr(SWS, 4), sbase, off))
        issued.append(tag)

    ar = lambda i: 'a[%d:%d]' % (i, i + 3)

    a.e('buffer_load_dword v%d, v8, %s, s%d offen' % (vG[0], sr(SWS, 4), sT))
    a.e('buffer_load_dword v%d, v8, %s, s%d offen offset:128' % (vG[1], sr(SWS, 4), sT))
    issued += ['g', 'g']

    items = []
    for f in range(28):
        items.append(('F', f))
        if f % 7 == 6:
            items.append(('H', f // 7))

    def issue(it):
        kind, idx = it
        if kind == 'F':
            b = 64 + (idx % DF) * 16
            off = (idx % 4) * 1024
            ld(b, sH[0], off, it, True)
            ld(b + 4, sH[1], off, it, True)
            ld(b + 8, sW2[0], off, it, True)
            ld(b + 12, sW2[1], off, it, True)
            if idx % 4 == 3:
                a.e('s_add_u32 s%d, s%d, 1' % (sG, sG))
                a.e('s_cmp_eq_u32 s%d, 7' % sG)
                a.e('s_cselect_b32 s%d, 0, s%d' % (sG, sG))
                a.e('s_mov_b32 s%d, 4096' % sD)
                a.e('s_cselect_b32 s%d, 0x%x, s%d' % (sD, (-6 * 4096) & 0xffffffff, sD))
                for s in sH + sW2:
                    a.e('s_add_u32 s%d, s%d, s%d' % (s, s, sD))
        else:
            b = HB
            off = (idx % 2) * 2048
            for j in range(2):
                ld(b + 4 * j, sKVT, off + 1024 * j, it)
            for rt in range(2):
                for j in range(2):
                    ld(b + 8 + 8 * rt + 4 * j, sPQ[rt], off + 1024 * j, it)
            for nt in range(2):
                for j in range(2):
                    ld(b + 24 + 8 * nt + 4 * j, sWO[nt], off + 1024 * j, it)
            if idx % 2 == 1:
                for s in [sKVT] + sPQ + sWO:
                    a.e('s_add_u32 s%d, s%d, 4096' % (s, s))

    def wait_for(it):
        last = max(i for i, t in enumerate(issued) if t == it)
        a.e('s_waitcnt vmcnt(%d)' % min(63, len(issued) - 1 - last))

    firstB = [True]
    firstA = [True]

    def compute(it):
        kind, idx = it
        wait_for(it)
        if kind == 'F':
            b = 64 + (idx % DF) * 16
            for rt in range(2):
                for nt in range(2):
                    a.e('v_mfma_f32_32x32x16_bf16 %s, %s, %s, %s' % (accB(rt, nt), ar(b + 8 + 4 * nt), ar(b + 4 * rt),
                                                                   '0' if firstB[0] else accB(rt, nt)))
            firstB[0] = False
        else:
            b = HB
            for rt in range(2):
                a.e('v_mfma_f32_32x32x16_bf16 %s, %s, %s, 0' % (vr(OB, 16), vr(b, 4), vr(b + 8 + 8 * rt, 4)))
                a.e('v_mfma_f32_32x32x16_bf16 %s, %s, %s, %s' % (vr(OB, 16), vr(b + 4, 4), vr(b + 8 + 8 * rt + 4, 4), vr(OB, 16)))
                a.e('v_add_f32 v%d, %s, v%d' % (TM, EPS, OB + 12))
                a.e('v_mov_b32 v%d, v%d' % (TM + 1, TM))
                a.e('v_permlane32_swap_b32 v%d, v%d' % (TM, TM + 1))
                a.e('v_rcp_f32 v%d, v%d' % (TM, TM + 1))
                a.e('v_mov_b32 v%d, v%d' % (TM + 1, TM))
                for i in range(8):
                    a.e('v_pk_mul_f32 %s, %s, %s' % (vr(OB + 2 * i, 2), vr(OB + 2 * i, 2), vr(TM, 2)))
                for i in range(8):
                    a.e('v_cvt_pk_bf16_f32 v%d, v%d, v%d' % (OP + i, OB + 2 * i, OB + 2 * i + 1))
                for j in range(2):
                    for nt in range(2):
                        a.e('v_mfma_f32_32x32x16_bf16 %s, %s, %s, %s' % (
                            accA(rt, nt), vr(b + 24 + 8 * nt + 4 * j, 4), vr(OP + 4 * j, 4),
                            '0' if (firstA[0] and j == 0) else accA(rt, nt)))
            firstA[0] = False

    nxt = 0

    def can_issue(k, cur):
        kind, idx = items[k]
        if kind == 'F':
            if idx < DF:
                return True
            return items.index(('F', idx - DF)) < cur
        else:
            if idx < 1:
                return True
            return items.index(('H', idx - 1)) < cur

    order = list(range(len(items)))
    pending = list(range(len(items)))
    for cur in range(len(items)):
        progressed = True
        while progressed:
            progressed = False
            for k in pending:
                kind, idx = items[k]
                if can_issue(k, cur) and (k <= cur + DF + 2):
                    issue(items[k])
                    pending.remove(k)
                    progressed = True
                    break
                if kind == 'F':
                    break
        compute(items[cur])
        if cur % 8 == 0:
            stamp(a, 1 + cur // 8, vSTAMP)
    stamp(a, 5, vSTAMP)
    for rt in range(2):
        a.e('v_sub_f32 v%d, 1.0, v%d' % (vOMG[rt], vG[rt]))
        a.e('v_cvt_pk_bf16_f32 v%d, v%d, v%d' % (vOMG[rt], vOMG[rt], vOMG[rt]))
        a.e('v_and_b32 v%d, 0xffff0000, v%d' % (vOMG[rt] + 1, vOMG[rt]))
        a.e('v_mov_b32 v%d, v%d' % (vOMG[rt], vOMG[rt] + 1))
        a.e('v_mov_b32 v%d, v%d' % (vG[rt] + 1, vG[rt]))
    a.e('s_lshl_b32 s%d, s%d, 12' % (sT, sW))
    a.e('v_add_u32 v10, s%d, v%d' % (sT, vST))
    R = BB
    for t in range(4):
        rt = t >> 1
        for r in range(16):
            a.e('v_accvgpr_read_b32 v%d, a%d' % (FB + 16 * t + r, 16 * t + r))
        for i in range(8):
            a.e('v_pk_mul_f32 %s, %s, %s' % (vr(R + 16 * t + 2 * i, 2), vr(R + 16 * t + 2 * i, 2), vr(vOMG[rt], 2)))
        for i in range(8):
            a.e('v_pk_fma_f32 %s, %s, %s, %s' % (vr(R + 16 * t + 2 * i, 2), vr(FB + 16 * t + 2 * i, 2), vr(vG[rt], 2), vr(R + 16 * t + 2 * i, 2)))
        for q in range(4):
            a.e('ds_write_b128 v10, %s offset:%d' % (vr(R + 16 * t + 4 * q, 4), 16384 * t + 1024 * q))
    a.e('s_waitcnt lgkmcnt(0)')
    a.e('s_barrier')
    stamp(a, 6, vSTAMP)
    a.e('s_lshl_b32 s%d, s%d, 14' % (sT, sW))
    a.e('v_add_u32 v10, s%d, v%d' % (sT, vST))
    for p in range(4):
        for q in range(4):
            a.e('ds_read_b128 %s, v10 offset:%d' % (vr(R + 16 * p + 4 * q, 4), 4096 * p + 1024 * q))
    a.e('s_lshr_b32 s%d, s%d, 1' % (sT, sW))
    a.e('s_lshl_b32 s%d, s%d, 1' % (sT2, sRB))
    a.e('s_add_u32 s%d, s%d, s%d' % (sT, sT, sT2))
    a.e('s_mul_i32 s%d, s%d, %d' % (sT, sT, 32 * 896))
    a.e('s_and_b32 s%d, s%d, 1' % (sT2, sW))
    a.e('s_lshl_b32 s%d, s%d, 6' % (sT2, sT2))
    a.e('s_add_u32 s%d, s%d, s%d' % (sT, sT, sT2))
    a.e('s_lshl_b32 s%d, s%d, 7' % (sT2, sCB))
    a.e('s_add_u32 s%d, s%d, s%d' % (sT, sT, sT2))
    a.e('v_and_b32 v9, 31, v0')
    a.e('v_mul_u32_u24 v9, 896, v9')
    a.e('v_lshrrev_b32 v10, 5, v0')
    a.e('v_lshl_add_u32 v9, v10, 5, v9')
    a.e('s_waitcnt lgkmcnt(0)')
    for i in range(8):
        a.e('v_pk_add_f32 %s, %s, %s' % (vr(R + 2 * i, 2), vr(R + 2 * i, 2), vr(R + 16 + 2 * i, 2)))
        a.e('v_pk_add_f32 %s, %s, %s' % (vr(R + 32 + 2 * i, 2), vr(R + 32 + 2 * i, 2), vr(R + 48 + 2 * i, 2)))
    for i in range(8):
        a.e('v_pk_add_f32 %s, %s, %s' % (vr(R + 2 * i, 2), vr(R + 2 * i, 2), vr(R + 32 + 2 * i, 2)))
    for i in range(8):
        a.e('v_cvt_pk_bf16_f32 v%d, v%d, v%d' % (HB + i, R + 2 * i, R + 2 * i + 1))
    a.e('buffer_store_dwordx4 %s, v9, %s, s%d offen' % (vr(HB, 4), sr(SOUT, 4), sT))
    a.e('buffer_store_dwordx4 %s, v9, %s, s%d offen offset:16' % (vr(HB + 4, 4), sr(SOUT, 4), sT))
    stamp(a, 9, vSTAMP)
    stamp(a, 11, vSTAMP, real=True)
    stamp_store(a, vSTAMP, SWS, sW, 4, STAMP_OFF + (1 << 20), 8)
    a.lab('K2_END')
    a.e('s_endpgm')
    return a.final(), NV


def kd(name, accoff, nfv, nsg):
    return '''.amdhsa_kernel %s
  .amdhsa_next_free_vgpr %d
  .amdhsa_next_free_sgpr %d
  .amdhsa_accum_offset %d
  .amdhsa_group_segment_fixed_size 0
  .amdhsa_kernarg_size 88
  .amdhsa_user_sgpr_count 2
  .amdhsa_user_sgpr_kernarg_segment_ptr 1
  .amdhsa_system_sgpr_workgroup_id_x 1
  .amdhsa_float_denorm_mode_32 3
.end_amdhsa_kernel
''' % (name, nfv, nsg, accoff)


def main(out):
    k1 = gen_k1()
    pol = os.environ.get('STPOL', 'sc1')
    if pol:
        k1 = '\n'.join((ln + ' ' + pol) if ('buffer_store_dwordx4' in ln and 'sc1' not in ln) else ln for ln in k1.split('\n'))
    k2, nv2 = gen_k2()
    acc2 = (nv2 + 3) // 4 * 4
    s = '; generated by gen/gen5.py\n'
    s += '; @launch kernel=k1_kernel grid=(256,1,1) block=(512,1,1) lds=%d\n' % LDS_K1
    s += '; @launch kernel=k2_kernel grid=(224,1,1) block=(256,1,1) lds=65536\n'
    s += '.amdgcn_target "amdgcn-amd-amdhsa--gfx950"\n.text\n'
    for nm, body in (('k1_kernel', k1), ('k2_kernel', k2)):
        s += '.globl %s\n.p2align 8\n.type %s,@function\n' % (nm, nm) + body
    s += '.section .rodata,"a"\n.p2align 6\n'
    s += kd('k1_kernel', 256, 256, 102)
    s += '.p2align 6\n' + kd('k2_kernel', acc2, acc2 + 256, 40)
    open(out, 'w').write(s)


if __name__ == '__main__':
    main(sys.argv[1] if len(sys.argv) > 1 else 'cdna_kernels/%s.s' % NAME)
```

```python
import sys, os
sys.path.insert(0, 'gen')
from asmlib import Asm

NAME = 'gated_mix__linear_attn_block__glu_gated_swiglu__prompt'
PQ_OFF = 0
H_OFF = PQ_OFF + 64 * 16 * 2 * 1024
KVP_OFF = H_OFF + 64 * 112 * 1024
KVT_OFF = KVP_OFF + 16 * 8 * 4096
W2P_OFF = KVT_OFF + 16 * 2 * 1024
WOP_OFF = W2P_OFF + 14 * 112 * 1024
G_OFF = WOP_OFF + 14 * 16 * 2 * 1024
WS_BYTES = G_OFF + 2048 * 4
WS_SRD = 32 << 20

SZ_X = 2048 * 448 * 2
SZ_WQKV = 448 * 1344 * 2
SZ_WO = 448 * 448 * 2
SZ_W1 = 448 * 1792 * 2
SZ_W2 = 1792 * 448 * 2
SZ_GW = 448 * 2
SZ_OUT = 2048 * 448 * 2

STAGE = 53376
XREG = 32768
WOFF_A = [0, 4096, 8192, 12288, 16384 + 32]
WOFF_B = [0, 10368]
GWX = 3 * STAGE
LDS_K1 = 163840
LOG2E = '0x3fb8aa3b'
NLOG2E = '0xbfb8aa3b'
EPS = '0x358637bd'

STAMPS = os.environ.get('STAMPS', '0') == '1'
STAMP_OFF = 16 << 20
PREFETCH = os.environ.get('PREFETCH', '0') == '1'
ROT = os.environ.get('ROT', '0') == '1'
EARLY = os.environ.get('EARLY', '0') == '1'
PF2 = os.environ.get('PF2', '0') == '1'


def stamp(a, k, vreg, sp=None, real=False):
    if not STAMPS:
        return
    sp = a.sp
    a.e('%s s[%d:%d]' % ('s_memrealtime' if real else 's_memtime', sp, sp + 1))
    a.e('s_waitcnt lgkmcnt(0)')
    a.e('v_writelane_b32 v%d, s%d, %d' % (vreg, sp, k))


def stamp_store(a, vreg, srdws, wave_sgpr, nwaves, base, tmpv, sp=None):
    if not STAMPS:
        return
    sp = a.sp
    a.e('s_mul_i32 s%d, s2, %d' % (sp, nwaves))
    a.e('s_add_u32 s%d, s%d, s%d' % (sp, sp, wave_sgpr))
    a.e('s_lshl_b32 s%d, s%d, 8' % (sp, sp))
    a.e('s_add_u32 s%d, s%d, %d' % (sp, sp, base))
    a.e('v_lshlrev_b32 v%d, 2, v0' % tmpv)
    a.e('buffer_store_dword v%d, v%d, s[%d:%d], s%d offen' % (vreg, tmpv, srdws, srdws + 3, sp))


def v(i):
    return 'v%d' % i


def vr(i, n):
    return 'v[%d:%d]' % (i, i + n - 1)


def sr(i, n):
    return 's[%d:%d]' % (i, i + n - 1)


def srd(a, d, lo, size):
    a.e('s_mov_b32 s%d, s%d' % (d, lo))
    a.e('s_and_b32 s%d, s%d, 0xffff' % (d + 1, lo + 1))
    a.e('s_mov_b32 s%d, 0x%x' % (d + 2, size))
    a.e('s_mov_b32 s%d, 0x00020000' % (d + 3))


def phi16(a, R, T, O, sC):
    for i in range(8):
        a.e('v_pk_mul_f32 %s, %s, %s' % (vr(T + 2 * i, 2), vr(R + 2 * i, 2), sr(sC, 2)))
    for i in range(16):
        a.e('v_exp_f32 v%d, v%d clamp' % (T + i, T + i))
    for i in range(16):
        a.e('v_max_f32 v%d, 0, v%d' % (R + i, R + i))
    for i in range(8):
        a.e('v_pk_add_f32 %s, %s, %s' % (vr(R + 2 * i, 2), vr(R + 2 * i, 2), sr(sC + 2, 2)))
    for i in range(8):
        a.e('v_pk_add_f32 %s, %s, %s' % (vr(R + 2 * i, 2), vr(R + 2 * i, 2), vr(T + 2 * i, 2)))
    for i in range(8):
        a.e('v_cvt_pk_bf16_f32 v%d, v%d, v%d' % (O + i, R + 2 * i, R + 2 * i + 1))


def silu_mul(a, R, T, O, sC):
    for i in range(4):
        a.e('v_pk_mul_f32 %s, %s, %s' % (vr(T + 2 * i, 2), vr(R + 2 * i, 2), sr(sC + 4, 2)))
    for i in range(8):
        a.e('v_exp_f32 v%d, v%d' % (T + i, T + i))
    for i in range(4):
        a.e('v_pk_mul_f32 %s, %s, %s' % (vr(R + 2 * i, 2), vr(R + 2 * i, 2), vr(R + 8 + 2 * i, 2)))
    for i in range(4):
        a.e('v_pk_add_f32 %s, %s, %s' % (vr(T + 2 * i, 2), vr(T + 2 * i, 2), sr(sC + 6, 2)))
    for i in range(8):
        a.e('v_rcp_f32 v%d, v%d' % (T + i, T + i))
    for i in range(4):
        a.e('v_pk_mul_f32 %s, %s, %s' % (vr(R + 2 * i, 2), vr(R + 2 * i, 2), vr(T + 2 * i, 2)))
    for i in range(4):
        a.e('v_cvt_pk_bf16_f32 v%d, v%d, v%d' % (O + i, R + 2 * i, R + 2 * i + 1))


def consts(a, sC):
    for k, val in enumerate([LOG2E, LOG2E, EPS, EPS, NLOG2E, NLOG2E, '0x3f800000', '0x3f800000']):
        a.e('s_mov_b32 s%d, %s' % (sC + k, val))


def gen_k1():
    a = Asm()
    a.sp = 100
    SX, SWQKV, SW1, SW3, SWS, SW2, SWO, SGW, SDBG = 24, 28, 32, 36, 40, 44, 48, 52, 56
    SLX = 60
    SOFF = [64, 65, 66, 67, 68]
    DEST = [69, 70, 71, 72, 73]
    sW, sRB, sC, sCB, sXD, sT, sT2, sT3 = 74, 75, 76, 77, 78, 79, 80, 81
    sCON = 84
    sEX = 92
    sW8 = 82
    sCH, sXK, sD1, sD2 = 83, 94, 95, 23
    sGWM = 22
    ACC = 96
    WF = [16, 36]
    XF = [56, 64]
    vTID = 1
    vXO = [2, 3]
    vWO = [4, 5, 6, 7, 72]
    vXA = [73, 74, 75, 76]
    vKV, vGU, vQ0, vQ1, vQI, vC128, vST = 77, 78, 79, 80, 81, 82, 83
    vSTAMP = 95
    accb = lambda t, r: ACC + 16 * (2 * t + r)

    a.lab('k1_kernel')
    a.e('s_cmp_ge_u32 s2, 256')
    a.e('s_cbranch_scc1 K1_END')
    a.e('s_load_dwordx4 s[4:7], s[0:1], 0')
    a.e('s_load_dwordx2 s[8:9], s[0:1], 16')
    a.e('s_load_dwordx4 s[12:15], s[0:1], 32')
    a.e('s_load_dwordx4 s[16:19], s[0:1], 48')
    a.e('s_load_dwordx4 s[96:99], s[0:1], 72')
    a.e('v_mov_b32 v%d, v0' % vTID)
    a.e('v_lshrrev_b32 v8, 6, v0')
    a.e('v_and_b32 v0, 63, v0')
    a.e('v_readfirstlane_b32 s%d, v8' % sW8)
    a.e('s_and_b32 s3, s2, 7')
    a.e('s_lshr_b32 s%d, s2, 3' % sT)
    a.e('s_and_b32 s%d, s%d, 3' % (sT2, sT))
    a.e('s_lshl_b32 s3, s3, 2')
    a.e('s_add_u32 s%d, s3, s%d' % (sCB, sT2))
    a.e('s_lshr_b32 s%d, s%d, 2' % (sRB, sT))
    a.e('s_lshr_b32 s%d, s%d, 1' % (sC, sCB))
    a.e('s_and_b32 s%d, s%d, 3' % (sW, sW8))
    if ROT:
        a.e('s_and_b32 s3, s%d, 3' % sCB)
        a.e('s_lshl_b32 s3, s3, 1')
        a.e('s_add_u32 s3, s3, s%d' % sRB)
        a.e('s_sub_u32 s%d, s3, 7' % sCH)
        a.e('s_cmp_ge_u32 s3, 7')
        a.e('s_cselect_b32 s%d, s%d, s3' % (sCH, sCH))
    else:
        a.e('s_mov_b32 s%d, 0' % sCH)
    a.e('s_lshl_b32 s%d, s%d, 7' % (sXK, sCH))
    a.e('v_and_b32 v%d, 255, v%d' % (vTID, vTID))
    consts(a, sCON)
    a.e('s_lshl_b32 s%d, s%d, 8' % (sT, sRB))
    a.e('s_lshl_b32 s%d, s%d, 6' % (sT2, sW))
    a.e('s_add_u32 s%d, s%d, s%d' % (sT, sT, sT2))
    a.e('v_lshrrev_b32 v8, 3, v0')
    a.e('v_add_u32 v8, s%d, v8' % sT)
    a.e('v_mul_u32_u24 v8, 896, v8')
    a.e('v_and_b32 v9, 7, v0')
    a.e('v_lshrrev_b32 v10, 4, v0')
    a.e('v_xor_b32 v11, v9, v10')
    a.e('v_lshl_add_u32 v%d, v11, 4, v8' % vXO[0])
    a.e('v_xor_b32 v11, 4, v11')
    a.e('v_lshl_add_u32 v%d, v11, 4, v8' % vXO[1])
    a.e('s_lshl_b32 s%d, s%d, 13' % (sXD, sW))
    a.e('v_and_b32 v8, 31, v0')
    a.e('v_lshrrev_b32 v9, 5, v0')
    a.e('v_bfe_u32 v10, v8, 1, 3')
    a.e('v_lshlrev_b32 v11, 7, v8')
    a.e('v_add_u32 v11, s%d, v11' % sXD)
    for ks in range(4):
        a.e('v_add_u32 v12, %d, v9' % (2 * ks))
        a.e('v_xor_b32 v12, v12, v10')
        a.e('v_lshl_add_u32 v%d, v12, 4, v11' % vXA[ks])
    a.e('v_lshlrev_b32 v%d, 4, v0' % vST)
    a.e('v_bfe_u32 v10, v0, 4, 1')
    a.e('v_bfe_u32 v11, v0, 2, 2')
    a.e('v_and_b32 v12, 3, v0')
    a.e('v_lshl_add_u32 v13, v9, 3, v11')
    a.e('v_and_b32 v14, 1, v12')
    a.e('v_lshlrev_b32 v14, 1, v14')
    a.e('v_lshrrev_b32 v15, 1, v12')
    a.e('v_add_u32 v14, v14, v15')
    a.e('v_lshlrev_b32 v14, 3, v14')
    a.e('s_waitcnt lgkmcnt(0)')
    srd(a, SX, 4, SZ_X)
    srd(a, SWQKV, 6, SZ_WQKV)
    srd(a, SW1, 12, SZ_W1)
    srd(a, SW3, 14, SZ_W1)
    srd(a, SWS, 98, WS_SRD)
    srd(a, SW2, 16, SZ_W2)
    srd(a, SWO, 8, SZ_WO)
    srd(a, SGW, 18, SZ_GW)
    srd(a, SDBG, 96, 256)
    stamp(a, 0, vSTAMP)
    stamp(a, 10, vSTAMP, real=True)
    a.e('s_and_b32 s%d, s%d, 1' % (sT, sCB))
    a.e('s_cmp_eq_u32 s%d, 1' % sT)
    a.e('s_cbranch_scc1 K1_TYPEB')

    def dma_chunk(i, slot_srd, slot_step):
        sb = (i % 3) * STAGE
        for q in range(8):
            a.e('s_add_u32 m0, s%d, %d' % (sXD, sb + q * 1024))
            a.e('s_add_u32 s%d, s%d, %d' % (sT, sXK, q * 7168))
            a.e('buffer_load_dwordx4 v%d, %s, s%d offen lds' % (vXO[q & 1], sr(SX, 4), sT))
        a.e('s_add_u32 s%d, s%d, 1' % (sCH, sCH))
        a.e('s_cmp_eq_u32 s%d, 7' % sCH)
        a.e('s_cselect_b32 s%d, 0, s%d' % (sCH, sCH))
        a.e('s_mov_b32 s%d, %d' % (sD1, 64 * 2688))
        a.e('s_cselect_b32 s%d, 0x%x, s%d' % (sD1, (-6 * 64 * 2688) & 0xffffffff, sD1))
        a.e('s_mov_b32 s%d, %d' % (sD2, 64 * 3584))
        a.e('s_cselect_b32 s%d, 0x%x, s%d' % (sD2, (-6 * 64 * 3584) & 0xffffffff, sD2))
        a.e('s_lshl_b32 s%d, s%d, 7' % (sXK, sCH))
        for j in range(5):
            a.e('s_add_u32 m0, s%d, %d' % (DEST[j], sb))
            a.e('s_nop 0')
            a.e('buffer_load_dwordx4 v%d, %s, s%d offen lds' % (vWO[j], sr(slot_srd[j], 4), SOFF[j]))
            a.e('s_add_u32 s%d, s%d, s%d' % (SOFF[j], SOFF[j], sD1 if slot_step[j] == 64 * 2688 else sD2))

    def main_loop(typ, slot_srd, slot_step, extra_at_b5=None, pre_wait=None, loader_tail=None):
        def reads(n):
            i, ks = divmod(n, 4)
            st = n & 1
            L = []
            L.append('ds_read_b128 %s, v%d' % (vr(XF[st], 4), vXA[ks]))
            L.append('ds_read_b128 %s, v%d offset:4096' % (vr(XF[st] + 4, 4), vXA[ks]))
            for t in range(5):
                for rd in range(2):
                    dst = vr(WF[st] + 4 * t + 2 * rd, 2)
                    if typ == 'A':
                        if t == 0:
                            L.append('ds_read_b64_tr_b16 %s, v%d' % (dst, vQ0 if rd == 0 else vQ1))
                        elif t in (1, 2):
                            L.append('ds_read_b64_tr_b16 %s, v%d offset:%d' % (dst, vKV, 4096 * t + ks * 1024 + rd * 256))
                        else:
                            L.append('ds_read_b64_tr_b16 %s, v%d offset:%d' % (dst, vGU, 32 * (t - 3) + ks * 1024 + rd * 256))
                    else:
                        L.append('ds_read_b64_tr_b16 %s, v%d offset:%d' % (dst, vGU, 32 * t + ks * 2560 + rd * 640))
            return L

        def addr_adv(n):
            i, ks = divmod(n, 4)
            if ks == 0:
                delta = STAGE if (i % 3) != 0 else -2 * STAGE
                for r in vXA + [vGU] + ([vKV] if typ == 'A' else []):
                    a.e('v_add_u32 v%d, %d, v%d' % (r, delta, r) if delta > 0 else
                        'v_subrev_u32 v%d, %d, v%d' % (r, -delta, r))
                if typ == 'A':
                    d2 = (delta - 3 * 1024) & 0xffffffff
                    a.e('s_add_u32 s%d, s%d, 1' % (sCH, sCH))
                    a.e('s_cmp_eq_u32 s%d, 7' % sCH)
                    a.e('s_cselect_b32 s%d, 0, s%d' % (sCH, sCH))
                    a.e('s_mov_b32 s3, 128')
                    a.e('s_cselect_b32 s3, 0x%x, s3' % ((-3456) & 0xffffffff))
                    a.e('v_mov_b32 v8, 0x%x' % d2)
                    a.e('v_mov_b32 v9, s3')
                    a.e('v_cndmask_b32 v8, v8, v9, %s' % sr(sGWM, 2))
                    a.e('v_add_u32 v%d, v8, v%d' % (vQ0, vQ0))
                    a.e('v_add_u32 v%d, v8, v%d' % (vQ1, vQ1))
            elif typ == 'A':
                a.e('v_add_u32 v%d, v%d, v%d' % (vQ0, vQI, vQ0))
                a.e('v_add_u32 v%d, v%d, v%d' % (vQ1, vQI, vQ1))

        def mfma(n, t, r):
            st = n & 1
            acc = vr(accb(t, r), 16)
            wf = vr(WF[st] + 4 * t, 4)
            xf = vr(XF[st] + 4 * r, 4)
            c = acc if n > 0 else '0'
            if typ == 'A' and t in (1, 2):
                a.e('v_mfma_f32_32x32x16_bf16 %s, %s, %s, %s' % (acc, xf, wf, c))
            else:
                a.e('v_mfma_f32_32x32x16_bf16 %s, %s, %s, %s' % (acc, wf, xf, c))

        for j in range(5):
            a.e('s_mul_i32 s3, s%d, %d' % (sCH, slot_step[j]))
            a.e('s_add_u32 s%d, s%d, s3' % (SOFF[j], SOFF[j]))
        if typ == 'A':
            a.e('s_lshl_b32 s3, s%d, 9' % sCH)
            a.e('v_mov_b32 v8, s3')
            a.e('v_cndmask_b32 v8, 0, v8, %s' % sr(sGWM, 2))
            a.e('v_add_u32 v%d, v8, v%d' % (vQ0, vQ0))
            a.e('v_add_u32 v%d, v8, v%d' % (vQ1, vQ1))
        a.e('s_cmp_lt_u32 s%d, 4' % sW8)
        a.e('s_cbranch_scc1 K1%s_COMPUTE' % typ)
        outstanding = []
        dma_chunk(0, slot_srd, slot_step)
        outstanding.append(13)
        stamp(a, 1, vSTAMP)
        outstanding.append(0)
        if pre_wait:
            pre_wait(sum(outstanding))
        if not EARLY:
            dma_chunk(1, slot_srd, slot_step)
            outstanding.append(13)
        stamp(a, 2, vSTAMP)
        a.e('s_waitcnt vmcnt(%d) lgkmcnt(0)' % sum(outstanding[1:]))
        outstanding.pop(0)
        stamp(a, 3, vSTAMP)
        a.e('s_barrier')
        if EARLY:
            dma_chunk(1, slot_srd, slot_step)
            outstanding.append(13)
        dma_chunk(2, slot_srd, slot_step)
        outstanding.append(13)
        if PREFETCH:
            npf = 0
            a.e('s_lshr_b32 s3, s2, 3')
            a.e('s_lshl_b32 s3, s3, 6')
            a.e('v_add_u32 v16, s3, v0')
            a.e('v_mul_u32_u24 v16, 896, v16')
            a.e('s_lshl_b32 s3, s%d, 7' % sW)
            a.e('s_add_u32 s3, s3, 384')
            a.e('buffer_load_dword v17, v16, %s, s3 offen' % sr(SX, 4))
            npf += 1
            a.e('s_and_b32 s%d, s%d, 3' % (sT2, sRB))
            for j in range(5):
                a.e('s_mul_i32 s3, s%d, %d' % (sT2, slot_step[j]))
                a.e('s_add_u32 s3, s3, s%d' % SOFF[j])
                a.e('buffer_load_dwordx4 %s, v%d, %s, s3 offen' % (vr(20 + 4 * j, 4), vWO[j], sr(slot_srd[j], 4)))
                npf += 1
            outstanding[-1] += npf
        outstanding = [outstanding[0] + outstanding[1]] + outstanding[2:]
        for i in range(6):
            a.e('s_waitcnt vmcnt(%d)' % sum(outstanding[1:]))
            outstanding.pop(0)
            a.e('s_barrier')
            if i + 3 <= 6:
                dma_chunk(i + 3, slot_srd, slot_step)
                outstanding.append(13)
            elif i == 4 and extra_at_b5:
                outstanding.append(extra_at_b5())
        if loader_tail:
            loader_tail()
        stamp(a, 9, vSTAMP)
        stamp(a, 11, vSTAMP, real=True)
        stamp_store(a, vSTAMP, SWS, sW8, 8, STAMP_OFF, 8)
        a.e('s_endpgm')
        a.lab('K1%s_COMPUTE' % typ)
        if PF2:
            a.e('s_lshr_b32 s3, s2, 3')
            a.e('s_lshl_b32 s3, s3, 2')
            a.e('s_add_u32 s3, s3, s%d' % sW)
            a.e('s_mul_i32 s3, s3, %d' % (16 * 896))
            a.e('v_lshlrev_b32 v16, 7, v0')
            a.e('v_min_u32 v17, %d, v16' % (47 * 128))
            a.e('buffer_load_dword v18, v16, %s, s3 offen' % sr(SX, 4))
            a.e('s_add_u32 s3, s3, 8192')
            a.e('buffer_load_dword v19, v17, %s, s3 offen' % sr(SX, 4))
            a.e('v_min_u32 v16, 55, v0')
            a.e('s_mul_i32 s3, s%d, 56' % sRB)
            a.e('v_add_u32 v16, s3, v16')
            a.e('v_mul_u32_u24 v17, 3584, v16')
            a.e('v_mul_u32_u24 v16, 2688, v16')
            if typ == 'A':
                a.e('s_mul_i32 s%d, s%d, 56' % (sT, sC))
                a.e('s_lshl_b32 s%d, s%d, 6' % (sT2, sC))
                tg = []
                for rho in range(3):
                    tg.append((SWQKV, 16, sT, rho * 896))
                    tg.append((SWQKV, 16, sT, rho * 896 + 52))
                tg.append((SW1, 17, sT2, 0))
                tg.append((SW3, 17, sT2, 0))
            else:
                a.e('s_mul_i32 s%d, s%d, 160' % (sT, sC))
                a.e('s_add_u32 s%d, s%d, 1024' % (sT, sT))
                tg = [(sd, 17, sT, o) for sd in (SW1, SW3) for o in (0, 80, 156)]
            for w in range(4):
                mine = tg[2 * w:2 * w + 2]
                if not mine:
                    continue
                a.e('s_cmp_lg_u32 s%d, %d' % (sW, w))
                a.e('s_cbranch_scc1 K1%s_PF%d' % (typ, w))
                for n_, (sd, vv, ss, off) in enumerate(mine):
                    a.e('buffer_load_dword v%d, v%d, %s, s%d offen offset:%d' % (20 + n_, vv, sr(sd, 4), ss, off))
                a.lab('K1%s_PF%d' % (typ, w))
        a.e('s_barrier')
        stamp(a, 1, vSTAMP)
        for s in reads(0):
            a.e(s)
        for n in range(28):
            i, ks = divmod(n, 4)
            a.c('step %d' % n)
            a.e('s_waitcnt lgkmcnt(0)')
            if ks == 3 and i < 6:
                a.e('s_barrier')
                stamp(a, 2 + i, vSTAMP)
            mfma(n, 0, 0)
            R = []
            if n + 1 < 28:
                addr_adv(n + 1)
                R = reads(n + 1)
            k = 0
            for m in range(1, 10):
                for s in R[k:k + 2]:
                    a.e(s)
                k += 2
                mfma(n, m // 2, m % 2)
        stamp(a, 8, vSTAMP)

    a.e('v_lshl_add_u32 v15, v10, 2, v12')
    a.e('v_and_b32 v8, 6, v15')
    a.e('v_cmp_eq_u32 vcc, 6, v8')
    a.e('v_xor_b32 v8, 1, v15')
    a.e('v_cndmask_b32 v8, v15, v8, vcc')
    a.e('v_lshlrev_b32 v8, 3, v8')
    a.e('v_lshl_add_u32 v8, v13, 6, v8')
    a.e('v_add_u32 v%d, %d, v8' % (vKV, XREG))
    a.e('v_cmp_eq_u32 %s, 7, v15' % sr(sGWM, 2))
    a.e('v_lshlrev_b32 v9, 3, v13')
    a.e('v_add_u32 v9, %d, v9' % GWX)
    a.e('v_cndmask_b32 v%d, v%d, v9, %s' % (vQ0, vKV, sr(sGWM, 2)))
    a.e('v_add_u32 v8, 256, v%d' % vKV)
    a.e('v_add_u32 v9, 32, v9')
    a.e('v_cndmask_b32 v%d, v8, v9, %s' % (vQ1, sr(sGWM, 2)))
    a.e('v_mov_b32 v%d, 128' % vC128)
    a.e('v_mov_b32 v8, 1024')
    a.e('v_cndmask_b32 v%d, v8, v%d, %s' % (vQI, vC128, sr(sGWM, 2)))
    a.e('v_mul_u32_u24 v8, %d, v10' % (WOFF_A[4] - WOFF_A[3]))
    a.e('v_lshl_add_u32 v8, v13, 6, v8')
    a.e('v_add_u32 v8, v14, v8')
    a.e('v_add_u32 v%d, %d, v8' % (vGU, XREG + WOFF_A[3]))
    a.e('v_lshrrev_b32 v8, 2, v0')
    a.e('v_and_b32 v9, 3, v0')
    a.e('v_lshlrev_b32 v10, 4, v9')
    a.e('v_cmp_eq_u32 vcc, 3, v9')
    a.e('v_mov_b32 v11, 40')
    a.e('v_cndmask_b32 v11, v10, v11, vcc')
    a.e('v_mul_u32_u24 v12, 2688, v8')
    a.e('v_add_u32 v12, v12, v11')
    a.e('v_mul_u32_u24 v13, 3584, v8')
    a.e('v_add_u32 v13, v13, v10')
    a.e('s_mul_i32 s%d, s%d, 56' % (sT, sC))
    a.e('v_add_u32 v%d, s%d, v12' % (vWO[0], sT))
    a.e('v_mov_b32 v%d, v%d' % (vWO[1], vWO[0]))
    a.e('v_mov_b32 v%d, v%d' % (vWO[2], vWO[0]))
    a.e('s_lshl_b32 s3, s%d, 6' % sC)
    a.e('v_add_u32 v%d, s3, v13' % vWO[3])
    a.e('v_mov_b32 v%d, v%d' % (vWO[4], vWO[3]))
    a.e('s_mul_i32 s%d, s%d, %d' % (SOFF[0], sW, 16 * 2688))
    a.e('s_add_u32 s%d, s%d, 896' % (SOFF[1], SOFF[0]))
    a.e('s_add_u32 s%d, s%d, 1792' % (SOFF[2], SOFF[0]))
    a.e('s_mul_i32 s%d, s%d, %d' % (SOFF[3], sW, 16 * 3584))
    a.e('s_mov_b32 s%d, s%d' % (SOFF[4], SOFF[3]))
    a.e('s_lshl_b32 s3, s%d, 10' % sW)
    for j in range(5):
        a.e('s_add_u32 s%d, s3, %d' % (DEST[j], XREG + WOFF_A[j]))
    a.e('v_lshlrev_b32 v8, 1, v%d' % vTID)
    a.e('buffer_load_ushort v10, v8, %s, 0 offen' % sr(SGW, 4))
    a.e('buffer_load_ushort v12, v8, %s, 0 offen offset:512' % sr(SGW, 4))

    def pre_wait_A(nout):
        a.e('s_waitcnt vmcnt(%d)' % nout)
        a.e('v_lshl_or_b32 v10, v10, 16, v10')
        a.e('v_mov_b32 v11, v10')
        a.e('v_lshl_or_b32 v12, v12, 16, v12')
        a.e('v_mov_b32 v13, v12')
        a.e('v_lshlrev_b32 v8, 3, v%d' % vTID)
        a.e('v_add_u32 v8, %d, v8' % GWX)
        a.e('ds_write_b64 v8, v[10:11]')
        a.e('v_cmp_gt_u32 vcc, 192, v%d' % vTID)
        a.e('s_and_saveexec_b64 %s, vcc' % sr(sEX, 2))
        a.e('ds_write_b64 v8, v[12:13] offset:2048')
        a.e('s_mov_b64 exec, %s' % sr(sEX, 2))

    def kv_tail():
        RED = STAGE
        a.e('s_barrier')
        a.e('s_cmp_lg_u32 s%d, 0' % sW)
        a.e('s_cbranch_scc1 K1A_DONE')
        KR = ACC
        a.e('v_add_u32 v8, %d, v%d' % (RED, vST))
        for p in range(4):
            for q in range(4):
                a.e('ds_read_b128 %s, v8 offset:%d' % (vr(KR + 16 * p + 4 * q, 4), 4096 * p + 1024 * q))
        a.e('s_lshl_b32 s3, s%d, 3' % sC)
        a.e('s_add_u32 s3, s3, s%d' % sRB)
        a.e('s_lshl_b32 s3, s3, 12')
        a.e('s_add_u32 s3, s3, %d' % KVP_OFF)
        a.e('s_waitcnt lgkmcnt(0)')
        for i in range(8):
            a.e('v_pk_add_f32 %s, %s, %s' % (vr(KR + 2 * i, 2), vr(KR + 2 * i, 2), vr(KR + 16 + 2 * i, 2)))
            a.e('v_pk_add_f32 %s, %s, %s' % (vr(KR + 32 + 2 * i, 2), vr(KR + 32 + 2 * i, 2), vr(KR + 48 + 2 * i, 2)))
        for i in range(8):
            a.e('v_pk_add_f32 %s, %s, %s' % (vr(KR + 2 * i, 2), vr(KR + 2 * i, 2), vr(KR + 32 + 2 * i, 2)))
        for q in range(4):
            a.e('buffer_store_dwordx4 %s, v%d, %s, s3 offen offset:%d sc1' % (vr(KR + 4 * q, 4), vST, sr(SWS, 4), 1024 * q))
        a.e('s_waitcnt vmcnt(0)')
        a.e('s_lshl_b32 s3, s%d, 2' % sC)
        a.e('v_mov_b32 v94, 1')
        a.e('v_mov_b32 v8, 0')
        a.e('s_mov_b64 exec, 1')
        a.e('buffer_atomic_add v94, v8, %s, s3 offen sc0' % sr(SDBG, 4))
        a.e('s_mov_b64 exec, -1')
        a.e('s_waitcnt vmcnt(0)')
        a.e('v_readfirstlane_b32 s3, v94')
        a.e('s_cmp_lg_u32 s3, 7')
        a.e('s_cbranch_scc1 K1A_DONE')
        a.e('s_lshl_b32 s3, s%d, 15' % sC)
        a.e('s_add_u32 s3, s3, %d' % KVP_OFF)
        for p in range(8):
            for q in range(4):
                a.e('buffer_load_dwordx4 %s, v%d, %s, s3 offen offset:%d sc1' % (vr(ACC + 16 * p + 4 * q, 4), vST, sr(SWS, 4), 1024 * q))
            a.e('s_add_u32 s3, s3, 4096')
        a.e('v_cmp_le_u32 vcc, 32, v0')
        a.e('s_lshl_b32 s3, s%d, 11' % sC)
        a.e('s_add_u32 s3, s3, %d' % KVT_OFF)
        for p in range(1, 8):
            a.e('s_waitcnt vmcnt(%d)' % (28 - 4 * p))
            for i in range(8):
                a.e('v_pk_add_f32 %s, %s, %s' % (vr(ACC + 2 * i, 2), vr(ACC + 2 * i, 2), vr(ACC + 16 * p + 2 * i, 2)))
        for k in range(12, 16):
            a.e('v_cndmask_b32 v%d, v%d, 0, vcc' % (ACC + k, ACC + k))
        for i in range(8):
            a.e('v_cvt_pk_bf16_f32 v%d, v%d, v%d' % (36 + i, ACC + 2 * i, ACC + 2 * i + 1))
        a.e('buffer_store_dwordx4 %s, v%d, %s, s3 offen' % (vr(36, 4), vST, sr(SWS, 4)))
        a.e('buffer_store_dwordx4 %s, v%d, %s, s3 offen offset:1024' % (vr(40, 4), vST, sr(SWS, 4)))
        a.lab('K1A_DONE')

    main_loop('A', [SWQKV, SWQKV, SWQKV, SW1, SW3], [64 * 2688] * 3 + [64 * 3584] * 2, None, pre_wait_A, kv_tail)
    TMP = WF[0]
    PK = 36
    PV = 44
    a.e('s_lshl_b32 s%d, s%d, 3' % (sT3, sRB))
    a.e('s_lshl_b32 s3, s%d, 1' % sW)
    a.e('s_add_u32 s%d, s%d, s3' % (sT3, sT3))
    a.e('v_and_b32 v8, 31, v0')
    a.e('v_cmp_le_u32 %s, 28, v8' % sr(sGWM, 2))
    a.e('v_mov_b32 v9, 0x3f803f80')
    KVA = 56
    for r in range(2):
        phi16(a, accb(1, r), TMP, PK, sCON)
        for i in range(8):
            a.e('v_cvt_pk_bf16_f32 v%d, v%d, v%d' % (PV + i, accb(2, r) + 2 * i, accb(2, r) + 2 * i + 1))
        for i in range(8):
            a.e('v_cndmask_b32 v%d, v%d, v9, %s' % (PV + i, PV + i, sr(sGWM, 2)))
        a.e('v_mfma_f32_32x32x16_bf16 %s, %s, %s, %s' % (vr(KVA, 16), vr(PK, 4), vr(PV, 4), '0' if r == 0 else vr(KVA, 16)))
        a.e('v_mfma_f32_32x32x16_bf16 %s, %s, %s, %s' % (vr(KVA, 16), vr(PK + 4, 4), vr(PV + 4, 4), vr(KVA, 16)))
    RED = STAGE
    a.e('s_lshl_b32 s3, s%d, 12' % sW)
    a.e('v_add_u32 v8, s3, v%d' % vST)
    a.e('v_add_u32 v8, %d, v8' % RED)
    for q in range(4):
        a.e('ds_write_b128 v8, %s offset:%d' % (vr(KVA + 4 * q, 4), 1024 * q))
    a.e('s_waitcnt lgkmcnt(0)')
    a.e('s_barrier')
    a.e('v_mov_b32 v10, v%d' % (accb(0, 0) + 12))
    a.e('v_mov_b32 v11, v%d' % (accb(0, 1) + 12))
    a.e('s_lshl_b32 s3, s%d, 4' % sT3)
    a.e('s_add_u32 s3, s3, s%d' % sC)
    a.e('s_lshl_b32 s3, s3, 11')
    a.e('s_add_u32 s%d, s3, 32768' % sT)
    for r in range(2):
        o = PK + 8 * r
        phi16(a, accb(0, r), TMP, o, sCON)
        sb = 's3' if r == 0 else 's%d' % sT
        a.e('buffer_store_dwordx4 %s, v%d, %s, %s offen' % (vr(o, 4), vST, sr(SWS, 4), sb))
        a.e('buffer_store_dwordx4 %s, v%d, %s, %s offen offset:1024' % (vr(o + 4, 4), vST, sr(SWS, 4), sb))
    a.e('s_cmp_lg_u32 s%d, 0' % sC)
    a.e('s_cbranch_scc1 K1A_NOG')
    a.e('v_cvt_pk_bf16_f32 v12, v10, v11')
    a.e('v_lshlrev_b32 v10, 16, v12')
    a.e('v_and_b32 v11, 0xffff0000, v12')
    a.e('v_pk_mul_f32 v[10:11], v[10:11], %s' % sr(sCON + 4, 2))
    a.e('v_exp_f32 v10, v10')
    a.e('v_exp_f32 v11, v11')
    a.e('v_pk_add_f32 v[10:11], v[10:11], %s' % sr(sCON + 6, 2))
    a.e('v_rcp_f32 v10, v10')
    a.e('v_rcp_f32 v11, v11')
    a.e('v_cvt_pk_bf16_f32 v12, v10, v11')
    a.e('v_lshlrev_b32 v10, 16, v12')
    a.e('v_and_b32 v11, 0xffff0000, v12')
    a.e('v_and_b32 v12, 31, v0')
    a.e('v_lshlrev_b32 v12, 2, v12')
    a.e('s_lshl_b32 s3, s%d, 7' % sT3)
    a.e('s_add_u32 s3, s3, %d' % G_OFF)
    a.e('v_cmp_le_u32 vcc, 32, v0')
    a.e('s_and_saveexec_b64 %s, vcc' % sr(sEX, 2))
    a.e('buffer_store_dword v10, v12, %s, s3 offen' % sr(SWS, 4))
    a.e('buffer_store_dword v11, v12, %s, s3 offen offset:128' % sr(SWS, 4))
    a.e('s_mov_b64 exec, %s' % sr(sEX, 2))
    a.lab('K1A_NOG')
    a.e('s_mul_i32 s3, s%d, 112' % sT3)
    a.e('s_lshl_b32 s%d, s%d, 1' % (sT, sC))
    a.e('s_add_u32 s3, s3, s%d' % sT)
    a.e('s_lshl_b32 s3, s3, 10')
    a.e('s_add_u32 s3, s3, %d' % H_OFF)
    a.e('s_add_u32 s%d, s3, %d' % (sT, 112 * 1024))
    for r in range(2):
        for m in range(2):
            o = PK + 4 * (2 * r + m)
            silu_mul(a, accb(3 + m, r), TMP, o, sCON)
            a.e('buffer_store_dwordx4 %s, v%d, %s, %s offen offset:%d' % (vr(o, 4), vST, sr(SWS, 4), 's3' if r == 0 else 's%d' % sT, 1024 * m))
    stamp(a, 9, vSTAMP)
    stamp(a, 11, vSTAMP, real=True)
    stamp_store(a, vSTAMP, SWS, sW8, 8, STAMP_OFF, 8)
    a.e('s_endpgm')

    a.lab('K1_TYPEB')
    a.e('v_mul_u32_u24 v8, %d, v10' % WOFF_B[1])
    a.e('v_mul_u32_u24 v9, 160, v13')
    a.e('v_add3_u32 v8, v8, v9, v14')
    a.e('v_add_u32 v%d, %d, v8' % (vGU, XREG))
    a.e('s_mul_i32 s%d, s%d, 160' % (sT, sC))
    a.e('s_add_u32 s%d, s%d, 1024' % (sT, sT))

    def slotB(j, q_sgpr):
        a.e('s_lshl_b32 s3, s%d, 6' % q_sgpr)
        a.e('v_add_u32 v8, s3, v0')
        a.e('v_mul_u32_u24 v9, 6554, v8')
        a.e('v_lshrrev_b32 v9, 16, v9')
        a.e('v_mul_u32_u24 v10, 10, v9')
        a.e('v_sub_u32 v10, v8, v10')
        a.e('v_mul_u32_u24 v9, 3584, v9')
        a.e('v_lshl_add_u32 v9, v10, 4, v9')
        a.e('v_add_u32 v%d, s%d, v9' % (vWO[j], sT))
        a.e('s_mov_b32 s%d, 0' % SOFF[j])
        a.e('s_lshl_b32 s%d, s%d, 10' % (DEST[j], q_sgpr))

    slotB(0, sW)
    a.e('s_add_u32 s%d, s%d, %d' % (DEST[0], DEST[0], XREG + WOFF_B[0]))
    a.e('s_add_u32 s%d, s%d, 4' % (sT2, sW))
    slotB(1, sT2)
    a.e('s_add_u32 s%d, s%d, %d' % (DEST[1], DEST[1], XREG + WOFF_B[0]))
    a.e('s_add_u32 s%d, s%d, 8' % (sT2, sW))
    a.e('s_sub_u32 s%d, s%d, 2' % (sT3, sW))
    a.e('s_cmp_lt_u32 s%d, 2' % sW)
    a.e('s_cselect_b32 s%d, s%d, s%d' % (sT2, sT2, sT3))
    a.e('s_cselect_b64 %s, %s, %s' % (sr(SLX, 2), sr(SW1, 2), sr(SW3, 2)))
    a.e('s_cselect_b64 %s, %s, %s' % (sr(SLX + 2, 2), sr(SW1 + 2, 2), sr(SW3 + 2, 2)))
    a.e('s_mov_b32 s%d, %d' % (sT3, XREG + WOFF_B[1]))
    a.e('s_cselect_b32 s%d, %d, s%d' % (sT3, XREG + WOFF_B[0], sT3))
    slotB(2, sT2)
    a.e('s_add_u32 s%d, s%d, s%d' % (DEST[2], DEST[2], sT3))
    a.e('s_add_u32 s%d, s%d, 2' % (sT2, sW))
    slotB(3, sT2)
    a.e('s_add_u32 s%d, s%d, %d' % (DEST[3], DEST[3], XREG + WOFF_B[1]))
    a.e('s_add_u32 s%d, s%d, 6' % (sT2, sW))
    slotB(4, sT2)
    a.e('s_add_u32 s%d, s%d, %d' % (DEST[4], DEST[4], XREG + WOFF_B[1]))

    PREP = STAGE
    sPU = [[4, 5, 6], [7, 8, 9]]
    sPD = 10

    def prep_issue():
        a.e('s_lshl_b32 s%d, s%d, 12' % (sPD, sW))
        a.e('s_add_u32 s%d, s%d, %d' % (sPD, sPD, PREP))
        a.e('v_lshrrev_b32 v8, 2, v0')
        a.e('v_mul_u32_u24 v8, 896, v8')
        a.e('v_and_b32 v9, 3, v0')
        a.e('v_lshl_add_u32 v8, v9, 4, v8')
        for u in range(2):
            sNT, sK, sISWO = sPU[u]
            a.e('s_lshl_b32 s%d, s%d, 4' % (sT, sRB))
            a.e('s_add_u32 s%d, s%d, s%d' % (sT, sT, sC))
            a.e('s_lshl_b32 s%d, s%d, 2' % (sT, sT))
            a.e('s_add_u32 s%d, s%d, s%d' % (sT, sT, sW))
            a.e('s_lshl_b32 s%d, s%d, 1' % (sT, sT))
            a.e('s_add_u32 s%d, s%d, %d' % (sT, sT, u))
            a.e('s_min_u32 s%d, s%d, 1007' % (sT, sT))
            a.e('s_cmp_ge_u32 s%d, 784' % sT)
            a.e('s_cselect_b32 s%d, 1, 0' % sISWO)
            a.e('s_cselect_b32 s%d, 784, 0' % sT2)
            a.e('s_sub_u32 s%d, s%d, s%d' % (sT, sT, sT2))
            a.e('s_mul_i32 s%d, s%d, 4682' % (sK, sT))
            a.e('s_lshr_b32 s%d, s%d, 16' % (sK, sK))
            a.e('s_mul_i32 s%d, s%d, 14' % (sT2, sK))
            a.e('s_sub_u32 s%d, s%d, s%d' % (sNT, sT, sT2))
            a.e('s_cmp_eq_u32 s%d, 1' % sISWO)
            a.e('s_cselect_b32 s%d, 28, 32' % sT2)
            a.e('s_mul_i32 s%d, s%d, s%d' % (sT2, sT2, sK))
            a.e('s_mul_i32 s%d, s%d, 896' % (sT2, sT2))
            a.e('s_lshl_b32 s%d, s%d, 6' % (sT3, sNT))
            a.e('s_add_u32 s%d, s%d, s%d' % (sT2, sT2, sT3))
            a.e('s_cmp_eq_u32 s%d, 1' % sISWO)
            a.e('s_cselect_b64 %s, %s, %s' % (sr(SLX, 2), sr(SWO, 2), sr(SW2, 2)))
            a.e('s_cselect_b64 %s, %s, %s' % (sr(SLX + 2, 2), sr(SWO + 2, 2), sr(SW2 + 2, 2)))
            a.e('s_add_u32 m0, s%d, %d' % (sPD, 2048 * u))
            a.e('s_add_u32 s%d, s%d, %d' % (sT3, sT2, 16 * 896))
            a.e('buffer_load_dwordx4 v8, %s, s%d offen lds' % (sr(SLX, 4), sT2))
            a.e('s_add_u32 m0, s%d, %d' % (sPD, 2048 * u + 1024))
            a.e('s_nop 0')
            a.e('buffer_load_dwordx4 v8, %s, s%d offen lds' % (sr(SLX, 4), sT3))
        return 4

    def prep_finish():
        a.e('v_lshrrev_b32 v9, 5, v0')
        a.e('v_bfe_u32 v10, v0, 4, 1')
        a.e('v_bfe_u32 v11, v0, 2, 2')
        a.e('v_and_b32 v12, 3, v0')
        a.e('v_lshl_add_u32 v15, v10, 2, v12')
        a.e('v_and_b32 v13, 1, v15')
        a.e('v_lshlrev_b32 v13, 2, v13')
        a.e('v_lshrrev_b32 v14, 1, v15')
        a.e('v_add_u32 v13, v13, v14')
        a.e('v_lshlrev_b32 v13, 3, v13')
        a.e('s_waitcnt vmcnt(0)')
        for u in range(2):
            sNT, sK, sISWO = sPU[u]
            P = ACC + 8 * u
            a.e('s_cmp_eq_u32 s%d, 1' % sISWO)
            a.e('s_cselect_b32 s%d, 2, 3' % sT)
            a.e('s_mov_b32 s%d, 256' % sT2)
            a.e('s_cselect_b32 s%d, 512, s%d' % (sT2, sT2))
            a.e('v_lshlrev_b32 v14, s%d, v9' % sT)
            a.e('v_add_u32 v14, v14, v11')
            a.e('v_lshl_add_u32 v14, v14, 6, v13')
            a.e('v_add_u32 v14, s%d, v14' % sPD)
            a.e('v_add_u32 v15, s%d, v14' % sT2)
            a.e('ds_read_b64_tr_b16 %s, v14 offset:%d' % (vr(P, 2), 2048 * u))
            a.e('ds_read_b64_tr_b16 %s, v15 offset:%d' % (vr(P + 2, 2), 2048 * u))
            a.e('ds_read_b64_tr_b16 %s, v14 offset:%d' % (vr(P + 4, 2), 2048 * u + 1024))
            a.e('ds_read_b64_tr_b16 %s, v15 offset:%d' % (vr(P + 6, 2), 2048 * u + 1024))
            a.e('s_mul_i32 s%d, s%d, 112' % (sT, sNT))
            a.e('s_lshl_b32 s%d, s%d, 1' % (sT2, sK))
            a.e('s_add_u32 s%d, s%d, s%d' % (sT, sT, sT2))
            a.e('s_lshl_b32 s%d, s%d, 10' % (sT, sT))
            a.e('s_add_u32 s%d, s%d, %d' % (sT, sT, W2P_OFF))
            a.e('s_lshl_b32 s%d, s%d, 4' % (sT3, sNT))
            a.e('s_add_u32 s%d, s%d, s%d' % (sT3, sT3, sK))
            a.e('s_lshl_b32 s%d, s%d, 11' % (sT3, sT3))
            a.e('s_add_u32 s%d, s%d, %d' % (sT3, sT3, WOP_OFF))
            a.e('s_cmp_eq_u32 s%d, 1' % sISWO)
            a.e('s_cselect_b32 s%d, s%d, s%d' % (sT, sT3, sT))
            a.e('s_cselect_b32 s%d, 32, 64' % sT2)
            a.e('v_cmp_le_u32 vcc, s%d, v0' % sT2)
            a.e('s_waitcnt lgkmcnt(0)')
            a.e('v_cndmask_b32 v%d, v%d, 0, vcc' % (P + 6, P + 6))
            a.e('v_cndmask_b32 v%d, v%d, 0, vcc' % (P + 7, P + 7))
            a.e('buffer_store_dwordx4 %s, v%d, %s, s%d offen' % (vr(P, 4), vST, sr(SWS, 4), sT))
            a.e('buffer_store_dwordx4 %s, v%d, %s, s%d offen offset:1024' % (vr(P + 4, 4), vST, sr(SWS, 4), sT))

    main_loop('B', [SW1, SW1, SLX, SW3, SW3], [64 * 3584] * 5, prep_issue, None, prep_finish)
    TMP = WF[0]
    a.e('s_lshl_b32 s%d, s%d, 3' % (sT3, sRB))
    a.e('s_lshl_b32 s3, s%d, 1' % sW)
    a.e('s_add_u32 s%d, s%d, s3' % (sT3, sT3))
    a.e('s_mul_i32 s3, s%d, 112' % sT3)
    a.e('s_mul_i32 s%d, s%d, 5' % (sT, sC))
    a.e('s_add_u32 s3, s3, s%d' % sT)
    a.e('s_add_u32 s3, s3, 32')
    a.e('s_lshl_b32 s3, s3, 10')
    a.e('s_add_u32 s3, s3, %d' % H_OFF)
    nst = 0
    for r in range(2):
        for m in range(5):
            o = 36 + 4 * (nst % 4)
            silu_mul(a, accb(m, r), TMP, o, sCON)
            a.e('buffer_store_dwordx4 %s, v%d, %s, s3 offen' % (vr(o, 4), vST, sr(SWS, 4)))
            a.e('s_add_u32 s3, s3, %d' % (1024 if m < 4 else (112 - 4) * 1024))
            nst += 1
    stamp(a, 9, vSTAMP)
    stamp(a, 11, vSTAMP, real=True)
    stamp_store(a, vSTAMP, SWS, sW8, 8, STAMP_OFF, 8)
    a.lab('K1_END')
    a.e('s_endpgm')
    return a.final()


def gen_k2():
    a = Asm()
    a.sp = 36
    SWS, SOUT = 8, 12
    sW, sRB, sCB, sT, sT2 = 16, 17, 18, 19, 20
    sH = [24, 25]
    sW2 = [26, 27]
    sKVT, sPQ, sWO = 28, [29, 30], [31, 32]
    vST = 1
    vG = [2, 4]
    vOMG = [6, 8]
    vSTAMP = 15
    DF = int(os.environ.get('DF', '10'))
    FB = 16
    HB = FB + 64
    OB = HB + 40
    OP = OB + 16
    TM = OP + 8
    BB = TM + 8
    NV = BB + 64
    accA = lambda rt, nt: vr(FB + 16 * (2 * rt + nt), 16)
    accB = lambda rt, nt: vr(BB + 16 * (2 * rt + nt), 16)

    a.lab('k2_kernel')
    a.e('s_cmp_ge_u32 s2, 224')
    a.e('s_cbranch_scc1 K2_END')
    a.e('s_load_dwordx2 s[4:5], s[0:1], 80')
    a.e('s_load_dwordx2 s[6:7], s[0:1], 64')
    a.e('v_lshrrev_b32 v8, 6, v0')
    a.e('v_and_b32 v0, 63, v0')
    a.e('v_readfirstlane_b32 s%d, v8' % sW)
    a.e('v_lshlrev_b32 v%d, 4, v0' % vST)
    a.e('s_and_b32 s3, s2, 7')
    a.e('s_lshr_b32 s%d, s2, 3' % sT)
    a.e('s_mul_i32 s%d, s%d, 9363' % (sT2, sT))
    a.e('s_lshr_b32 s%d, s%d, 16' % (sT2, sT2))
    a.e('s_mul_i32 s%d, s%d, 7' % (sCB, sT2))
    a.e('s_sub_u32 s%d, s%d, s%d' % (sCB, sT, sCB))
    a.e('s_lshl_b32 s3, s3, 2')
    a.e('s_add_u32 s%d, s3, s%d' % (sRB, sT2))
    sG, sD = 33, 34
    if ROT:
        a.e('s_lshl_b32 s3, s%d, 1' % sT2)
        a.e('s_add_u32 s3, s3, s%d' % sCB)
        a.e('s_sub_u32 s%d, s3, 7' % sG)
        a.e('s_cmp_ge_u32 s3, 7')
        a.e('s_cselect_b32 s%d, s%d, s3' % (sG, sG))
    else:
        a.e('s_mov_b32 s%d, 0' % sG)
    a.e('s_mul_i32 s%d, s%d, %d' % (sT, sW, 28 * 1024))
    a.e('s_lshl_b32 s3, s%d, 12' % sG)
    a.e('s_add_u32 s%d, s%d, s3' % (sT, sT))
    a.e('s_mul_i32 s%d, s%d, %d' % (sH[0], sRB, 2 * 112 * 1024))
    a.e('s_add_u32 s%d, s%d, s%d' % (sH[0], sH[0], sT))
    a.e('s_add_u32 s%d, s%d, %d' % (sH[0], sH[0], H_OFF))
    a.e('s_add_u32 s%d, s%d, %d' % (sH[1], sH[0], 112 * 1024))
    a.e('s_mul_i32 s%d, s%d, %d' % (sW2[0], sCB, 2 * 112 * 1024))
    a.e('s_add_u32 s%d, s%d, s%d' % (sW2[0], sW2[0], sT))
    a.e('s_add_u32 s%d, s%d, %d' % (sW2[0], sW2[0], W2P_OFF))
    a.e('s_add_u32 s%d, s%d, %d' % (sW2[1], sW2[0], 112 * 1024))
    a.e('s_lshl_b32 s%d, s%d, 13' % (sT, sW))
    a.e('s_add_u32 s%d, s%d, %d' % (sKVT, sT, KVT_OFF))
    a.e('s_lshl_b32 s%d, s%d, 16' % (sPQ[0], sRB))
    a.e('s_add_u32 s%d, s%d, s%d' % (sPQ[0], sPQ[0], sT))
    a.e('s_add_u32 s%d, s%d, %d' % (sPQ[0], sPQ[0], PQ_OFF))
    a.e('s_add_u32 s%d, s%d, %d' % (sPQ[1], sPQ[0], 32768))
    a.e('s_lshl_b32 s%d, s%d, 16' % (sWO[0], sCB))
    a.e('s_add_u32 s%d, s%d, s%d' % (sWO[0], sWO[0], sT))
    a.e('s_add_u32 s%d, s%d, %d' % (sWO[0], sWO[0], WOP_OFF))
    a.e('s_add_u32 s%d, s%d, %d' % (sWO[1], sWO[0], 32768))
    a.e('v_and_b32 v8, 31, v0')
    a.e('v_lshlrev_b32 v8, 2, v8')
    a.e('s_lshl_b32 s%d, s%d, 8' % (sT, sRB))
    a.e('s_add_u32 s%d, s%d, %d' % (sT, sT, G_OFF))
    a.e('s_waitcnt lgkmcnt(0)')
    srd(a, SWS, 4, WS_SRD)
    srd(a, SOUT, 6, SZ_OUT)
    stamp(a, 0, vSTAMP)
    stamp(a, 10, vSTAMP, real=True)
    issued = []

    def ld(dst, sbase, off, tag, agpr=False):
        d = ('a[%d:%d]' % (dst, dst + 3)) if agpr else vr(dst, 4)
        a.e('buffer_load_dwordx4 %s, v%d, %s, s%d offen offset:%d' % (d, vST, sr(SWS, 4), sbase, off))
        issued.append(tag)

    ar = lambda i: 'a[%d:%d]' % (i, i + 3)

    a.e('buffer_load_dword v%d, v8, %s, s%d offen' % (vG[0], sr(SWS, 4), sT))
    a.e('buffer_load_dword v%d, v8, %s, s%d offen offset:128' % (vG[1], sr(SWS, 4), sT))
    issued += ['g', 'g']

    items = []
    for f in range(28):
        items.append(('F', f))
        if f % 7 == 6:
            items.append(('H', f // 7))

    def issue(it):
        kind, idx = it
        if kind == 'F':
            b = (idx % DF) * 16
            off = (idx % 4) * 1024
            ld(b, sH[0], off, it, True)
            ld(b + 4, sH[1], off, it, True)
            ld(b + 8, sW2[0], off, it, True)
            ld(b + 12, sW2[1], off, it, True)
            if idx % 4 == 3:
                a.e('s_add_u32 s%d, s%d, 1' % (sG, sG))
                a.e('s_cmp_eq_u32 s%d, 7' % sG)
                a.e('s_cselect_b32 s%d, 0, s%d' % (sG, sG))
                a.e('s_mov_b32 s%d, 4096' % sD)
                a.e('s_cselect_b32 s%d, 0x%x, s%d' % (sD, (-6 * 4096) & 0xffffffff, sD))
                for s in sH + sW2:
                    a.e('s_add_u32 s%d, s%d, s%d' % (s, s, sD))
        else:
            b = HB
            off = (idx % 2) * 2048
            for j in range(2):
                ld(b + 4 * j, sKVT, off + 1024 * j, it)
            for rt in range(2):
                for j in range(2):
                    ld(b + 8 + 8 * rt + 4 * j, sPQ[rt], off + 1024 * j, it)
            for nt in range(2):
                for j in range(2):
                    ld(b + 24 + 8 * nt + 4 * j, sWO[nt], off + 1024 * j, it)
            if idx % 2 == 1:
                for s in [sKVT] + sPQ + sWO:
                    a.e('s_add_u32 s%d, s%d, 4096' % (s, s))

    def wait_for(it):
        last = max(i for i, t in enumerate(issued) if t == it)
        a.e('s_waitcnt vmcnt(%d)' % min(63, len(issued) - 1 - last))

    firstB = [True]
    firstA = [True]

    def compute(it):
        kind, idx = it
        wait_for(it)
        if kind == 'F':
            b = (idx % DF) * 16
            for rt in range(2):
                for nt in range(2):
                    a.e('v_mfma_f32_32x32x16_bf16 %s, %s, %s, %s' % (accB(rt, nt), ar(b + 8 + 4 * nt), ar(b + 4 * rt),
                                                                   '0' if firstB[0] else accB(rt, nt)))
            firstB[0] = False
        else:
            b = HB
            for rt in range(2):
                a.e('v_mfma_f32_32x32x16_bf16 %s, %s, %s, 0' % (vr(OB, 16), vr(b, 4), vr(b + 8 + 8 * rt, 4)))
                a.e('v_mfma_f32_32x32x16_bf16 %s, %s, %s, %s' % (vr(OB, 16), vr(b + 4, 4), vr(b + 8 + 8 * rt + 4, 4), vr(OB, 16)))
                a.e('v_add_f32 v%d, %s, v%d' % (TM, EPS, OB + 12))
                a.e('v_mov_b32 v%d, v%d' % (TM + 1, TM))
                a.e('v_permlane32_swap_b32 v%d, v%d' % (TM, TM + 1))
                a.e('v_rcp_f32 v%d, v%d' % (TM, TM + 1))
                a.e('v_mul_f32 v%d, v%d, v%d' % (TM, TM, vG[rt]))
                a.e('v_mov_b32 v%d, v%d' % (TM + 1, TM))
                for i in range(8):
                    a.e('v_pk_mul_f32 %s, %s, %s' % (vr(OB + 2 * i, 2), vr(OB + 2 * i, 2), vr(TM, 2)))
                for i in range(8):
                    a.e('v_cvt_pk_bf16_f32 v%d, v%d, v%d' % (OP + i, OB + 2 * i, OB + 2 * i + 1))
                for j in range(2):
                    for nt in range(2):
                        a.e('v_mfma_f32_32x32x16_bf16 %s, %s, %s, %s' % (
                            accA(rt, nt), vr(b + 24 + 8 * nt + 4 * j, 4), vr(OP + 4 * j, 4),
                            '0' if (firstA[0] and j == 0) else accA(rt, nt)))
            firstA[0] = False

    nxt = 0

    def can_issue(k, cur):
        kind, idx = items[k]
        if kind == 'F':
            if idx < DF:
                return True
            return items.index(('F', idx - DF)) < cur
        else:
            if idx < 1:
                return True
            return items.index(('H', idx - 1)) < cur

    order = list(range(len(items)))
    pending = list(range(len(items)))
    for cur in range(len(items)):
        progressed = True
        while progressed:
            progressed = False
            for k in pending:
                kind, idx = items[k]
                if can_issue(k, cur) and (k <= cur + DF + 2):
                    issue(items[k])
                    pending.remove(k)
                    progressed = True
                    break
                if kind == 'F':
                    break
        compute(items[cur])
        if cur % 8 == 0:
            stamp(a, 1 + cur // 8, vSTAMP)
    stamp(a, 5, vSTAMP)
    for rt in range(2):
        a.e('v_sub_f32 v%d, 1.0, v%d' % (vOMG[rt], vG[rt]))
        a.e('v_cvt_pk_bf16_f32 v%d, v%d, v%d' % (vOMG[rt], vOMG[rt], vOMG[rt]))
        a.e('v_and_b32 v%d, 0xffff0000, v%d' % (vOMG[rt] + 1, vOMG[rt]))
        a.e('v_mov_b32 v%d, v%d' % (vOMG[rt], vOMG[rt] + 1))
        a.e('v_mov_b32 v%d, v%d' % (vG[rt] + 1, vG[rt]))
    a.e('s_lshl_b32 s%d, s%d, 12' % (sT, sW))
    a.e('v_add_u32 v10, s%d, v%d' % (sT, vST))
    R = BB
    for t in range(4):
        rt = t >> 1
        for i in range(8):
            a.e('v_pk_fma_f32 %s, %s, %s, %s' % (vr(R + 16 * t + 2 * i, 2), vr(R + 16 * t + 2 * i, 2), vr(vOMG[rt], 2), vr(FB + 16 * t + 2 * i, 2)))
        for q in range(4):
            a.e('ds_write_b128 v10, %s offset:%d' % (vr(R + 16 * t + 4 * q, 4), 16384 * t + 1024 * q))
    a.e('s_waitcnt lgkmcnt(0)')
    a.e('s_barrier')
    stamp(a, 6, vSTAMP)
    a.e('s_lshl_b32 s%d, s%d, 14' % (sT, sW))
    a.e('v_add_u32 v10, s%d, v%d' % (sT, vST))
    for p in range(4):
        for q in range(4):
            a.e('ds_read_b128 %s, v10 offset:%d' % (vr(R + 16 * p + 4 * q, 4), 4096 * p + 1024 * q))
    a.e('s_lshr_b32 s%d, s%d, 1' % (sT, sW))
    a.e('s_lshl_b32 s%d, s%d, 1' % (sT2, sRB))
    a.e('s_add_u32 s%d, s%d, s%d' % (sT, sT, sT2))
    a.e('s_mul_i32 s%d, s%d, %d' % (sT, sT, 32 * 896))
    a.e('s_and_b32 s%d, s%d, 1' % (sT2, sW))
    a.e('s_lshl_b32 s%d, s%d, 6' % (sT2, sT2))
    a.e('s_add_u32 s%d, s%d, s%d' % (sT, sT, sT2))
    a.e('s_lshl_b32 s%d, s%d, 7' % (sT2, sCB))
    a.e('s_add_u32 s%d, s%d, s%d' % (sT, sT, sT2))
    a.e('v_and_b32 v9, 31, v0')
    a.e('v_mul_u32_u24 v9, 896, v9')
    a.e('v_lshrrev_b32 v10, 5, v0')
    a.e('v_lshl_add_u32 v9, v10, 5, v9')
    a.e('s_waitcnt lgkmcnt(0)')
    for i in range(8):
        a.e('v_pk_add_f32 %s, %s, %s' % (vr(R + 2 * i, 2), vr(R + 2 * i, 2), vr(R + 16 + 2 * i, 2)))
        a.e('v_pk_add_f32 %s, %s, %s' % (vr(R + 32 + 2 * i, 2), vr(R + 32 + 2 * i, 2), vr(R + 48 + 2 * i, 2)))
    for i in range(8):
        a.e('v_pk_add_f32 %s, %s, %s' % (vr(R + 2 * i, 2), vr(R + 2 * i, 2), vr(R + 32 + 2 * i, 2)))
    for i in range(8):
        a.e('v_cvt_pk_bf16_f32 v%d, v%d, v%d' % (HB + i, R + 2 * i, R + 2 * i + 1))
    a.e('buffer_store_dwordx4 %s, v9, %s, s%d offen' % (vr(HB, 4), sr(SOUT, 4), sT))
    a.e('buffer_store_dwordx4 %s, v9, %s, s%d offen offset:16' % (vr(HB + 4, 4), sr(SOUT, 4), sT))
    stamp(a, 9, vSTAMP)
    stamp(a, 11, vSTAMP, real=True)
    stamp_store(a, vSTAMP, SWS, sW, 4, STAMP_OFF + (1 << 20), 8)
    a.lab('K2_END')
    a.e('s_endpgm')
    return a.final(), NV


def kd(name, accoff, nfv, nsg):
    return '''.amdhsa_kernel %s
  .amdhsa_next_free_vgpr %d
  .amdhsa_next_free_sgpr %d
  .amdhsa_accum_offset %d
  .amdhsa_group_segment_fixed_size 0
  .amdhsa_kernarg_size 88
  .amdhsa_user_sgpr_count 2
  .amdhsa_user_sgpr_kernarg_segment_ptr 1
  .amdhsa_system_sgpr_workgroup_id_x 1
  .amdhsa_float_denorm_mode_32 3
.end_amdhsa_kernel
''' % (name, nfv, nsg, accoff)


def main(out):
    k1 = gen_k1()
    pol = os.environ.get('STPOL', 'sc1')
    if pol:
        k1 = '\n'.join((ln + ' ' + pol) if ('buffer_store_dwordx4' in ln and 'sc1' not in ln) else ln for ln in k1.split('\n'))
    k2, nv2 = gen_k2()
    acc2 = (nv2 + 3) // 4 * 4
    s = '; generated by gen/gen8.py\n'
    s += '; @launch kernel=k1_kernel grid=(256,1,1) block=(512,1,1) lds=%d\n' % LDS_K1
    s += '; @launch kernel=k2_kernel grid=(224,1,1) block=(256,1,1) lds=65536\n'
    s += '.amdgcn_target "amdgcn-amd-amdhsa--gfx950"\n.text\n'
    for nm, body in (('k1_kernel', k1), ('k2_kernel', k2)):
        s += '.globl %s\n.p2align 8\n.type %s,@function\n' % (nm, nm) + body
    s += '.section .rodata,"a"\n.p2align 6\n'
    s += kd('k1_kernel', 256, 256, 102)
    s += '.p2align 6\n' + kd('k2_kernel', acc2, acc2 + 256, 40)
    open(out, 'w').write(s)


if __name__ == '__main__':
    main(sys.argv[1] if len(sys.argv) > 1 else 'cdna_kernels/%s.s' % NAME)
```

```python
import sys, os
sys.path.insert(0, 'gen')
from asmlib import Asm

NAME = 'gated_mix__linear_attn_block__glu_gated_swiglu__prompt'
PQ_OFF = 0
H_OFF = PQ_OFF + 64 * 16 * 2 * 1024
KVP_OFF = H_OFF + 64 * 112 * 1024
KVT_OFF = KVP_OFF + 16 * 8 * 4096
W2P_OFF = KVT_OFF + 16 * 2 * 1024
WOP_OFF = W2P_OFF + 14 * 112 * 1024
G_OFF = WOP_OFF + 14 * 16 * 2 * 1024
WS_BYTES = G_OFF + 2048 * 4
WS_SRD = 32 << 20

SZ_X = 2048 * 448 * 2
SZ_WQKV = 448 * 1344 * 2
SZ_WO = 448 * 448 * 2
SZ_W1 = 448 * 1792 * 2
SZ_W2 = 1792 * 448 * 2
SZ_GW = 448 * 2
SZ_OUT = 2048 * 448 * 2

STAGE = 53376
XREG = 32768
WOFF_A = [0, 4096, 8192, 12288, 16384 + 32]
WOFF_B = [0, 10368]
GWX = 3 * STAGE
LDS_K1 = 163840
LOG2E = '0x3fb8aa3b'
NLOG2E = '0xbfb8aa3b'
EPS = '0x358637bd'

STAMPS = os.environ.get('STAMPS', '0') == '1'
STAMP_OFF = 16 << 20
PREFETCH = os.environ.get('PREFETCH', '0') == '1'
ROT = os.environ.get('ROT', '0') == '1'
EARLY = os.environ.get('EARLY', '0') == '1'
PF2 = os.environ.get('PF2', '0') == '1'


def stamp(a, k, vreg, sp=None, real=False):
    if not STAMPS:
        return
    sp = a.sp
    a.e('%s s[%d:%d]' % ('s_memrealtime' if real else 's_memtime', sp, sp + 1))
    a.e('s_waitcnt lgkmcnt(0)')
    a.e('v_writelane_b32 v%d, s%d, %d' % (vreg, sp, k))


def stamp_store(a, vreg, srdws, wave_sgpr, nwaves, base, tmpv, sp=None):
    if not STAMPS:
        return
    sp = a.sp
    a.e('s_mul_i32 s%d, s2, %d' % (sp, nwaves))
    a.e('s_add_u32 s%d, s%d, s%d' % (sp, sp, wave_sgpr))
    a.e('s_lshl_b32 s%d, s%d, 8' % (sp, sp))
    a.e('s_add_u32 s%d, s%d, %d' % (sp, sp, base))
    a.e('v_lshlrev_b32 v%d, 2, v0' % tmpv)
    a.e('buffer_store_dword v%d, v%d, s[%d:%d], s%d offen' % (vreg, tmpv, srdws, srdws + 3, sp))


def v(i):
    return 'v%d' % i


def vr(i, n):
    return 'v[%d:%d]' % (i, i + n - 1)


def sr(i, n):
    return 's[%d:%d]' % (i, i + n - 1)


def srd(a, d, lo, size):
    a.e('s_mov_b32 s%d, s%d' % (d, lo))
    a.e('s_and_b32 s%d, s%d, 0xffff' % (d + 1, lo + 1))
    a.e('s_mov_b32 s%d, 0x%x' % (d + 2, size))
    a.e('s_mov_b32 s%d, 0x00020000' % (d + 3))


def phi16(a, R, T, O, sC):
    for i in range(8):
        a.e('v_pk_mul_f32 %s, %s, %s' % (vr(T + 2 * i, 2), vr(R + 2 * i, 2), sr(sC, 2)))
    for i in range(16):
        a.e('v_exp_f32 v%d, v%d clamp' % (T + i, T + i))
    for i in range(16):
        a.e('v_max_f32 v%d, 0, v%d' % (R + i, R + i))
    for i in range(8):
        a.e('v_pk_add_f32 %s, %s, %s' % (vr(R + 2 * i, 2), vr(R + 2 * i, 2), sr(sC + 2, 2)))
    for i in range(8):
        a.e('v_pk_add_f32 %s, %s, %s' % (vr(R + 2 * i, 2), vr(R + 2 * i, 2), vr(T + 2 * i, 2)))
    for i in range(8):
        a.e('v_cvt_pk_bf16_f32 v%d, v%d, v%d' % (O + i, R + 2 * i, R + 2 * i + 1))


def silu_mul(a, R, T, O, sC):
    for i in range(4):
        a.e('v_pk_mul_f32 %s, %s, %s' % (vr(T + 2 * i, 2), vr(R + 2 * i, 2), sr(sC + 4, 2)))
    for i in range(8):
        a.e('v_exp_f32 v%d, v%d' % (T + i, T + i))
    for i in range(4):
        a.e('v_pk_mul_f32 %s, %s, %s' % (vr(R + 2 * i, 2), vr(R + 2 * i, 2), vr(R + 8 + 2 * i, 2)))
    for i in range(4):
        a.e('v_pk_add_f32 %s, %s, %s' % (vr(T + 2 * i, 2), vr(T + 2 * i, 2), sr(sC + 6, 2)))
    for i in range(8):
        a.e('v_rcp_f32 v%d, v%d' % (T + i, T + i))
    for i in range(4):
        a.e('v_pk_mul_f32 %s, %s, %s' % (vr(R + 2 * i, 2), vr(R + 2 * i, 2), vr(T + 2 * i, 2)))
    for i in range(4):
        a.e('v_cvt_pk_bf16_f32 v%d, v%d, v%d' % (O + i, R + 2 * i, R + 2 * i + 1))


def consts(a, sC):
    for k, val in enumerate([LOG2E, LOG2E, EPS, EPS, NLOG2E, NLOG2E, '0x3f800000', '0x3f800000']):
        a.e('s_mov_b32 s%d, %s' % (sC + k, val))


def gen_k1():
    a = Asm()
    a.sp = 100
    SX, SWQKV, SW1, SW3, SWS, SW2, SWO, SGW, SDBG = 24, 28, 32, 36, 40, 44, 48, 52, 56
    SLX = 60
    SOFF = [64, 65, 66, 67, 68]
    DEST = [69, 70, 71, 72, 73]
    sW, sRB, sC, sCB, sXD, sT, sT2, sT3 = 74, 75, 76, 77, 78, 79, 80, 81
    sCON = 84
    sEX = 92
    sW8 = 82
    sCH, sXK, sD1, sD2 = 83, 94, 95, 23
    sGWM = 22
    ACC = 96
    WF = [16, 36]
    XF = [56, 64]
    vTID = 1
    vXO = [2, 3]
    vWO = [4, 5, 6, 7, 72]
    vXA = [73, 74, 75, 76]
    vKV, vGU, vQ0, vQ1, vQI, vC128, vST = 77, 78, 79, 80, 81, 82, 83
    vSTAMP = 95
    accb = lambda t, r: ACC + 16 * (2 * t + r)

    a.lab('k1_kernel')
    a.e('s_cmp_ge_u32 s2, 256')
    a.e('s_cbranch_scc1 K1_END')
    a.e('s_load_dwordx4 s[4:7], s[0:1], 0')
    a.e('s_load_dwordx2 s[8:9], s[0:1], 16')
    a.e('s_load_dwordx4 s[12:15], s[0:1], 32')
    a.e('s_load_dwordx4 s[16:19], s[0:1], 48')
    a.e('s_load_dwordx4 s[96:99], s[0:1], 72')
    a.e('v_mov_b32 v%d, v0' % vTID)
    a.e('v_lshrrev_b32 v8, 6, v0')
    a.e('v_and_b32 v0, 63, v0')
    a.e('v_readfirstlane_b32 s%d, v8' % sW8)
    a.e('s_and_b32 s3, s2, 7')
    a.e('s_lshr_b32 s%d, s2, 3' % sT)
    a.e('s_and_b32 s%d, s%d, 3' % (sT2, sT))
    a.e('s_lshl_b32 s3, s3, 2')
    a.e('s_add_u32 s%d, s3, s%d' % (sCB, sT2))
    a.e('s_lshr_b32 s%d, s%d, 2' % (sRB, sT))
    a.e('s_lshr_b32 s%d, s%d, 1' % (sC, sCB))
    a.e('s_and_b32 s%d, s%d, 3' % (sW, sW8))
    if ROT:
        a.e('s_and_b32 s3, s%d, 3' % sCB)
        a.e('s_lshl_b32 s3, s3, 1')
        a.e('s_add_u32 s3, s3, s%d' % sRB)
        a.e('s_sub_u32 s%d, s3, 7' % sCH)
        a.e('s_cmp_ge_u32 s3, 7')
        a.e('s_cselect_b32 s%d, s%d, s3' % (sCH, sCH))
    else:
        a.e('s_mov_b32 s%d, 0' % sCH)
    a.e('s_lshl_b32 s%d, s%d, 7' % (sXK, sCH))
    a.e('v_and_b32 v%d, 255, v%d' % (vTID, vTID))
    consts(a, sCON)
    a.e('s_lshl_b32 s%d, s%d, 8' % (sT, sRB))
    a.e('s_lshl_b32 s%d, s%d, 6' % (sT2, sW))
    a.e('s_add_u32 s%d, s%d, s%d' % (sT, sT, sT2))
    a.e('v_lshrrev_b32 v8, 3, v0')
    a.e('v_add_u32 v8, s%d, v8' % sT)
    a.e('v_mul_u32_u24 v8, 896, v8')
    a.e('v_and_b32 v9, 7, v0')
    a.e('v_lshrrev_b32 v10, 4, v0')
    a.e('v_xor_b32 v11, v9, v10')
    a.e('v_lshl_add_u32 v%d, v11, 4, v8' % vXO[0])
    a.e('v_xor_b32 v11, 4, v11')
    a.e('v_lshl_add_u32 v%d, v11, 4, v8' % vXO[1])
    a.e('s_lshl_b32 s%d, s%d, 13' % (sXD, sW))
    a.e('v_and_b32 v8, 31, v0')
    a.e('v_lshrrev_b32 v9, 5, v0')
    a.e('v_bfe_u32 v10, v8, 1, 3')
    a.e('v_lshlrev_b32 v11, 7, v8')
    a.e('v_add_u32 v11, s%d, v11' % sXD)
    for ks in range(4):
        a.e('v_add_u32 v12, %d, v9' % (2 * ks))
        a.e('v_xor_b32 v12, v12, v10')
        a.e('v_lshl_add_u32 v%d, v12, 4, v11' % vXA[ks])
    a.e('v_lshlrev_b32 v%d, 4, v0' % vST)
    a.e('v_bfe_u32 v10, v0, 4, 1')
    a.e('v_bfe_u32 v11, v0, 2, 2')
    a.e('v_and_b32 v12, 3, v0')
    a.e('v_lshl_add_u32 v13, v9, 3, v11')
    a.e('v_and_b32 v14, 1, v12')
    a.e('v_lshlrev_b32 v14, 1, v14')
    a.e('v_lshrrev_b32 v15, 1, v12')
    a.e('v_add_u32 v14, v14, v15')
    a.e('v_lshlrev_b32 v14, 3, v14')
    a.e('s_waitcnt lgkmcnt(0)')
    srd(a, SX, 4, SZ_X)
    srd(a, SWQKV, 6, SZ_WQKV)
    srd(a, SW1, 12, SZ_W1)
    srd(a, SW3, 14, SZ_W1)
    srd(a, SWS, 98, WS_SRD)
    srd(a, SW2, 16, SZ_W2)
    srd(a, SWO, 8, SZ_WO)
    srd(a, SGW, 18, SZ_GW)
    srd(a, SDBG, 96, 256)
    stamp(a, 0, vSTAMP)
    stamp(a, 10, vSTAMP, real=True)
    a.e('s_and_b32 s%d, s%d, 1' % (sT, sCB))
    a.e('s_cmp_eq_u32 s%d, 1' % sT)
    a.e('s_cbranch_scc1 K1_TYPEB')

    def dma_chunk(i, slot_srd, slot_step):
        sb = (i % 3) * STAGE
        for q in range(8):
            a.e('s_add_u32 m0, s%d, %d' % (sXD, sb + q * 1024))
            a.e('s_add_u32 s%d, s%d, %d' % (sT, sXK, q * 7168))
            a.e('buffer_load_dwordx4 v%d, %s, s%d offen lds' % (vXO[q & 1], sr(SX, 4), sT))
        a.e('s_add_u32 s%d, s%d, 1' % (sCH, sCH))
        a.e('s_cmp_eq_u32 s%d, 7' % sCH)
        a.e('s_cselect_b32 s%d, 0, s%d' % (sCH, sCH))
        a.e('s_mov_b32 s%d, %d' % (sD1, 64 * 2688))
        a.e('s_cselect_b32 s%d, 0x%x, s%d' % (sD1, (-6 * 64 * 2688) & 0xffffffff, sD1))
        a.e('s_mov_b32 s%d, %d' % (sD2, 64 * 3584))
        a.e('s_cselect_b32 s%d, 0x%x, s%d' % (sD2, (-6 * 64 * 3584) & 0xffffffff, sD2))
        a.e('s_lshl_b32 s%d, s%d, 7' % (sXK, sCH))
        for j in range(5):
            a.e('s_add_u32 m0, s%d, %d' % (DEST[j], sb))
            a.e('s_nop 0')
            a.e('buffer_load_dwordx4 v%d, %s, s%d offen lds' % (vWO[j], sr(slot_srd[j], 4), SOFF[j]))
            a.e('s_add_u32 s%d, s%d, s%d' % (SOFF[j], SOFF[j], sD1 if slot_step[j] == 64 * 2688 else sD2))

    def main_loop(typ, slot_srd, slot_step, extra_at_b5=None, pre_wait=None, loader_tail=None):
        def reads(n):
            i, ks = divmod(n, 4)
            st = n & 1
            L = []
            L.append('ds_read_b128 %s, v%d' % (vr(XF[st], 4), vXA[ks]))
            L.append('ds_read_b128 %s, v%d offset:4096' % (vr(XF[st] + 4, 4), vXA[ks]))
            for t in range(5):
                for rd in range(2):
                    dst = vr(WF[st] + 4 * t + 2 * rd, 2)
                    if typ == 'A':
                        if t == 0:
                            L.append('ds_read_b64_tr_b16 %s, v%d' % (dst, vQ0 if rd == 0 else vQ1))
                        elif t in (1, 2):
                            L.append('ds_read_b64_tr_b16 %s, v%d offset:%d' % (dst, vKV, 4096 * t + ks * 1024 + rd * 256))
                        else:
                            L.append('ds_read_b64_tr_b16 %s, v%d offset:%d' % (dst, vGU, 32 * (t - 3) + ks * 1024 + rd * 256))
                    else:
                        L.append('ds_read_b64_tr_b16 %s, v%d offset:%d' % (dst, vGU, 32 * t + ks * 2560 + rd * 640))
            return L

        def addr_adv(n):
            i, ks = divmod(n, 4)
            if ks == 0:
                delta = STAGE if (i % 3) != 0 else -2 * STAGE
                for r in vXA + [vGU] + ([vKV] if typ == 'A' else []):
                    a.e('v_add_u32 v%d, %d, v%d' % (r, delta, r) if delta > 0 else
                        'v_subrev_u32 v%d, %d, v%d' % (r, -delta, r))
                if typ == 'A':
                    d2 = (delta - 3 * 1024) & 0xffffffff
                    a.e('s_add_u32 s%d, s%d, 1' % (sCH, sCH))
                    a.e('s_cmp_eq_u32 s%d, 7' % sCH)
                    a.e('s_cselect_b32 s%d, 0, s%d' % (sCH, sCH))
                    a.e('s_mov_b32 s3, 128')
                    a.e('s_cselect_b32 s3, 0x%x, s3' % ((-3456) & 0xffffffff))
                    a.e('v_mov_b32 v8, 0x%x' % d2)
                    a.e('v_mov_b32 v9, s3')
                    a.e('v_cndmask_b32 v8, v8, v9, %s' % sr(sGWM, 2))
                    a.e('v_add_u32 v%d, v8, v%d' % (vQ0, vQ0))
                    a.e('v_add_u32 v%d, v8, v%d' % (vQ1, vQ1))
            elif typ == 'A':
                a.e('v_add_u32 v%d, v%d, v%d' % (vQ0, vQI, vQ0))
                a.e('v_add_u32 v%d, v%d, v%d' % (vQ1, vQI, vQ1))

        def mfma(n, t, r):
            st = n & 1
            acc = vr(accb(t, r), 16)
            wf = vr(WF[st] + 4 * t, 4)
            xf = vr(XF[st] + 4 * r, 4)
            c = acc if n > 0 else '0'
            if typ == 'A' and t in (1, 2):
                a.e('v_mfma_f32_32x32x16_bf16 %s, %s, %s, %s' % (acc, xf, wf, c))
            else:
                a.e('v_mfma_f32_32x32x16_bf16 %s, %s, %s, %s' % (acc, wf, xf, c))

        for j in range(5):
            a.e('s_mul_i32 s3, s%d, %d' % (sCH, slot_step[j]))
            a.e('s_add_u32 s%d, s%d, s3' % (SOFF[j], SOFF[j]))
        if typ == 'A':
            a.e('s_lshl_b32 s3, s%d, 9' % sCH)
            a.e('v_mov_b32 v8, s3')
            a.e('v_cndmask_b32 v8, 0, v8, %s' % sr(sGWM, 2))
            a.e('v_add_u32 v%d, v8, v%d' % (vQ0, vQ0))
            a.e('v_add_u32 v%d, v8, v%d' % (vQ1, vQ1))
        a.e('s_cmp_lt_u32 s%d, 4' % sW8)
        a.e('s_cbranch_scc1 K1%s_COMPUTE' % typ)
        outstanding = []
        dma_chunk(0, slot_srd, slot_step)
        outstanding.append(13)
        stamp(a, 1, vSTAMP)
        outstanding.append(0)
        if pre_wait:
            pre_wait(sum(outstanding))
        if not EARLY:
            dma_chunk(1, slot_srd, slot_step)
            outstanding.append(13)
        stamp(a, 2, vSTAMP)
        a.e('s_waitcnt vmcnt(%d) lgkmcnt(0)' % sum(outstanding[1:]))
        outstanding.pop(0)
        stamp(a, 3, vSTAMP)
        a.e('s_barrier')
        if EARLY:
            dma_chunk(1, slot_srd, slot_step)
            outstanding.append(13)
        dma_chunk(2, slot_srd, slot_step)
        outstanding.append(13)
        if PREFETCH:
            npf = 0
            a.e('s_lshr_b32 s3, s2, 3')
            a.e('s_lshl_b32 s3, s3, 6')
            a.e('v_add_u32 v16, s3, v0')
            a.e('v_mul_u32_u24 v16, 896, v16')
            a.e('s_lshl_b32 s3, s%d, 7' % sW)
            a.e('s_add_u32 s3, s3, 384')
            a.e('buffer_load_dword v17, v16, %s, s3 offen' % sr(SX, 4))
            npf += 1
            a.e('s_and_b32 s%d, s%d, 3' % (sT2, sRB))
            for j in range(5):
                a.e('s_mul_i32 s3, s%d, %d' % (sT2, slot_step[j]))
                a.e('s_add_u32 s3, s3, s%d' % SOFF[j])
                a.e('buffer_load_dwordx4 %s, v%d, %s, s3 offen' % (vr(20 + 4 * j, 4), vWO[j], sr(slot_srd[j], 4)))
                npf += 1
            outstanding[-1] += npf
        outstanding = [outstanding[0] + outstanding[1]] + outstanding[2:]
        for i in range(6):
            a.e('s_waitcnt vmcnt(%d)' % sum(outstanding[1:]))
            outstanding.pop(0)
            a.e('s_barrier')
            if i + 3 <= 6:
                dma_chunk(i + 3, slot_srd, slot_step)
                outstanding.append(13)
            elif i == 4 and extra_at_b5:
                outstanding.append(extra_at_b5())
        if loader_tail:
            loader_tail()
        stamp(a, 9, vSTAMP)
        stamp(a, 11, vSTAMP, real=True)
        stamp_store(a, vSTAMP, SWS, sW8, 8, STAMP_OFF, 8)
        a.e('s_endpgm')
        a.lab('K1%s_COMPUTE' % typ)
        if PF2:
            a.e('s_lshr_b32 s3, s2, 3')
            a.e('s_lshl_b32 s3, s3, 2')
            a.e('s_add_u32 s3, s3, s%d' % sW)
            a.e('s_mul_i32 s3, s3, %d' % (16 * 896))
            a.e('v_lshlrev_b32 v16, 7, v0')
            a.e('v_min_u32 v17, %d, v16' % (47 * 128))
            a.e('buffer_load_dword v18, v16, %s, s3 offen' % sr(SX, 4))
            a.e('s_add_u32 s3, s3, 8192')
            a.e('buffer_load_dword v19, v17, %s, s3 offen' % sr(SX, 4))
            a.e('v_min_u32 v16, 55, v0')
            a.e('s_mul_i32 s3, s%d, 56' % sRB)
            a.e('v_add_u32 v16, s3, v16')
            a.e('v_mul_u32_u24 v17, 3584, v16')
            a.e('v_mul_u32_u24 v16, 2688, v16')
            if typ == 'A':
                a.e('s_mul_i32 s%d, s%d, 56' % (sT, sC))
                a.e('s_lshl_b32 s%d, s%d, 6' % (sT2, sC))
                tg = []
                for rho in range(3):
                    tg.append((SWQKV, 16, sT, rho * 896))
                    tg.append((SWQKV, 16, sT, rho * 896 + 52))
                tg.append((SW1, 17, sT2, 0))
                tg.append((SW3, 17, sT2, 0))
            else:
                a.e('s_mul_i32 s%d, s%d, 160' % (sT, sC))
                a.e('s_add_u32 s%d, s%d, 1024' % (sT, sT))
                tg = [(sd, 17, sT, o) for sd in (SW1, SW3) for o in (0, 80, 156)]
            for w in range(4):
                mine = tg[2 * w:2 * w + 2]
                if not mine:
                    continue
                a.e('s_cmp_lg_u32 s%d, %d' % (sW, w))
                a.e('s_cbranch_scc1 K1%s_PF%d' % (typ, w))
                for n_, (sd, vv, ss, off) in enumerate(mine):
                    a.e('buffer_load_dword v%d, v%d, %s, s%d offen offset:%d' % (20 + n_, vv, sr(sd, 4), ss, off))
                a.lab('K1%s_PF%d' % (typ, w))
        a.e('s_barrier')
        stamp(a, 1, vSTAMP)
        for s in reads(0):
            a.e(s)
        for n in range(28):
            i, ks = divmod(n, 4)
            a.c('step %d' % n)
            a.e('s_waitcnt lgkmcnt(0)')
            if ks == 3 and i < 6:
                a.e('s_barrier')
                stamp(a, 2 + i, vSTAMP)
            mfma(n, 0, 0)
            R = []
            if n + 1 < 28:
                addr_adv(n + 1)
                R = reads(n + 1)
            k = 0
            for m in range(1, 10):
                for s in R[k:k + 2]:
                    a.e(s)
                k += 2
                mfma(n, m // 2, m % 2)
        stamp(a, 8, vSTAMP)

    a.e('v_lshl_add_u32 v15, v10, 2, v12')
    a.e('v_and_b32 v8, 6, v15')
    a.e('v_cmp_eq_u32 vcc, 6, v8')
    a.e('v_xor_b32 v8, 1, v15')
    a.e('v_cndmask_b32 v8, v15, v8, vcc')
    a.e('v_lshlrev_b32 v8, 3, v8')
    a.e('v_lshl_add_u32 v8, v13, 6, v8')
    a.e('v_add_u32 v%d, %d, v8' % (vKV, XREG))
    a.e('v_cmp_eq_u32 %s, 7, v15' % sr(sGWM, 2))
    a.e('v_lshlrev_b32 v9, 3, v13')
    a.e('v_add_u32 v9, %d, v9' % GWX)
    a.e('v_cndmask_b32 v%d, v%d, v9, %s' % (vQ0, vKV, sr(sGWM, 2)))
    a.e('v_add_u32 v8, 256, v%d' % vKV)
    a.e('v_add_u32 v9, 32, v9')
    a.e('v_cndmask_b32 v%d, v8, v9, %s' % (vQ1, sr(sGWM, 2)))
    a.e('v_mov_b32 v%d, 128' % vC128)
    a.e('v_mov_b32 v8, 1024')
    a.e('v_cndmask_b32 v%d, v8, v%d, %s' % (vQI, vC128, sr(sGWM, 2)))
    a.e('v_mul_u32_u24 v8, %d, v10' % (WOFF_A[4] - WOFF_A[3]))
    a.e('v_lshl_add_u32 v8, v13, 6, v8')
    a.e('v_add_u32 v8, v14, v8')
    a.e('v_add_u32 v%d, %d, v8' % (vGU, XREG + WOFF_A[3]))
    a.e('v_lshrrev_b32 v8, 2, v0')
    a.e('v_and_b32 v9, 3, v0')
    a.e('v_lshlrev_b32 v10, 4, v9')
    a.e('v_cmp_eq_u32 vcc, 3, v9')
    a.e('v_mov_b32 v11, 40')
    a.e('v_cndmask_b32 v11, v10, v11, vcc')
    a.e('v_mul_u32_u24 v12, 2688, v8')
    a.e('v_add_u32 v12, v12, v11')
    a.e('v_mul_u32_u24 v13, 3584, v8')
    a.e('v_add_u32 v13, v13, v10')
    a.e('s_mul_i32 s%d, s%d, 56' % (sT, sC))
    a.e('v_add_u32 v%d, s%d, v12' % (vWO[0], sT))
    a.e('v_mov_b32 v%d, v%d' % (vWO[1], vWO[0]))
    a.e('v_mov_b32 v%d, v%d' % (vWO[2], vWO[0]))
    a.e('s_lshl_b32 s3, s%d, 6' % sC)
    a.e('v_add_u32 v%d, s3, v13' % vWO[3])
    a.e('v_mov_b32 v%d, v%d' % (vWO[4], vWO[3]))
    a.e('s_mul_i32 s%d, s%d, %d' % (SOFF[0], sW, 16 * 2688))
    a.e('s_add_u32 s%d, s%d, 896' % (SOFF[1], SOFF[0]))
    a.e('s_add_u32 s%d, s%d, 1792' % (SOFF[2], SOFF[0]))
    a.e('s_mul_i32 s%d, s%d, %d' % (SOFF[3], sW, 16 * 3584))
    a.e('s_mov_b32 s%d, s%d' % (SOFF[4], SOFF[3]))
    a.e('s_lshl_b32 s3, s%d, 10' % sW)
    for j in range(5):
        a.e('s_add_u32 s%d, s3, %d' % (DEST[j], XREG + WOFF_A[j]))
    a.e('v_lshlrev_b32 v8, 1, v%d' % vTID)
    a.e('buffer_load_ushort v10, v8, %s, 0 offen' % sr(SGW, 4))
    a.e('buffer_load_ushort v12, v8, %s, 0 offen offset:512' % sr(SGW, 4))

    def pre_wait_A(nout):
        a.e('s_waitcnt vmcnt(%d)' % nout)
        a.e('v_lshl_or_b32 v10, v10, 16, v10')
        a.e('v_mov_b32 v11, v10')
        a.e('v_lshl_or_b32 v12, v12, 16, v12')
        a.e('v_mov_b32 v13, v12')
        a.e('v_lshlrev_b32 v8, 3, v%d' % vTID)
        a.e('v_add_u32 v8, %d, v8' % GWX)
        a.e('ds_write_b64 v8, v[10:11]')
        a.e('v_cmp_gt_u32 vcc, 192, v%d' % vTID)
        a.e('s_and_saveexec_b64 %s, vcc' % sr(sEX, 2))
        a.e('ds_write_b64 v8, v[12:13] offset:2048')
        a.e('s_mov_b64 exec, %s' % sr(sEX, 2))

    def kv_tail():
        RED = STAGE
        a.e('s_barrier')
        a.e('s_cmp_lg_u32 s%d, 0' % sW)
        a.e('s_cbranch_scc1 K1A_DONE')
        KR = ACC
        a.e('v_add_u32 v8, %d, v%d' % (RED, vST))
        for p in range(4):
            for q in range(4):
                a.e('ds_read_b128 %s, v8 offset:%d' % (vr(KR + 16 * p + 4 * q, 4), 4096 * p + 1024 * q))
        a.e('s_lshl_b32 s3, s%d, 3' % sC)
        a.e('s_add_u32 s3, s3, s%d' % sRB)
        a.e('s_lshl_b32 s3, s3, 12')
        a.e('s_add_u32 s3, s3, %d' % KVP_OFF)
        a.e('s_waitcnt lgkmcnt(0)')
        for i in range(8):
            a.e('v_pk_add_f32 %s, %s, %s' % (vr(KR + 2 * i, 2), vr(KR + 2 * i, 2), vr(KR + 16 + 2 * i, 2)))
            a.e('v_pk_add_f32 %s, %s, %s' % (vr(KR + 32 + 2 * i, 2), vr(KR + 32 + 2 * i, 2), vr(KR + 48 + 2 * i, 2)))
        for i in range(8):
            a.e('v_pk_add_f32 %s, %s, %s' % (vr(KR + 2 * i, 2), vr(KR + 2 * i, 2), vr(KR + 32 + 2 * i, 2)))
        for q in range(4):
            a.e('buffer_store_dwordx4 %s, v%d, %s, s3 offen offset:%d sc1' % (vr(KR + 4 * q, 4), vST, sr(SWS, 4), 1024 * q))
        a.lab('K1A_DONE')

    main_loop('A', [SWQKV, SWQKV, SWQKV, SW1, SW3], [64 * 2688] * 3 + [64 * 3584] * 2, None, pre_wait_A, kv_tail)
    TMP = WF[0]
    PK = 36
    PV = 44
    a.e('s_lshl_b32 s%d, s%d, 3' % (sT3, sRB))
    a.e('s_lshl_b32 s3, s%d, 1' % sW)
    a.e('s_add_u32 s%d, s%d, s3' % (sT3, sT3))
    a.e('v_and_b32 v8, 31, v0')
    a.e('v_cmp_le_u32 %s, 28, v8' % sr(sGWM, 2))
    a.e('v_mov_b32 v9, 0x3f803f80')
    KVA = 56
    for r in range(2):
        phi16(a, accb(1, r), TMP, PK, sCON)
        for i in range(8):
            a.e('v_cvt_pk_bf16_f32 v%d, v%d, v%d' % (PV + i, accb(2, r) + 2 * i, accb(2, r) + 2 * i + 1))
        for i in range(8):
            a.e('v_cndmask_b32 v%d, v%d, v9, %s' % (PV + i, PV + i, sr(sGWM, 2)))
        a.e('v_mfma_f32_32x32x16_bf16 %s, %s, %s, %s' % (vr(KVA, 16), vr(PK, 4), vr(PV, 4), '0' if r == 0 else vr(KVA, 16)))
        a.e('v_mfma_f32_32x32x16_bf16 %s, %s, %s, %s' % (vr(KVA, 16), vr(PK + 4, 4), vr(PV + 4, 4), vr(KVA, 16)))
    RED = STAGE
    a.e('s_lshl_b32 s3, s%d, 12' % sW)
    a.e('v_add_u32 v8, s3, v%d' % vST)
    a.e('v_add_u32 v8, %d, v8' % RED)
    for q in range(4):
        a.e('ds_write_b128 v8, %s offset:%d' % (vr(KVA + 4 * q, 4), 1024 * q))
    a.e('s_waitcnt lgkmcnt(0)')
    a.e('s_barrier')
    a.e('v_mov_b32 v10, v%d' % (accb(0, 0) + 12))
    a.e('v_mov_b32 v11, v%d' % (accb(0, 1) + 12))
    a.e('s_lshl_b32 s3, s%d, 4' % sT3)
    a.e('s_add_u32 s3, s3, s%d' % sC)
    a.e('s_lshl_b32 s3, s3, 11')
    a.e('s_add_u32 s%d, s3, 32768' % sT)
    for r in range(2):
        o = PK + 8 * r
        phi16(a, accb(0, r), TMP, o, sCON)
        sb = 's3' if r == 0 else 's%d' % sT
        a.e('buffer_store_dwordx4 %s, v%d, %s, %s offen' % (vr(o, 4), vST, sr(SWS, 4), sb))
        a.e('buffer_store_dwordx4 %s, v%d, %s, %s offen offset:1024' % (vr(o + 4, 4), vST, sr(SWS, 4), sb))
    a.e('s_cmp_lg_u32 s%d, 0' % sC)
    a.e('s_cbranch_scc1 K1A_NOG')
    a.e('v_cvt_pk_bf16_f32 v12, v10, v11')
    a.e('v_lshlrev_b32 v10, 16, v12')
    a.e('v_and_b32 v11, 0xffff0000, v12')
    a.e('v_pk_mul_f32 v[10:11], v[10:11], %s' % sr(sCON + 4, 2))
    a.e('v_exp_f32 v10, v10')
    a.e('v_exp_f32 v11, v11')
    a.e('v_pk_add_f32 v[10:11], v[10:11], %s' % sr(sCON + 6, 2))
    a.e('v_rcp_f32 v10, v10')
    a.e('v_rcp_f32 v11, v11')
    a.e('v_cvt_pk_bf16_f32 v12, v10, v11')
    a.e('v_lshlrev_b32 v10, 16, v12')
    a.e('v_and_b32 v11, 0xffff0000, v12')
    a.e('v_and_b32 v12, 31, v0')
    a.e('v_lshlrev_b32 v12, 2, v12')
    a.e('s_lshl_b32 s3, s%d, 7' % sT3)
    a.e('s_add_u32 s3, s3, %d' % G_OFF)
    a.e('v_cmp_le_u32 vcc, 32, v0')
    a.e('s_and_saveexec_b64 %s, vcc' % sr(sEX, 2))
    a.e('buffer_store_dword v10, v12, %s, s3 offen' % sr(SWS, 4))
    a.e('buffer_store_dword v11, v12, %s, s3 offen offset:128' % sr(SWS, 4))
    a.e('s_mov_b64 exec, %s' % sr(sEX, 2))
    a.lab('K1A_NOG')
    a.e('s_mul_i32 s3, s%d, 112' % sT3)
    a.e('s_lshl_b32 s%d, s%d, 1' % (sT, sC))
    a.e('s_add_u32 s3, s3, s%d' % sT)
    a.e('s_lshl_b32 s3, s3, 10')
    a.e('s_add_u32 s3, s3, %d' % H_OFF)
    a.e('s_add_u32 s%d, s3, %d' % (sT, 112 * 1024))
    for r in range(2):
        for m in range(2):
            o = PK + 4 * (2 * r + m)
            silu_mul(a, accb(3 + m, r), TMP, o, sCON)
            a.e('buffer_store_dwordx4 %s, v%d, %s, %s offen offset:%d' % (vr(o, 4), vST, sr(SWS, 4), 's3' if r == 0 else 's%d' % sT, 1024 * m))
    stamp(a, 9, vSTAMP)
    stamp(a, 11, vSTAMP, real=True)
    stamp_store(a, vSTAMP, SWS, sW8, 8, STAMP_OFF, 8)
    a.e('s_endpgm')

    a.lab('K1_TYPEB')
    a.e('v_mul_u32_u24 v8, %d, v10' % WOFF_B[1])
    a.e('v_mul_u32_u24 v9, 160, v13')
    a.e('v_add3_u32 v8, v8, v9, v14')
    a.e('v_add_u32 v%d, %d, v8' % (vGU, XREG))
    a.e('s_mul_i32 s%d, s%d, 160' % (sT, sC))
    a.e('s_add_u32 s%d, s%d, 1024' % (sT, sT))

    def slotB(j, q_sgpr):
        a.e('s_lshl_b32 s3, s%d, 6' % q_sgpr)
        a.e('v_add_u32 v8, s3, v0')
        a.e('v_mul_u32_u24 v9, 6554, v8')
        a.e('v_lshrrev_b32 v9, 16, v9')
        a.e('v_mul_u32_u24 v10, 10, v9')
        a.e('v_sub_u32 v10, v8, v10')
        a.e('v_mul_u32_u24 v9, 3584, v9')
        a.e('v_lshl_add_u32 v9, v10, 4, v9')
        a.e('v_add_u32 v%d, s%d, v9' % (vWO[j], sT))
        a.e('s_mov_b32 s%d, 0' % SOFF[j])
        a.e('s_lshl_b32 s%d, s%d, 10' % (DEST[j], q_sgpr))

    slotB(0, sW)
    a.e('s_add_u32 s%d, s%d, %d' % (DEST[0], DEST[0], XREG + WOFF_B[0]))
    a.e('s_add_u32 s%d, s%d, 4' % (sT2, sW))
    slotB(1, sT2)
    a.e('s_add_u32 s%d, s%d, %d' % (DEST[1], DEST[1], XREG + WOFF_B[0]))
    a.e('s_add_u32 s%d, s%d, 8' % (sT2, sW))
    a.e('s_sub_u32 s%d, s%d, 2' % (sT3, sW))
    a.e('s_cmp_lt_u32 s%d, 2' % sW)
    a.e('s_cselect_b32 s%d, s%d, s%d' % (sT2, sT2, sT3))
    a.e('s_cselect_b64 %s, %s, %s' % (sr(SLX, 2), sr(SW1, 2), sr(SW3, 2)))
    a.e('s_cselect_b64 %s, %s, %s' % (sr(SLX + 2, 2), sr(SW1 + 2, 2), sr(SW3 + 2, 2)))
    a.e('s_mov_b32 s%d, %d' % (sT3, XREG + WOFF_B[1]))
    a.e('s_cselect_b32 s%d, %d, s%d' % (sT3, XREG + WOFF_B[0], sT3))
    slotB(2, sT2)
    a.e('s_add_u32 s%d, s%d, s%d' % (DEST[2], DEST[2], sT3))
    a.e('s_add_u32 s%d, s%d, 2' % (sT2, sW))
    slotB(3, sT2)
    a.e('s_add_u32 s%d, s%d, %d' % (DEST[3], DEST[3], XREG + WOFF_B[1]))
    a.e('s_add_u32 s%d, s%d, 6' % (sT2, sW))
    slotB(4, sT2)
    a.e('s_add_u32 s%d, s%d, %d' % (DEST[4], DEST[4], XREG + WOFF_B[1]))

    PREP = STAGE
    sPU = [[4, 5, 6], [7, 8, 9]]
    sPD = 10

    def prep_issue():
        a.e('s_lshl_b32 s%d, s%d, 12' % (sPD, sW))
        a.e('s_add_u32 s%d, s%d, %d' % (sPD, sPD, PREP))
        a.e('v_lshrrev_b32 v8, 2, v0')
        a.e('v_mul_u32_u24 v8, 896, v8')
        a.e('v_and_b32 v9, 3, v0')
        a.e('v_lshl_add_u32 v8, v9, 4, v8')
        for u in range(2):
            sNT, sK, sISWO = sPU[u]
            a.e('s_lshl_b32 s%d, s%d, 4' % (sT, sRB))
            a.e('s_add_u32 s%d, s%d, s%d' % (sT, sT, sC))
            a.e('s_lshl_b32 s%d, s%d, 2' % (sT, sT))
            a.e('s_add_u32 s%d, s%d, s%d' % (sT, sT, sW))
            a.e('s_lshl_b32 s%d, s%d, 1' % (sT, sT))
            a.e('s_add_u32 s%d, s%d, %d' % (sT, sT, u))
            a.e('s_min_u32 s%d, s%d, 1007' % (sT, sT))
            a.e('s_cmp_ge_u32 s%d, 784' % sT)
            a.e('s_cselect_b32 s%d, 1, 0' % sISWO)
            a.e('s_cselect_b32 s%d, 784, 0' % sT2)
            a.e('s_sub_u32 s%d, s%d, s%d' % (sT, sT, sT2))
            a.e('s_mul_i32 s%d, s%d, 4682' % (sK, sT))
            a.e('s_lshr_b32 s%d, s%d, 16' % (sK, sK))
            a.e('s_mul_i32 s%d, s%d, 14' % (sT2, sK))
            a.e('s_sub_u32 s%d, s%d, s%d' % (sNT, sT, sT2))
            a.e('s_cmp_eq_u32 s%d, 1' % sISWO)
            a.e('s_cselect_b32 s%d, 28, 32' % sT2)
            a.e('s_mul_i32 s%d, s%d, s%d' % (sT2, sT2, sK))
            a.e('s_mul_i32 s%d, s%d, 896' % (sT2, sT2))
            a.e('s_lshl_b32 s%d, s%d, 6' % (sT3, sNT))
            a.e('s_add_u32 s%d, s%d, s%d' % (sT2, sT2, sT3))
            a.e('s_cmp_eq_u32 s%d, 1' % sISWO)
            a.e('s_cselect_b64 %s, %s, %s' % (sr(SLX, 2), sr(SWO, 2), sr(SW2, 2)))
            a.e('s_cselect_b64 %s, %s, %s' % (sr(SLX + 2, 2), sr(SWO + 2, 2), sr(SW2 + 2, 2)))
            a.e('s_add_u32 m0, s%d, %d' % (sPD, 2048 * u))
            a.e('s_add_u32 s%d, s%d, %d' % (sT3, sT2, 16 * 896))
            a.e('buffer_load_dwordx4 v8, %s, s%d offen lds' % (sr(SLX, 4), sT2))
            a.e('s_add_u32 m0, s%d, %d' % (sPD, 2048 * u + 1024))
            a.e('s_nop 0')
            a.e('buffer_load_dwordx4 v8, %s, s%d offen lds' % (sr(SLX, 4), sT3))
        return 4

    def prep_finish():
        a.e('v_lshrrev_b32 v9, 5, v0')
        a.e('v_bfe_u32 v10, v0, 4, 1')
        a.e('v_bfe_u32 v11, v0, 2, 2')
        a.e('v_and_b32 v12, 3, v0')
        a.e('v_lshl_add_u32 v15, v10, 2, v12')
        a.e('v_and_b32 v13, 1, v15')
        a.e('v_lshlrev_b32 v13, 2, v13')
        a.e('v_lshrrev_b32 v14, 1, v15')
        a.e('v_add_u32 v13, v13, v14')
        a.e('v_lshlrev_b32 v13, 3, v13')
        a.e('s_waitcnt vmcnt(0)')
        for u in range(2):
            sNT, sK, sISWO = sPU[u]
            P = ACC + 8 * u
            a.e('s_cmp_eq_u32 s%d, 1' % sISWO)
            a.e('s_cselect_b32 s%d, 2, 3' % sT)
            a.e('s_mov_b32 s%d, 256' % sT2)
            a.e('s_cselect_b32 s%d, 512, s%d' % (sT2, sT2))
            a.e('v_lshlrev_b32 v14, s%d, v9' % sT)
            a.e('v_add_u32 v14, v14, v11')
            a.e('v_lshl_add_u32 v14, v14, 6, v13')
            a.e('v_add_u32 v14, s%d, v14' % sPD)
            a.e('v_add_u32 v15, s%d, v14' % sT2)
            a.e('ds_read_b64_tr_b16 %s, v14 offset:%d' % (vr(P, 2), 2048 * u))
            a.e('ds_read_b64_tr_b16 %s, v15 offset:%d' % (vr(P + 2, 2), 2048 * u))
            a.e('ds_read_b64_tr_b16 %s, v14 offset:%d' % (vr(P + 4, 2), 2048 * u + 1024))
            a.e('ds_read_b64_tr_b16 %s, v15 offset:%d' % (vr(P + 6, 2), 2048 * u + 1024))
            a.e('s_mul_i32 s%d, s%d, 112' % (sT, sNT))
            a.e('s_lshl_b32 s%d, s%d, 1' % (sT2, sK))
            a.e('s_add_u32 s%d, s%d, s%d' % (sT, sT, sT2))
            a.e('s_lshl_b32 s%d, s%d, 10' % (sT, sT))
            a.e('s_add_u32 s%d, s%d, %d' % (sT, sT, W2P_OFF))
            a.e('s_lshl_b32 s%d, s%d, 4' % (sT3, sNT))
            a.e('s_add_u32 s%d, s%d, s%d' % (sT3, sT3, sK))
            a.e('s_lshl_b32 s%d, s%d, 11' % (sT3, sT3))
            a.e('s_add_u32 s%d, s%d, %d' % (sT3, sT3, WOP_OFF))
            a.e('s_cmp_eq_u32 s%d, 1' % sISWO)
            a.e('s_cselect_b32 s%d, s%d, s%d' % (sT, sT3, sT))
            a.e('s_cselect_b32 s%d, 32, 64' % sT2)
            a.e('v_cmp_le_u32 vcc, s%d, v0' % sT2)
            a.e('s_waitcnt lgkmcnt(0)')
            a.e('v_cndmask_b32 v%d, v%d, 0, vcc' % (P + 6, P + 6))
            a.e('v_cndmask_b32 v%d, v%d, 0, vcc' % (P + 7, P + 7))
            a.e('buffer_store_dwordx4 %s, v%d, %s, s%d offen' % (vr(P, 4), vST, sr(SWS, 4), sT))
            a.e('buffer_store_dwordx4 %s, v%d, %s, s%d offen offset:1024' % (vr(P + 4, 4), vST, sr(SWS, 4), sT))

    main_loop('B', [SW1, SW1, SLX, SW3, SW3], [64 * 3584] * 5, prep_issue, None, prep_finish)
    TMP = WF[0]
    a.e('s_lshl_b32 s%d, s%d, 3' % (sT3, sRB))
    a.e('s_lshl_b32 s3, s%d, 1' % sW)
    a.e('s_add_u32 s%d, s%d, s3' % (sT3, sT3))
    a.e('s_mul_i32 s3, s%d, 112' % sT3)
    a.e('s_mul_i32 s%d, s%d, 5' % (sT, sC))
    a.e('s_add_u32 s3, s3, s%d' % sT)
    a.e('s_add_u32 s3, s3, 32')
    a.e('s_lshl_b32 s3, s3, 10')
    a.e('s_add_u32 s3, s3, %d' % H_OFF)
    nst = 0
    for r in range(2):
        for m in range(5):
            o = 36 + 4 * (nst % 4)
            silu_mul(a, accb(m, r), TMP, o, sCON)
            a.e('buffer_store_dwordx4 %s, v%d, %s, s3 offen' % (vr(o, 4), vST, sr(SWS, 4)))
            a.e('s_add_u32 s3, s3, %d' % (1024 if m < 4 else (112 - 4) * 1024))
            nst += 1
    stamp(a, 9, vSTAMP)
    stamp(a, 11, vSTAMP, real=True)
    stamp_store(a, vSTAMP, SWS, sW8, 8, STAMP_OFF, 8)
    a.lab('K1_END')
    a.e('s_endpgm')
    return a.final()


def gen_k2():
    a = Asm()
    a.sp = 36
    SWS, SOUT = 8, 12
    sW, sRB, sCB, sT, sT2 = 16, 17, 18, 19, 20
    sH = [24, 25]
    sW2 = [26, 27]
    sKVT, sPQ, sWO = 28, [29, 30], [31, 32]
    vST = 1
    vG = [2, 4]
    vOMG = [6, 8]
    vSTAMP = 15
    DF = int(os.environ.get('DF', '10'))
    FB = 16
    HB = FB + 64
    OB = HB + 40
    OP = OB + 16
    TM = OP + 8
    BB = TM + 8
    NV = BB + 64
    accA = lambda rt, nt: vr(FB + 16 * (2 * rt + nt), 16)
    accB = lambda rt, nt: vr(BB + 16 * (2 * rt + nt), 16)

    a.lab('k2_kernel')
    SDBG = 40
    vFLAG = 14
    a.e('s_cmp_ge_u32 s2, 240')
    a.e('s_cbranch_scc1 K2_END')
    a.e('s_load_dwordx4 s[4:7], s[0:1], 64')
    a.e('s_load_dwordx2 s[44:45], s[0:1], 80')
    a.e('s_cmp_lt_u32 s2, 16')
    a.e('s_cbranch_scc1 K2_HELPER')
    a.e('s_sub_u32 s2, s2, 16')
    a.e('v_lshrrev_b32 v8, 6, v0')
    a.e('v_and_b32 v0, 63, v0')
    a.e('v_readfirstlane_b32 s%d, v8' % sW)
    a.e('v_lshlrev_b32 v%d, 4, v0' % vST)
    a.e('s_and_b32 s3, s2, 7')
    a.e('s_lshr_b32 s%d, s2, 3' % sT)
    a.e('s_mul_i32 s%d, s%d, 9363' % (sT2, sT))
    a.e('s_lshr_b32 s%d, s%d, 16' % (sT2, sT2))
    a.e('s_mul_i32 s%d, s%d, 7' % (sCB, sT2))
    a.e('s_sub_u32 s%d, s%d, s%d' % (sCB, sT, sCB))
    a.e('s_lshl_b32 s3, s3, 2')
    a.e('s_add_u32 s%d, s3, s%d' % (sRB, sT2))
    sG, sD = 33, 34
    if ROT:
        a.e('s_lshl_b32 s3, s%d, 1' % sT2)
        a.e('s_add_u32 s3, s3, s%d' % sCB)
        a.e('s_sub_u32 s%d, s3, 7' % sG)
        a.e('s_cmp_ge_u32 s3, 7')
        a.e('s_cselect_b32 s%d, s%d, s3' % (sG, sG))
    else:
        a.e('s_mov_b32 s%d, 0' % sG)
    a.e('s_mul_i32 s%d, s%d, %d' % (sT, sW, 28 * 1024))
    a.e('s_lshl_b32 s3, s%d, 12' % sG)
    a.e('s_add_u32 s%d, s%d, s3' % (sT, sT))
    a.e('s_mul_i32 s%d, s%d, %d' % (sH[0], sRB, 2 * 112 * 1024))
    a.e('s_add_u32 s%d, s%d, s%d' % (sH[0], sH[0], sT))
    a.e('s_add_u32 s%d, s%d, %d' % (sH[0], sH[0], H_OFF))
    a.e('s_add_u32 s%d, s%d, %d' % (sH[1], sH[0], 112 * 1024))
    a.e('s_mul_i32 s%d, s%d, %d' % (sW2[0], sCB, 2 * 112 * 1024))
    a.e('s_add_u32 s%d, s%d, s%d' % (sW2[0], sW2[0], sT))
    a.e('s_add_u32 s%d, s%d, %d' % (sW2[0], sW2[0], W2P_OFF))
    a.e('s_add_u32 s%d, s%d, %d' % (sW2[1], sW2[0], 112 * 1024))
    a.e('s_lshl_b32 s%d, s%d, 13' % (sT, sW))
    a.e('s_add_u32 s%d, s%d, %d' % (sKVT, sT, KVT_OFF))
    a.e('s_lshl_b32 s%d, s%d, 16' % (sPQ[0], sRB))
    a.e('s_add_u32 s%d, s%d, s%d' % (sPQ[0], sPQ[0], sT))
    a.e('s_add_u32 s%d, s%d, %d' % (sPQ[0], sPQ[0], PQ_OFF))
    a.e('s_add_u32 s%d, s%d, %d' % (sPQ[1], sPQ[0], 32768))
    a.e('s_lshl_b32 s%d, s%d, 16' % (sWO[0], sCB))
    a.e('s_add_u32 s%d, s%d, s%d' % (sWO[0], sWO[0], sT))
    a.e('s_add_u32 s%d, s%d, %d' % (sWO[0], sWO[0], WOP_OFF))
    a.e('s_add_u32 s%d, s%d, %d' % (sWO[1], sWO[0], 32768))
    a.e('v_and_b32 v8, 31, v0')
    a.e('v_lshlrev_b32 v8, 2, v8')
    a.e('s_lshl_b32 s%d, s%d, 8' % (sT, sRB))
    a.e('s_add_u32 s%d, s%d, %d' % (sT, sT, G_OFF))
    a.e('s_waitcnt lgkmcnt(0)')
    srd(a, SWS, 44, WS_SRD)
    srd(a, SOUT, 4, SZ_OUT)
    srd(a, SDBG, 6, 256)
    stamp(a, 0, vSTAMP)
    stamp(a, 10, vSTAMP, real=True)
    issued = []

    def ld(dst, sbase, off, tag, agpr=False):
        d = ('a[%d:%d]' % (dst, dst + 3)) if agpr else vr(dst, 4)
        a.e('buffer_load_dwordx4 %s, v%d, %s, s%d offen offset:%d%s' % (d, vST, sr(SWS, 4), sbase, off, ' sc1' if sbase == sKVT else ''))
        issued.append(tag)

    ar = lambda i: 'a[%d:%d]' % (i, i + 3)

    a.e('buffer_load_dword v%d, v8, %s, s%d offen' % (vG[0], sr(SWS, 4), sT))
    a.e('buffer_load_dword v%d, v8, %s, s%d offen offset:128' % (vG[1], sr(SWS, 4), sT))
    issued += ['g', 'g']

    items = []
    hpos = {16: 0, 20: 1, 24: 2, 27: 3}
    for f in range(28):
        items.append(('F', f))
        if f in hpos:
            items.append(('H', hpos[f]))
    FLAG_ISSUE, FLAG_CHECK = 9, 13

    def issue(it):
        kind, idx = it
        if kind == 'F':
            b = (idx % DF) * 16
            off = (idx % 4) * 1024
            ld(b, sH[0], off, it, True)
            ld(b + 4, sH[1], off, it, True)
            ld(b + 8, sW2[0], off, it, True)
            ld(b + 12, sW2[1], off, it, True)
            if idx % 4 == 3:
                a.e('s_add_u32 s%d, s%d, 1' % (sG, sG))
                a.e('s_cmp_eq_u32 s%d, 7' % sG)
                a.e('s_cselect_b32 s%d, 0, s%d' % (sG, sG))
                a.e('s_mov_b32 s%d, 4096' % sD)
                a.e('s_cselect_b32 s%d, 0x%x, s%d' % (sD, (-6 * 4096) & 0xffffffff, sD))
                for s in sH + sW2:
                    a.e('s_add_u32 s%d, s%d, s%d' % (s, s, sD))
        else:
            b = HB
            off = (idx % 2) * 2048
            for j in range(2):
                ld(b + 4 * j, sKVT, off + 1024 * j, it)
            for rt in range(2):
                for j in range(2):
                    ld(b + 8 + 8 * rt + 4 * j, sPQ[rt], off + 1024 * j, it)
            for nt in range(2):
                for j in range(2):
                    ld(b + 24 + 8 * nt + 4 * j, sWO[nt], off + 1024 * j, it)
            if idx % 2 == 1:
                for s in [sKVT] + sPQ + sWO:
                    a.e('s_add_u32 s%d, s%d, 4096' % (s, s))

    def wait_for(it):
        last = max(i for i, t in enumerate(issued) if t == it)
        a.e('s_waitcnt vmcnt(%d)' % min(63, len(issued) - 1 - last))

    firstB = [True]
    firstA = [True]

    def compute(it):
        kind, idx = it
        wait_for(it)
        if kind == 'F':
            b = (idx % DF) * 16
            for rt in range(2):
                for nt in range(2):
                    a.e('v_mfma_f32_32x32x16_bf16 %s, %s, %s, %s' % (accB(rt, nt), ar(b + 8 + 4 * nt), ar(b + 4 * rt),
                                                                   '0' if firstB[0] else accB(rt, nt)))
            firstB[0] = False
        else:
            b = HB
            for rt in range(2):
                a.e('v_mfma_f32_32x32x16_bf16 %s, %s, %s, 0' % (vr(OB, 16), vr(b, 4), vr(b + 8 + 8 * rt, 4)))
                a.e('v_mfma_f32_32x32x16_bf16 %s, %s, %s, %s' % (vr(OB, 16), vr(b + 4, 4), vr(b + 8 + 8 * rt + 4, 4), vr(OB, 16)))
                a.e('v_add_f32 v%d, %s, v%d' % (TM, EPS, OB + 12))
                a.e('v_mov_b32 v%d, v%d' % (TM + 1, TM))
                a.e('v_permlane32_swap_b32 v%d, v%d' % (TM, TM + 1))
                a.e('v_rcp_f32 v%d, v%d' % (TM, TM + 1))
                a.e('v_mul_f32 v%d, v%d, v%d' % (TM, TM, vG[rt]))
                a.e('v_mov_b32 v%d, v%d' % (TM + 1, TM))
                for i in range(8):
                    a.e('v_pk_mul_f32 %s, %s, %s' % (vr(OB + 2 * i, 2), vr(OB + 2 * i, 2), vr(TM, 2)))
                for i in range(8):
                    a.e('v_cvt_pk_bf16_f32 v%d, v%d, v%d' % (OP + i, OB + 2 * i, OB + 2 * i + 1))
                for j in range(2):
                    for nt in range(2):
                        a.e('v_mfma_f32_32x32x16_bf16 %s, %s, %s, %s' % (
                            accA(rt, nt), vr(b + 24 + 8 * nt + 4 * j, 4), vr(OP + 4 * j, 4),
                            '0' if (firstA[0] and j == 0) else accA(rt, nt)))
            firstA[0] = False

    nxt = 0

    def can_issue(k, cur):
        kind, idx = items[k]
        if kind == 'F':
            if idx < DF:
                return True
            return items.index(('F', idx - DF)) < cur
        else:
            if idx < 1:
                return cur > FLAG_CHECK
            return items.index(('H', idx - 1)) < cur

    order = list(range(len(items)))
    pending = list(range(len(items)))
    for cur in range(len(items)):
        progressed = True
        while progressed:
            progressed = False
            for k in pending:
                kind, idx = items[k]
                if can_issue(k, cur) and (k <= cur + DF + 2):
                    issue(items[k])
                    pending.remove(k)
                    progressed = True
                    break
                if kind == 'F':
                    break
        compute(items[cur])
        if cur == FLAG_ISSUE:
            a.e('v_mov_b32 v13, 0')
            a.e('buffer_load_dword v%d, v13, %s, 0 offen sc1' % (vFLAG, sr(SDBG, 4)))
            issued.append('flag')
        if cur == FLAG_CHECK:
            wait_for('flag')
            a.lab('K2_POLL')
            a.e('v_readfirstlane_b32 s3, v%d' % vFLAG)
            a.e('s_cmp_ge_u32 s3, 16')
            a.e('s_cbranch_scc1 K2_READY')
            a.e('s_sleep 2')
            a.e('buffer_load_dword v%d, v13, %s, 0 offen sc1' % (vFLAG, sr(SDBG, 4)))
            a.e('s_waitcnt vmcnt(0)')
            a.e('s_branch K2_POLL')
            a.lab('K2_READY')
        if cur % 8 == 0:
            stamp(a, 1 + cur // 8, vSTAMP)
    stamp(a, 5, vSTAMP)
    for rt in range(2):
        a.e('v_sub_f32 v%d, 1.0, v%d' % (vOMG[rt], vG[rt]))
        a.e('v_cvt_pk_bf16_f32 v%d, v%d, v%d' % (vOMG[rt], vOMG[rt], vOMG[rt]))
        a.e('v_and_b32 v%d, 0xffff0000, v%d' % (vOMG[rt] + 1, vOMG[rt]))
        a.e('v_mov_b32 v%d, v%d' % (vOMG[rt], vOMG[rt] + 1))
        a.e('v_mov_b32 v%d, v%d' % (vG[rt] + 1, vG[rt]))
    a.e('s_lshl_b32 s%d, s%d, 12' % (sT, sW))
    a.e('v_add_u32 v10, s%d, v%d' % (sT, vST))
    R = BB
    for t in range(4):
        rt = t >> 1
        for i in range(8):
            a.e('v_pk_fma_f32 %s, %s, %s, %s' % (vr(R + 16 * t + 2 * i, 2), vr(R + 16 * t + 2 * i, 2), vr(vOMG[rt], 2), vr(FB + 16 * t + 2 * i, 2)))
        for q in range(4):
            a.e('ds_write_b128 v10, %s offset:%d' % (vr(R + 16 * t + 4 * q, 4), 16384 * t + 1024 * q))
    a.e('s_waitcnt lgkmcnt(0)')
    a.e('s_barrier')
    stamp(a, 6, vSTAMP)
    a.e('s_lshl_b32 s%d, s%d, 14' % (sT, sW))
    a.e('v_add_u32 v10, s%d, v%d' % (sT, vST))
    for p in range(4):
        for q in range(4):
            a.e('ds_read_b128 %s, v10 offset:%d' % (vr(R + 16 * p + 4 * q, 4), 4096 * p + 1024 * q))
    a.e('s_lshr_b32 s%d, s%d, 1' % (sT, sW))
    a.e('s_lshl_b32 s%d, s%d, 1' % (sT2, sRB))
    a.e('s_add_u32 s%d, s%d, s%d' % (sT, sT, sT2))
    a.e('s_mul_i32 s%d, s%d, %d' % (sT, sT, 32 * 896))
    a.e('s_and_b32 s%d, s%d, 1' % (sT2, sW))
    a.e('s_lshl_b32 s%d, s%d, 6' % (sT2, sT2))
    a.e('s_add_u32 s%d, s%d, s%d' % (sT, sT, sT2))
    a.e('s_lshl_b32 s%d, s%d, 7' % (sT2, sCB))
    a.e('s_add_u32 s%d, s%d, s%d' % (sT, sT, sT2))
    a.e('v_and_b32 v9, 31, v0')
    a.e('v_mul_u32_u24 v9, 896, v9')
    a.e('v_lshrrev_b32 v10, 5, v0')
    a.e('v_lshl_add_u32 v9, v10, 5, v9')
    a.e('s_waitcnt lgkmcnt(0)')
    for i in range(8):
        a.e('v_pk_add_f32 %s, %s, %s' % (vr(R + 2 * i, 2), vr(R + 2 * i, 2), vr(R + 16 + 2 * i, 2)))
        a.e('v_pk_add_f32 %s, %s, %s' % (vr(R + 32 + 2 * i, 2), vr(R + 32 + 2 * i, 2), vr(R + 48 + 2 * i, 2)))
    for i in range(8):
        a.e('v_pk_add_f32 %s, %s, %s' % (vr(R + 2 * i, 2), vr(R + 2 * i, 2), vr(R + 32 + 2 * i, 2)))
    for i in range(8):
        a.e('v_cvt_pk_bf16_f32 v%d, v%d, v%d' % (HB + i, R + 2 * i, R + 2 * i + 1))
    a.e('buffer_store_dwordx4 %s, v9, %s, s%d offen' % (vr(HB, 4), sr(SOUT, 4), sT))
    a.e('buffer_store_dwordx4 %s, v9, %s, s%d offen offset:16' % (vr(HB + 4, 4), sr(SOUT, 4), sT))
    stamp(a, 9, vSTAMP)
    stamp(a, 11, vSTAMP, real=True)
    stamp_store(a, vSTAMP, SWS, sW, 4, STAMP_OFF + (1 << 20), 8)
    a.lab('K2_END')
    a.e('s_endpgm')
    a.lab('K2_HELPER')
    a.e('v_lshlrev_b32 v1, 4, v0')
    a.e('s_lshl_b32 s3, s2, 15')
    a.e('s_add_u32 s3, s3, %d' % KVP_OFF)
    a.e('s_waitcnt lgkmcnt(0)')
    srd(a, SWS, 44, WS_SRD)
    srd(a, SDBG, 6, 256)
    for p_ in range(8):
        a.e('buffer_load_dwordx4 %s, v1, %s, s3 offen' % (vr(4 + 4 * p_, 4), sr(SWS, 4)))
        a.e('s_add_u32 s3, s3, 4096')
    a.e('v_cmp_le_u32 vcc, 224, v0')
    a.e('v_lshrrev_b32 v2, 7, v0')
    a.e('v_lshlrev_b32 v2, 10, v2')
    a.e('v_and_b32 v3, 63, v0')
    a.e('v_lshl_add_u32 v2, v3, 4, v2')
    a.e('v_bfe_u32 v3, v0, 6, 1')
    a.e('v_lshl_add_u32 v2, v3, 3, v2')
    a.e('s_lshl_b32 s3, s2, 11')
    a.e('s_add_u32 s3, s3, %d' % KVT_OFF)
    for p_ in range(1, 8):
        a.e('s_waitcnt vmcnt(%d)' % (7 - p_))
        a.e('v_pk_add_f32 v[4:5], v[4:5], %s' % vr(4 + 4 * p_, 2))
        a.e('v_pk_add_f32 v[6:7], v[6:7], %s' % vr(6 + 4 * p_, 2))
    for k in range(4):
        a.e('v_cndmask_b32 v%d, v%d, 0, vcc' % (4 + k, 4 + k))
    a.e('v_cvt_pk_bf16_f32 v8, v4, v5')
    a.e('v_cvt_pk_bf16_f32 v9, v6, v7')
    a.e('buffer_store_dwordx2 v[8:9], v2, %s, s3 offen sc1' % sr(SWS, 4))
    a.e('s_waitcnt vmcnt(0)')
    a.e('s_barrier')
    a.e('v_cmp_eq_u32 vcc, 0, v0')
    a.e('s_and_saveexec_b64 s[20:21], vcc')
    a.e('s_cbranch_execz K2_HEND')
    a.e('v_mov_b32 v10, 1')
    a.e('v_mov_b32 v11, 0')
    a.e('buffer_atomic_add v10, v11, %s, 0 offen' % sr(SDBG, 4))
    a.lab('K2_HEND')
    a.e('s_endpgm')
    return a.final(), NV


def kd(name, accoff, nfv, nsg):
    return '''.amdhsa_kernel %s
  .amdhsa_next_free_vgpr %d
  .amdhsa_next_free_sgpr %d
  .amdhsa_accum_offset %d
  .amdhsa_group_segment_fixed_size 0
  .amdhsa_kernarg_size 88
  .amdhsa_user_sgpr_count 2
  .amdhsa_user_sgpr_kernarg_segment_ptr 1
  .amdhsa_system_sgpr_workgroup_id_x 1
  .amdhsa_float_denorm_mode_32 3
.end_amdhsa_kernel
''' % (name, nfv, nsg, accoff)


def main(out):
    k1 = gen_k1()
    pol = os.environ.get('STPOL', 'sc1')
    if pol:
        k1 = '\n'.join((ln + ' ' + pol) if ('buffer_store_dwordx4' in ln and 'sc1' not in ln) else ln for ln in k1.split('\n'))
    k2, nv2 = gen_k2()
    acc2 = (nv2 + 3) // 4 * 4
    s = '; generated by gen/gen9.py\n'
    s += '; @launch kernel=k1_kernel grid=(256,1,1) block=(512,1,1) lds=%d\n' % LDS_K1
    s += '; @launch kernel=k2_kernel grid=(240,1,1) block=(256,1,1) lds=65536\n'
    s += '.amdgcn_target "amdgcn-amd-amdhsa--gfx950"\n.text\n'
    for nm, body in (('k1_kernel', k1), ('k2_kernel', k2)):
        s += '.globl %s\n.p2align 8\n.type %s,@function\n' % (nm, nm) + body
    s += '.section .rodata,"a"\n.p2align 6\n'
    s += kd('k1_kernel', 256, 256, 102)
    s += '.p2align 6\n' + kd('k2_kernel', acc2, acc2 + 256, 48)
    open(out, 'w').write(s)


if __name__ == '__main__':
    main(sys.argv[1] if len(sys.argv) > 1 else 'cdna_kernels/%s.s' % NAME)
```

```python
import sys, os
sys.path.insert(0, 'gen')
from asmlib import Asm

NAME = 'gated_mix__linear_attn_block__glu_gated_swiglu__prompt'
PQ_OFF = 0
H_OFF = PQ_OFF + 64 * 16 * 2 * 1024
KVP_OFF = H_OFF + 64 * 112 * 1024
KVT_OFF = KVP_OFF + 16 * 8 * 4096
W2P_OFF = KVT_OFF + 16 * 2 * 1024
WOP_OFF = W2P_OFF + 14 * 112 * 1024
G_OFF = WOP_OFF + 14 * 16 * 2 * 1024
WS_BYTES = G_OFF + 2048 * 4
WS_SRD = 32 << 20

SZ_X = 2048 * 448 * 2
SZ_WQKV = 448 * 1344 * 2
SZ_WO = 448 * 448 * 2
SZ_W1 = 448 * 1792 * 2
SZ_W2 = 1792 * 448 * 2
SZ_GW = 448 * 2
SZ_OUT = 2048 * 448 * 2

STAGE = 53376
XREG = 32768
WOFF_A = [0, 4096, 8192, 12288, 16384 + 32]
WOFF_B = [0, 10368]
GWX = 3 * STAGE
LDS_K1 = 163840
LOG2E = '0x3fb8aa3b'
NLOG2E = '0xbfb8aa3b'
EPS = '0x358637bd'

STAMPS = os.environ.get('STAMPS', '0') == '1'
STAMP_OFF = 16 << 20
PREFETCH = os.environ.get('PREFETCH', '0') == '1'
ROT = os.environ.get('ROT', '0') == '1'
EARLY = os.environ.get('EARLY', '0') == '1'
PF2 = os.environ.get('PF2', '0') == '1'
MAP = os.environ.get('MAP', 'blk')


def stamp(a, k, vreg, sp=None, real=False):
    if not STAMPS:
        return
    sp = a.sp
    a.e('%s s[%d:%d]' % ('s_memrealtime' if real else 's_memtime', sp, sp + 1))
    a.e('s_waitcnt lgkmcnt(0)')
    a.e('v_writelane_b32 v%d, s%d, %d' % (vreg, sp, k))


def stamp_store(a, vreg, srdws, wave_sgpr, nwaves, base, tmpv, sp=None):
    if not STAMPS:
        return
    sp = a.sp
    a.e('s_mul_i32 s%d, s2, %d' % (sp, nwaves))
    a.e('s_add_u32 s%d, s%d, s%d' % (sp, sp, wave_sgpr))
    a.e('s_lshl_b32 s%d, s%d, 8' % (sp, sp))
    a.e('s_add_u32 s%d, s%d, %d' % (sp, sp, base))
    a.e('v_lshlrev_b32 v%d, 2, v0' % tmpv)
    a.e('buffer_store_dword v%d, v%d, s[%d:%d], s%d offen' % (vreg, tmpv, srdws, srdws + 3, sp))


def v(i):
    return 'v%d' % i


def vr(i, n):
    return 'v[%d:%d]' % (i, i + n - 1)


def sr(i, n):
    return 's[%d:%d]' % (i, i + n - 1)


def srd(a, d, lo, size):
    a.e('s_mov_b32 s%d, s%d' % (d, lo))
    a.e('s_and_b32 s%d, s%d, 0xffff' % (d + 1, lo + 1))
    a.e('s_mov_b32 s%d, 0x%x' % (d + 2, size))
    a.e('s_mov_b32 s%d, 0x00020000' % (d + 3))


def phi16(a, R, T, O, sC):
    for i in range(8):
        a.e('v_pk_mul_f32 %s, %s, %s' % (vr(T + 2 * i, 2), vr(R + 2 * i, 2), sr(sC, 2)))
    for i in range(16):
        a.e('v_exp_f32 v%d, v%d clamp' % (T + i, T + i))
    for i in range(16):
        a.e('v_max_f32 v%d, 0, v%d' % (R + i, R + i))
    for i in range(8):
        a.e('v_pk_add_f32 %s, %s, %s' % (vr(R + 2 * i, 2), vr(R + 2 * i, 2), sr(sC + 2, 2)))
    for i in range(8):
        a.e('v_pk_add_f32 %s, %s, %s' % (vr(R + 2 * i, 2), vr(R + 2 * i, 2), vr(T + 2 * i, 2)))
    for i in range(8):
        a.e('v_cvt_pk_bf16_f32 v%d, v%d, v%d' % (O + i, R + 2 * i, R + 2 * i + 1))


def silu_mul(a, R, T, O, sC):
    for i in range(4):
        a.e('v_pk_mul_f32 %s, %s, %s' % (vr(T + 2 * i, 2), vr(R + 2 * i, 2), sr(sC + 4, 2)))
    for i in range(8):
        a.e('v_exp_f32 v%d, v%d' % (T + i, T + i))
    for i in range(4):
        a.e('v_pk_mul_f32 %s, %s, %s' % (vr(R + 2 * i, 2), vr(R + 2 * i, 2), vr(R + 8 + 2 * i, 2)))
    for i in range(4):
        a.e('v_pk_add_f32 %s, %s, %s' % (vr(T + 2 * i, 2), vr(T + 2 * i, 2), sr(sC + 6, 2)))
    for i in range(8):
        a.e('v_rcp_f32 v%d, v%d' % (T + i, T + i))
    for i in range(4):
        a.e('v_pk_mul_f32 %s, %s, %s' % (vr(R + 2 * i, 2), vr(R + 2 * i, 2), vr(T + 2 * i, 2)))
    for i in range(4):
        a.e('v_cvt_pk_bf16_f32 v%d, v%d, v%d' % (O + i, R + 2 * i, R + 2 * i + 1))


def consts(a, sC):
    for k, val in enumerate([LOG2E, LOG2E, EPS, EPS, NLOG2E, NLOG2E, '0x3f800000', '0x3f800000']):
        a.e('s_mov_b32 s%d, %s' % (sC + k, val))


def gen_k1():
    a = Asm()
    a.sp = 100
    SX, SWQKV, SW1, SW3, SWS, SW2, SWO, SGW, SDBG = 24, 28, 32, 36, 40, 44, 48, 52, 56
    SLX = 60
    SOFF = [64, 65, 66, 67, 68]
    DEST = [69, 70, 71, 72, 73]
    sW, sRB, sC, sCB, sXD, sT, sT2, sT3 = 74, 75, 76, 77, 78, 79, 80, 81
    sCON = 84
    sEX = 92
    sW8 = 82
    sCH, sXK, sD1, sD2 = 83, 94, 95, 23
    sGWM = 22
    ACC = 96
    WF = [16, 36]
    XF = [56, 64]
    vTID = 1
    vXO = [2, 3]
    vWO = [4, 5, 6, 7, 72]
    vXA = [73, 74, 75, 76]
    vKV, vGU, vQ0, vQ1, vQI, vC128, vST = 77, 78, 79, 80, 81, 82, 83
    vSTAMP = 95
    accb = lambda t, r: ACC + 16 * (2 * t + r)

    a.lab('k1_kernel')
    a.e('s_cmp_ge_u32 s2, 256')
    a.e('s_cbranch_scc1 K1_END')
    a.e('s_load_dwordx4 s[4:7], s[0:1], 0')
    a.e('s_load_dwordx2 s[8:9], s[0:1], 16')
    a.e('s_load_dwordx4 s[12:15], s[0:1], 32')
    a.e('s_load_dwordx4 s[16:19], s[0:1], 48')
    a.e('s_load_dwordx4 s[96:99], s[0:1], 72')
    a.e('v_mov_b32 v%d, v0' % vTID)
    a.e('v_lshrrev_b32 v8, 6, v0')
    a.e('v_and_b32 v0, 63, v0')
    a.e('v_readfirstlane_b32 s%d, v8' % sW8)
    if MAP == 'old':
        a.e('s_and_b32 s3, s2, 7')
        a.e('s_lshr_b32 s%d, s2, 3' % sT)
        a.e('s_and_b32 s%d, s%d, 3' % (sT2, sT))
        a.e('s_lshl_b32 s3, s3, 2')
        a.e('s_add_u32 s%d, s3, s%d' % (sCB, sT2))
        a.e('s_lshr_b32 s%d, s%d, 2' % (sRB, sT))
    elif MAP == 'bad':
        a.e('s_and_b32 s%d, s2, 7' % sRB)
        a.e('s_lshr_b32 s%d, s2, 3' % sCB)
    else:
        a.e('s_lshr_b32 s%d, s2, 6' % sT)
        a.e('s_add_u32 s3, s2, s%d' % sT)
        a.e('s_and_b32 s3, s3, 7')
        a.e('s_lshl_b32 s%d, s%d, 3' % (sT2, sT))
        a.e('s_add_u32 s%d, s%d, s3' % (sCB, sT2))
        a.e('s_lshr_b32 s%d, s2, 3' % sRB)
        a.e('s_and_b32 s%d, s%d, 7' % (sRB, sRB))
    a.e('s_lshr_b32 s%d, s%d, 1' % (sC, sCB))
    a.e('s_and_b32 s%d, s%d, 3' % (sW, sW8))
    if ROT:
        a.e('s_and_b32 s3, s%d, 3' % sCB)
        a.e('s_lshl_b32 s3, s3, 1')
        a.e('s_add_u32 s3, s3, s%d' % sRB)
        a.e('s_sub_u32 s%d, s3, 7' % sCH)
        a.e('s_cmp_ge_u32 s3, 7')
        a.e('s_cselect_b32 s%d, s%d, s3' % (sCH, sCH))
    else:
        a.e('s_mov_b32 s%d, 0' % sCH)
    a.e('s_lshl_b32 s%d, s%d, 7' % (sXK, sCH))
    a.e('v_and_b32 v%d, 255, v%d' % (vTID, vTID))
    consts(a, sCON)
    a.e('s_lshl_b32 s%d, s%d, 8' % (sT, sRB))
    a.e('s_lshl_b32 s%d, s%d, 6' % (sT2, sW))
    a.e('s_add_u32 s%d, s%d, s%d' % (sT, sT, sT2))
    a.e('v_lshrrev_b32 v8, 3, v0')
    a.e('v_add_u32 v8, s%d, v8' % sT)
    a.e('v_mul_u32_u24 v8, 896, v8')
    a.e('v_and_b32 v9, 7, v0')
    a.e('v_lshrrev_b32 v10, 4, v0')
    a.e('v_xor_b32 v11, v9, v10')
    a.e('v_lshl_add_u32 v%d, v11, 4, v8' % vXO[0])
    a.e('v_xor_b32 v11, 4, v11')
    a.e('v_lshl_add_u32 v%d, v11, 4, v8' % vXO[1])
    a.e('s_lshl_b32 s%d, s%d, 13' % (sXD, sW))
    a.e('v_and_b32 v8, 31, v0')
    a.e('v_lshrrev_b32 v9, 5, v0')
    a.e('v_bfe_u32 v10, v8, 1, 3')
    a.e('v_lshlrev_b32 v11, 7, v8')
    a.e('v_add_u32 v11, s%d, v11' % sXD)
    for ks in range(4):
        a.e('v_add_u32 v12, %d, v9' % (2 * ks))
        a.e('v_xor_b32 v12, v12, v10')
        a.e('v_lshl_add_u32 v%d, v12, 4, v11' % vXA[ks])
    a.e('v_lshlrev_b32 v%d, 4, v0' % vST)
    a.e('v_bfe_u32 v10, v0, 4, 1')
    a.e('v_bfe_u32 v11, v0, 2, 2')
    a.e('v_and_b32 v12, 3, v0')
    a.e('v_lshl_add_u32 v13, v9, 3, v11')
    a.e('v_and_b32 v14, 1, v12')
    a.e('v_lshlrev_b32 v14, 1, v14')
    a.e('v_lshrrev_b32 v15, 1, v12')
    a.e('v_add_u32 v14, v14, v15')
    a.e('v_lshlrev_b32 v14, 3, v14')
    a.e('s_waitcnt lgkmcnt(0)')
    srd(a, SX, 4, SZ_X)
    srd(a, SWQKV, 6, SZ_WQKV)
    srd(a, SW1, 12, SZ_W1)
    srd(a, SW3, 14, SZ_W1)
    srd(a, SWS, 98, WS_SRD)
    srd(a, SW2, 16, SZ_W2)
    srd(a, SWO, 8, SZ_WO)
    srd(a, SGW, 18, SZ_GW)
    srd(a, SDBG, 96, 256)
    stamp(a, 0, vSTAMP)
    stamp(a, 10, vSTAMP, real=True)
    a.e('s_and_b32 s%d, s%d, 1' % (sT, sCB))
    a.e('s_cmp_eq_u32 s%d, 1' % sT)
    a.e('s_cbranch_scc1 K1_TYPEB')

    def dma_chunk(i, slot_srd, slot_step):
        sb = (i % 3) * STAGE
        for q in range(8):
            a.e('s_add_u32 m0, s%d, %d' % (sXD, sb + q * 1024))
            a.e('s_add_u32 s%d, s%d, %d' % (sT, sXK, q * 7168))
            a.e('buffer_load_dwordx4 v%d, %s, s%d offen lds' % (vXO[q & 1], sr(SX, 4), sT))
        a.e('s_add_u32 s%d, s%d, 1' % (sCH, sCH))
        a.e('s_cmp_eq_u32 s%d, 7' % sCH)
        a.e('s_cselect_b32 s%d, 0, s%d' % (sCH, sCH))
        a.e('s_mov_b32 s%d, %d' % (sD1, 64 * 2688))
        a.e('s_cselect_b32 s%d, 0x%x, s%d' % (sD1, (-6 * 64 * 2688) & 0xffffffff, sD1))
        a.e('s_mov_b32 s%d, %d' % (sD2, 64 * 3584))
        a.e('s_cselect_b32 s%d, 0x%x, s%d' % (sD2, (-6 * 64 * 3584) & 0xffffffff, sD2))
        a.e('s_lshl_b32 s%d, s%d, 7' % (sXK, sCH))
        for j in range(5):
            a.e('s_add_u32 m0, s%d, %d' % (DEST[j], sb))
            a.e('s_nop 0')
            a.e('buffer_load_dwordx4 v%d, %s, s%d offen lds' % (vWO[j], sr(slot_srd[j], 4), SOFF[j]))
            a.e('s_add_u32 s%d, s%d, s%d' % (SOFF[j], SOFF[j], sD1 if slot_step[j] == 64 * 2688 else sD2))

    def main_loop(typ, slot_srd, slot_step, extra_at_b5=None, pre_wait=None, loader_tail=None):
        def reads(n):
            i, ks = divmod(n, 4)
            st = n & 1
            L = []
            L.append('ds_read_b128 %s, v%d' % (vr(XF[st], 4), vXA[ks]))
            L.append('ds_read_b128 %s, v%d offset:4096' % (vr(XF[st] + 4, 4), vXA[ks]))
            for t in range(5):
                for rd in range(2):
                    dst = vr(WF[st] + 4 * t + 2 * rd, 2)
                    if typ == 'A':
                        if t == 0:
                            L.append('ds_read_b64_tr_b16 %s, v%d' % (dst, vQ0 if rd == 0 else vQ1))
                        elif t in (1, 2):
                            L.append('ds_read_b64_tr_b16 %s, v%d offset:%d' % (dst, vKV, 4096 * t + ks * 1024 + rd * 256))
                        else:
                            L.append('ds_read_b64_tr_b16 %s, v%d offset:%d' % (dst, vGU, 32 * (t - 3) + ks * 1024 + rd * 256))
                    else:
                        L.append('ds_read_b64_tr_b16 %s, v%d offset:%d' % (dst, vGU, 32 * t + ks * 2560 + rd * 640))
            return L

        def addr_adv(n):
            i, ks = divmod(n, 4)
            if ks == 0:
                delta = STAGE if (i % 3) != 0 else -2 * STAGE
                for r in vXA + [vGU] + ([vKV] if typ == 'A' else []):
                    a.e('v_add_u32 v%d, %d, v%d' % (r, delta, r) if delta > 0 else
                        'v_subrev_u32 v%d, %d, v%d' % (r, -delta, r))
                if typ == 'A':
                    d2 = (delta - 3 * 1024) & 0xffffffff
                    a.e('s_add_u32 s%d, s%d, 1' % (sCH, sCH))
                    a.e('s_cmp_eq_u32 s%d, 7' % sCH)
                    a.e('s_cselect_b32 s%d, 0, s%d' % (sCH, sCH))
                    a.e('s_mov_b32 s3, 128')
                    a.e('s_cselect_b32 s3, 0x%x, s3' % ((-3456) & 0xffffffff))
                    a.e('v_mov_b32 v8, 0x%x' % d2)
                    a.e('v_mov_b32 v9, s3')
                    a.e('v_cndmask_b32 v8, v8, v9, %s' % sr(sGWM, 2))
                    a.e('v_add_u32 v%d, v8, v%d' % (vQ0, vQ0))
                    a.e('v_add_u32 v%d, v8, v%d' % (vQ1, vQ1))
            elif typ == 'A':
                a.e('v_add_u32 v%d, v%d, v%d' % (vQ0, vQI, vQ0))
                a.e('v_add_u32 v%d, v%d, v%d' % (vQ1, vQI, vQ1))

        def mfma(n, t, r):
            st = n & 1
            acc = vr(accb(t, r), 16)
            wf = vr(WF[st] + 4 * t, 4)
            xf = vr(XF[st] + 4 * r, 4)
            c = acc if n > 0 else '0'
            if typ == 'A' and t in (1, 2):
                a.e('v_mfma_f32_32x32x16_bf16 %s, %s, %s, %s' % (acc, xf, wf, c))
            else:
                a.e('v_mfma_f32_32x32x16_bf16 %s, %s, %s, %s' % (acc, wf, xf, c))

        for j in range(5):
            a.e('s_mul_i32 s3, s%d, %d' % (sCH, slot_step[j]))
            a.e('s_add_u32 s%d, s%d, s3' % (SOFF[j], SOFF[j]))
        if typ == 'A':
            a.e('s_lshl_b32 s3, s%d, 9' % sCH)
            a.e('v_mov_b32 v8, s3')
            a.e('v_cndmask_b32 v8, 0, v8, %s' % sr(sGWM, 2))
            a.e('v_add_u32 v%d, v8, v%d' % (vQ0, vQ0))
            a.e('v_add_u32 v%d, v8, v%d' % (vQ1, vQ1))
        a.e('s_cmp_lt_u32 s%d, 4' % sW8)
        a.e('s_cbranch_scc1 K1%s_COMPUTE' % typ)
        outstanding = []
        dma_chunk(0, slot_srd, slot_step)
        outstanding.append(13)
        stamp(a, 1, vSTAMP)
        outstanding.append(0)
        if pre_wait:
            pre_wait(sum(outstanding))
        if not EARLY:
            dma_chunk(1, slot_srd, slot_step)
            outstanding.append(13)
        stamp(a, 2, vSTAMP)
        a.e('s_waitcnt vmcnt(%d) lgkmcnt(0)' % sum(outstanding[1:]))
        outstanding.pop(0)
        stamp(a, 3, vSTAMP)
        a.e('s_barrier')
        if EARLY:
            dma_chunk(1, slot_srd, slot_step)
            outstanding.append(13)
        dma_chunk(2, slot_srd, slot_step)
        outstanding.append(13)
        if PREFETCH:
            npf = 0
            a.e('s_lshr_b32 s3, s2, 3')
            a.e('s_lshl_b32 s3, s3, 6')
            a.e('v_add_u32 v16, s3, v0')
            a.e('v_mul_u32_u24 v16, 896, v16')
            a.e('s_lshl_b32 s3, s%d, 7' % sW)
            a.e('s_add_u32 s3, s3, 384')
            a.e('buffer_load_dword v17, v16, %s, s3 offen' % sr(SX, 4))
            npf += 1
            a.e('s_and_b32 s%d, s%d, 3' % (sT2, sRB))
            for j in range(5):
                a.e('s_mul_i32 s3, s%d, %d' % (sT2, slot_step[j]))
                a.e('s_add_u32 s3, s3, s%d' % SOFF[j])
                a.e('buffer_load_dwordx4 %s, v%d, %s, s3 offen' % (vr(20 + 4 * j, 4), vWO[j], sr(slot_srd[j], 4)))
                npf += 1
            outstanding[-1] += npf
        outstanding = [outstanding[0] + outstanding[1]] + outstanding[2:]
        for i in range(6):
            a.e('s_waitcnt vmcnt(%d)' % sum(outstanding[1:]))
            outstanding.pop(0)
            a.e('s_barrier')
            if i + 3 <= 6:
                dma_chunk(i + 3, slot_srd, slot_step)
                outstanding.append(13)
            elif i == 4 and extra_at_b5:
                outstanding.append(extra_at_b5())
        if loader_tail:
            loader_tail()
        stamp(a, 9, vSTAMP)
        stamp(a, 11, vSTAMP, real=True)
        stamp_store(a, vSTAMP, SWS, sW8, 8, STAMP_OFF, 8)
        a.e('s_endpgm')
        a.lab('K1%s_COMPUTE' % typ)
        if PF2:
            a.e('s_lshr_b32 s3, s2, 3')
            a.e('s_lshl_b32 s3, s3, 2')
            a.e('s_add_u32 s3, s3, s%d' % sW)
            a.e('s_mul_i32 s3, s3, %d' % (16 * 896))
            a.e('v_lshlrev_b32 v16, 7, v0')
            a.e('v_min_u32 v17, %d, v16' % (47 * 128))
            a.e('buffer_load_dword v18, v16, %s, s3 offen' % sr(SX, 4))
            a.e('s_add_u32 s3, s3, 8192')
            a.e('buffer_load_dword v19, v17, %s, s3 offen' % sr(SX, 4))
            a.e('v_min_u32 v16, 55, v0')
            a.e('s_mul_i32 s3, s%d, 56' % sRB)
            a.e('v_add_u32 v16, s3, v16')
            a.e('v_mul_u32_u24 v17, 3584, v16')
            a.e('v_mul_u32_u24 v16, 2688, v16')
            if typ == 'A':
                a.e('s_mul_i32 s%d, s%d, 56' % (sT, sC))
                a.e('s_lshl_b32 s%d, s%d, 6' % (sT2, sC))
                tg = []
                for rho in range(3):
                    tg.append((SWQKV, 16, sT, rho * 896))
                    tg.append((SWQKV, 16, sT, rho * 896 + 52))
                tg.append((SW1, 17, sT2, 0))
                tg.append((SW3, 17, sT2, 0))
            else:
                a.e('s_mul_i32 s%d, s%d, 160' % (sT, sC))
                a.e('s_add_u32 s%d, s%d, 1024' % (sT, sT))
                tg = [(sd, 17, sT, o) for sd in (SW1, SW3) for o in (0, 80, 156)]
            for w in range(4):
                mine = tg[2 * w:2 * w + 2]
                if not mine:
                    continue
                a.e('s_cmp_lg_u32 s%d, %d' % (sW, w))
                a.e('s_cbranch_scc1 K1%s_PF%d' % (typ, w))
                for n_, (sd, vv, ss, off) in enumerate(mine):
                    a.e('buffer_load_dword v%d, v%d, %s, s%d offen offset:%d' % (20 + n_, vv, sr(sd, 4), ss, off))
                a.lab('K1%s_PF%d' % (typ, w))
        a.e('s_barrier')
        stamp(a, 1, vSTAMP)
        for s in reads(0):
            a.e(s)
        for n in range(28):
            i, ks = divmod(n, 4)
            a.c('step %d' % n)
            a.e('s_waitcnt lgkmcnt(0)')
            if ks == 3 and i < 6:
                a.e('s_barrier')
                stamp(a, 2 + i, vSTAMP)
            mfma(n, 0, 0)
            R = []
            if n + 1 < 28:
                addr_adv(n + 1)
                R = reads(n + 1)
            k = 0
            for m in range(1, 10):
                for s in R[k:k + 2]:
                    a.e(s)
                k += 2
                mfma(n, m // 2, m % 2)
        stamp(a, 8, vSTAMP)

    a.e('v_lshl_add_u32 v15, v10, 2, v12')
    a.e('v_and_b32 v8, 6, v15')
    a.e('v_cmp_eq_u32 vcc, 6, v8')
    a.e('v_xor_b32 v8, 1, v15')
    a.e('v_cndmask_b32 v8, v15, v8, vcc')
    a.e('v_lshlrev_b32 v8, 3, v8')
    a.e('v_lshl_add_u32 v8, v13, 6, v8')
    a.e('v_add_u32 v%d, %d, v8' % (vKV, XREG))
    a.e('v_cmp_eq_u32 %s, 7, v15' % sr(sGWM, 2))
    a.e('v_lshlrev_b32 v9, 3, v13')
    a.e('v_add_u32 v9, %d, v9' % GWX)
    a.e('v_cndmask_b32 v%d, v%d, v9, %s' % (vQ0, vKV, sr(sGWM, 2)))
    a.e('v_add_u32 v8, 256, v%d' % vKV)
    a.e('v_add_u32 v9, 32, v9')
    a.e('v_cndmask_b32 v%d, v8, v9, %s' % (vQ1, sr(sGWM, 2)))
    a.e('v_mov_b32 v%d, 128' % vC128)
    a.e('v_mov_b32 v8, 1024')
    a.e('v_cndmask_b32 v%d, v8, v%d, %s' % (vQI, vC128, sr(sGWM, 2)))
    a.e('v_mul_u32_u24 v8, %d, v10' % (WOFF_A[4] - WOFF_A[3]))
    a.e('v_lshl_add_u32 v8, v13, 6, v8')
    a.e('v_add_u32 v8, v14, v8')
    a.e('v_add_u32 v%d, %d, v8' % (vGU, XREG + WOFF_A[3]))
    a.e('v_lshrrev_b32 v8, 2, v0')
    a.e('v_and_b32 v9, 3, v0')
    a.e('v_lshlrev_b32 v10, 4, v9')
    a.e('v_cmp_eq_u32 vcc, 3, v9')
    a.e('v_mov_b32 v11, 40')
    a.e('v_cndmask_b32 v11, v10, v11, vcc')
    a.e('v_mul_u32_u24 v12, 2688, v8')
    a.e('v_add_u32 v12, v12, v11')
    a.e('v_mul_u32_u24 v13, 3584, v8')
    a.e('v_add_u32 v13, v13, v10')
    a.e('s_mul_i32 s%d, s%d, 56' % (sT, sC))
    a.e('v_add_u32 v%d, s%d, v12' % (vWO[0], sT))
    a.e('v_mov_b32 v%d, v%d' % (vWO[1], vWO[0]))
    a.e('v_mov_b32 v%d, v%d' % (vWO[2], vWO[0]))
    a.e('s_lshl_b32 s3, s%d, 6' % sC)
    a.e('v_add_u32 v%d, s3, v13' % vWO[3])
    a.e('v_mov_b32 v%d, v%d' % (vWO[4], vWO[3]))
    a.e('s_mul_i32 s%d, s%d, %d' % (SOFF[0], sW, 16 * 2688))
    a.e('s_add_u32 s%d, s%d, 896' % (SOFF[1], SOFF[0]))
    a.e('s_add_u32 s%d, s%d, 1792' % (SOFF[2], SOFF[0]))
    a.e('s_mul_i32 s%d, s%d, %d' % (SOFF[3], sW, 16 * 3584))
    a.e('s_mov_b32 s%d, s%d' % (SOFF[4], SOFF[3]))
    a.e('s_lshl_b32 s3, s%d, 10' % sW)
    for j in range(5):
        a.e('s_add_u32 s%d, s3, %d' % (DEST[j], XREG + WOFF_A[j]))
    a.e('v_lshlrev_b32 v8, 1, v%d' % vTID)
    a.e('buffer_load_ushort v10, v8, %s, 0 offen' % sr(SGW, 4))
    a.e('buffer_load_ushort v12, v8, %s, 0 offen offset:512' % sr(SGW, 4))

    def pre_wait_A(nout):
        a.e('s_waitcnt vmcnt(%d)' % nout)
        a.e('v_lshl_or_b32 v10, v10, 16, v10')
        a.e('v_mov_b32 v11, v10')
        a.e('v_lshl_or_b32 v12, v12, 16, v12')
        a.e('v_mov_b32 v13, v12')
        a.e('v_lshlrev_b32 v8, 3, v%d' % vTID)
        a.e('v_add_u32 v8, %d, v8' % GWX)
        a.e('ds_write_b64 v8, v[10:11]')
        a.e('v_cmp_gt_u32 vcc, 192, v%d' % vTID)
        a.e('s_and_saveexec_b64 %s, vcc' % sr(sEX, 2))
        a.e('ds_write_b64 v8, v[12:13] offset:2048')
        a.e('s_mov_b64 exec, %s' % sr(sEX, 2))

    def kv_tail():
        RED = STAGE
        a.e('s_barrier')
        a.e('s_cmp_lg_u32 s%d, 0' % sW)
        a.e('s_cbranch_scc1 K1A_DONE')
        KR = ACC
        a.e('v_add_u32 v8, %d, v%d' % (RED, vST))
        for p in range(4):
            for q in range(4):
                a.e('ds_read_b128 %s, v8 offset:%d' % (vr(KR + 16 * p + 4 * q, 4), 4096 * p + 1024 * q))
        a.e('s_lshl_b32 s3, s%d, 3' % sC)
        a.e('s_add_u32 s3, s3, s%d' % sRB)
        a.e('s_lshl_b32 s3, s3, 12')
        a.e('s_add_u32 s3, s3, %d' % KVP_OFF)
        a.e('s_waitcnt lgkmcnt(0)')
        for i in range(8):
            a.e('v_pk_add_f32 %s, %s, %s' % (vr(KR + 2 * i, 2), vr(KR + 2 * i, 2), vr(KR + 16 + 2 * i, 2)))
            a.e('v_pk_add_f32 %s, %s, %s' % (vr(KR + 32 + 2 * i, 2), vr(KR + 32 + 2 * i, 2), vr(KR + 48 + 2 * i, 2)))
        for i in range(8):
            a.e('v_pk_add_f32 %s, %s, %s' % (vr(KR + 2 * i, 2), vr(KR + 2 * i, 2), vr(KR + 32 + 2 * i, 2)))
        for q in range(4):
            a.e('buffer_store_dwordx4 %s, v%d, %s, s3 offen offset:%d sc1' % (vr(KR + 4 * q, 4), vST, sr(SWS, 4), 1024 * q))
        a.lab('K1A_DONE')

    main_loop('A', [SWQKV, SWQKV, SWQKV, SW1, SW3], [64 * 2688] * 3 + [64 * 3584] * 2, None, pre_wait_A, kv_tail)
    TMP = WF[0]
    PK = 36
    PV = 44
    a.e('s_lshl_b32 s%d, s%d, 3' % (sT3, sRB))
    a.e('s_lshl_b32 s3, s%d, 1' % sW)
    a.e('s_add_u32 s%d, s%d, s3' % (sT3, sT3))
    a.e('v_and_b32 v8, 31, v0')
    a.e('v_cmp_le_u32 %s, 28, v8' % sr(sGWM, 2))
    a.e('v_mov_b32 v9, 0x3f803f80')
    KVA = 56
    for r in range(2):
        phi16(a, accb(1, r), TMP, PK, sCON)
        for i in range(8):
            a.e('v_cvt_pk_bf16_f32 v%d, v%d, v%d' % (PV + i, accb(2, r) + 2 * i, accb(2, r) + 2 * i + 1))
        for i in range(8):
            a.e('v_cndmask_b32 v%d, v%d, v9, %s' % (PV + i, PV + i, sr(sGWM, 2)))
        a.e('v_mfma_f32_32x32x16_bf16 %s, %s, %s, %s' % (vr(KVA, 16), vr(PK, 4), vr(PV, 4), '0' if r == 0 else vr(KVA, 16)))
        a.e('v_mfma_f32_32x32x16_bf16 %s, %s, %s, %s' % (vr(KVA, 16), vr(PK + 4, 4), vr(PV + 4, 4), vr(KVA, 16)))
    RED = STAGE
    a.e('s_lshl_b32 s3, s%d, 12' % sW)
    a.e('v_add_u32 v8, s3, v%d' % vST)
    a.e('v_add_u32 v8, %d, v8' % RED)
    for q in range(4):
        a.e('ds_write_b128 v8, %s offset:%d' % (vr(KVA + 4 * q, 4), 1024 * q))
    a.e('s_waitcnt lgkmcnt(0)')
    a.e('s_barrier')
    a.e('v_mov_b32 v10, v%d' % (accb(0, 0) + 12))
    a.e('v_mov_b32 v11, v%d' % (accb(0, 1) + 12))
    a.e('s_lshl_b32 s3, s%d, 4' % sT3)
    a.e('s_add_u32 s3, s3, s%d' % sC)
    a.e('s_lshl_b32 s3, s3, 11')
    a.e('s_add_u32 s%d, s3, 32768' % sT)
    for r in range(2):
        o = PK + 8 * r
        phi16(a, accb(0, r), TMP, o, sCON)
        sb = 's3' if r == 0 else 's%d' % sT
        a.e('buffer_store_dwordx4 %s, v%d, %s, %s offen' % (vr(o, 4), vST, sr(SWS, 4), sb))
        a.e('buffer_store_dwordx4 %s, v%d, %s, %s offen offset:1024' % (vr(o + 4, 4), vST, sr(SWS, 4), sb))
    a.e('s_cmp_lg_u32 s%d, 0' % sC)
    a.e('s_cbranch_scc1 K1A_NOG')
    a.e('v_cvt_pk_bf16_f32 v12, v10, v11')
    a.e('v_lshlrev_b32 v10, 16, v12')
    a.e('v_and_b32 v11, 0xffff0000, v12')
    a.e('v_pk_mul_f32 v[10:11], v[10:11], %s' % sr(sCON + 4, 2))
    a.e('v_exp_f32 v10, v10')
    a.e('v_exp_f32 v11, v11')
    a.e('v_pk_add_f32 v[10:11], v[10:11], %s' % sr(sCON + 6, 2))
    a.e('v_rcp_f32 v10, v10')
    a.e('v_rcp_f32 v11, v11')
    a.e('v_cvt_pk_bf16_f32 v12, v10, v11')
    a.e('v_lshlrev_b32 v10, 16, v12')
    a.e('v_and_b32 v11, 0xffff0000, v12')
    a.e('v_and_b32 v12, 31, v0')
    a.e('v_lshlrev_b32 v12, 2, v12')
    a.e('s_lshl_b32 s3, s%d, 7' % sT3)
    a.e('s_add_u32 s3, s3, %d' % G_OFF)
    a.e('v_cmp_le_u32 vcc, 32, v0')
    a.e('s_and_saveexec_b64 %s, vcc' % sr(sEX, 2))
    a.e('buffer_store_dword v10, v12, %s, s3 offen' % sr(SWS, 4))
    a.e('buffer_store_dword v11, v12, %s, s3 offen offset:128' % sr(SWS, 4))
    a.e('s_mov_b64 exec, %s' % sr(sEX, 2))
    a.lab('K1A_NOG')
    a.e('s_mul_i32 s3, s%d, 112' % sT3)
    a.e('s_lshl_b32 s%d, s%d, 1' % (sT, sC))
    a.e('s_add_u32 s3, s3, s%d' % sT)
    a.e('s_lshl_b32 s3, s3, 10')
    a.e('s_add_u32 s3, s3, %d' % H_OFF)
    a.e('s_add_u32 s%d, s3, %d' % (sT, 112 * 1024))
    for r in range(2):
        for m in range(2):
            o = PK + 4 * (2 * r + m)
            silu_mul(a, accb(3 + m, r), TMP, o, sCON)
            a.e('buffer_store_dwordx4 %s, v%d, %s, %s offen offset:%d' % (vr(o, 4), vST, sr(SWS, 4), 's3' if r == 0 else 's%d' % sT, 1024 * m))
    stamp(a, 9, vSTAMP)
    stamp(a, 11, vSTAMP, real=True)
    stamp_store(a, vSTAMP, SWS, sW8, 8, STAMP_OFF, 8)
    a.e('s_endpgm')

    a.lab('K1_TYPEB')
    a.e('v_mul_u32_u24 v8, %d, v10' % WOFF_B[1])
    a.e('v_mul_u32_u24 v9, 160, v13')
    a.e('v_add3_u32 v8, v8, v9, v14')
    a.e('v_add_u32 v%d, %d, v8' % (vGU, XREG))
    a.e('s_mul_i32 s%d, s%d, 160' % (sT, sC))
    a.e('s_add_u32 s%d, s%d, 1024' % (sT, sT))

    def slotB(j, q_sgpr):
        a.e('s_lshl_b32 s3, s%d, 6' % q_sgpr)
        a.e('v_add_u32 v8, s3, v0')
        a.e('v_mul_u32_u24 v9, 6554, v8')
        a.e('v_lshrrev_b32 v9, 16, v9')
        a.e('v_mul_u32_u24 v10, 10, v9')
        a.e('v_sub_u32 v10, v8, v10')
        a.e('v_mul_u32_u24 v9, 3584, v9')
        a.e('v_lshl_add_u32 v9, v10, 4, v9')
        a.e('v_add_u32 v%d, s%d, v9' % (vWO[j], sT))
        a.e('s_mov_b32 s%d, 0' % SOFF[j])
        a.e('s_lshl_b32 s%d, s%d, 10' % (DEST[j], q_sgpr))

    slotB(0, sW)
    a.e('s_add_u32 s%d, s%d, %d' % (DEST[0], DEST[0], XREG + WOFF_B[0]))
    a.e('s_add_u32 s%d, s%d, 4' % (sT2, sW))
    slotB(1, sT2)
    a.e('s_add_u32 s%d, s%d, %d' % (DEST[1], DEST[1], XREG + WOFF_B[0]))
    a.e('s_add_u32 s%d, s%d, 8' % (sT2, sW))
    a.e('s_sub_u32 s%d, s%d, 2' % (sT3, sW))
    a.e('s_cmp_lt_u32 s%d, 2' % sW)
    a.e('s_cselect_b32 s%d, s%d, s%d' % (sT2, sT2, sT3))
    a.e('s_cselect_b64 %s, %s, %s' % (sr(SLX, 2), sr(SW1, 2), sr(SW3, 2)))
    a.e('s_cselect_b64 %s, %s, %s' % (sr(SLX + 2, 2), sr(SW1 + 2, 2), sr(SW3 + 2, 2)))
    a.e('s_mov_b32 s%d, %d' % (sT3, XREG + WOFF_B[1]))
    a.e('s_cselect_b32 s%d, %d, s%d' % (sT3, XREG + WOFF_B[0], sT3))
    slotB(2, sT2)
    a.e('s_add_u32 s%d, s%d, s%d' % (DEST[2], DEST[2], sT3))
    a.e('s_add_u32 s%d, s%d, 2' % (sT2, sW))
    slotB(3, sT2)
    a.e('s_add_u32 s%d, s%d, %d' % (DEST[3], DEST[3], XREG + WOFF_B[1]))
    a.e('s_add_u32 s%d, s%d, 6' % (sT2, sW))
    slotB(4, sT2)
    a.e('s_add_u32 s%d, s%d, %d' % (DEST[4], DEST[4], XREG + WOFF_B[1]))

    PREP = STAGE
    sPU = [[4, 5, 6], [7, 8, 9]]
    sPD = 10

    def prep_issue():
        a.e('s_lshl_b32 s%d, s%d, 12' % (sPD, sW))
        a.e('s_add_u32 s%d, s%d, %d' % (sPD, sPD, PREP))
        a.e('v_lshrrev_b32 v8, 2, v0')
        a.e('v_mul_u32_u24 v8, 896, v8')
        a.e('v_and_b32 v9, 3, v0')
        a.e('v_lshl_add_u32 v8, v9, 4, v8')
        for u in range(2):
            sNT, sK, sISWO = sPU[u]
            a.e('s_lshl_b32 s%d, s%d, 4' % (sT, sRB))
            a.e('s_add_u32 s%d, s%d, s%d' % (sT, sT, sC))
            a.e('s_lshl_b32 s%d, s%d, 2' % (sT, sT))
            a.e('s_add_u32 s%d, s%d, s%d' % (sT, sT, sW))
            a.e('s_lshl_b32 s%d, s%d, 1' % (sT, sT))
            a.e('s_add_u32 s%d, s%d, %d' % (sT, sT, u))
            a.e('s_min_u32 s%d, s%d, 1007' % (sT, sT))
            a.e('s_cmp_ge_u32 s%d, 784' % sT)
            a.e('s_cselect_b32 s%d, 1, 0' % sISWO)
            a.e('s_cselect_b32 s%d, 784, 0' % sT2)
            a.e('s_sub_u32 s%d, s%d, s%d' % (sT, sT, sT2))
            a.e('s_mul_i32 s%d, s%d, 4682' % (sK, sT))
            a.e('s_lshr_b32 s%d, s%d, 16' % (sK, sK))
            a.e('s_mul_i32 s%d, s%d, 14' % (sT2, sK))
            a.e('s_sub_u32 s%d, s%d, s%d' % (sNT, sT, sT2))
            a.e('s_cmp_eq_u32 s%d, 1' % sISWO)
            a.e('s_cselect_b32 s%d, 28, 32' % sT2)
            a.e('s_mul_i32 s%d, s%d, s%d' % (sT2, sT2, sK))
            a.e('s_mul_i32 s%d, s%d, 896' % (sT2, sT2))
            a.e('s_lshl_b32 s%d, s%d, 6' % (sT3, sNT))
            a.e('s_add_u32 s%d, s%d, s%d' % (sT2, sT2, sT3))
            a.e('s_cmp_eq_u32 s%d, 1' % sISWO)
            a.e('s_cselect_b64 %s, %s, %s' % (sr(SLX, 2), sr(SWO, 2), sr(SW2, 2)))
            a.e('s_cselect_b64 %s, %s, %s' % (sr(SLX + 2, 2), sr(SWO + 2, 2), sr(SW2 + 2, 2)))
            a.e('s_add_u32 m0, s%d, %d' % (sPD, 2048 * u))
            a.e('s_add_u32 s%d, s%d, %d' % (sT3, sT2, 16 * 896))
            a.e('buffer_load_dwordx4 v8, %s, s%d offen lds' % (sr(SLX, 4), sT2))
            a.e('s_add_u32 m0, s%d, %d' % (sPD, 2048 * u + 1024))
            a.e('s_nop 0')
            a.e('buffer_load_dwordx4 v8, %s, s%d offen lds' % (sr(SLX, 4), sT3))
        return 4

    def prep_finish():
        a.e('v_lshrrev_b32 v9, 5, v0')
        a.e('v_bfe_u32 v10, v0, 4, 1')
        a.e('v_bfe_u32 v11, v0, 2, 2')
        a.e('v_and_b32 v12, 3, v0')
        a.e('v_lshl_add_u32 v15, v10, 2, v12')
        a.e('v_and_b32 v13, 1, v15')
        a.e('v_lshlrev_b32 v13, 2, v13')
        a.e('v_lshrrev_b32 v14, 1, v15')
        a.e('v_add_u32 v13, v13, v14')
        a.e('v_lshlrev_b32 v13, 3, v13')
        a.e('s_waitcnt vmcnt(0)')
        for u in range(2):
            sNT, sK, sISWO = sPU[u]
            P = ACC + 8 * u
            a.e('s_cmp_eq_u32 s%d, 1' % sISWO)
            a.e('s_cselect_b32 s%d, 2, 3' % sT)
            a.e('s_mov_b32 s%d, 256' % sT2)
            a.e('s_cselect_b32 s%d, 512, s%d' % (sT2, sT2))
            a.e('v_lshlrev_b32 v14, s%d, v9' % sT)
            a.e('v_add_u32 v14, v14, v11')
            a.e('v_lshl_add_u32 v14, v14, 6, v13')
            a.e('v_add_u32 v14, s%d, v14' % sPD)
            a.e('v_add_u32 v15, s%d, v14' % sT2)
            a.e('ds_read_b64_tr_b16 %s, v14 offset:%d' % (vr(P, 2), 2048 * u))
            a.e('ds_read_b64_tr_b16 %s, v15 offset:%d' % (vr(P + 2, 2), 2048 * u))
            a.e('ds_read_b64_tr_b16 %s, v14 offset:%d' % (vr(P + 4, 2), 2048 * u + 1024))
            a.e('ds_read_b64_tr_b16 %s, v15 offset:%d' % (vr(P + 6, 2), 2048 * u + 1024))
            a.e('s_mul_i32 s%d, s%d, 112' % (sT, sNT))
            a.e('s_lshl_b32 s%d, s%d, 1' % (sT2, sK))
            a.e('s_add_u32 s%d, s%d, s%d' % (sT, sT, sT2))
            a.e('s_lshl_b32 s%d, s%d, 10' % (sT, sT))
            a.e('s_add_u32 s%d, s%d, %d' % (sT, sT, W2P_OFF))
            a.e('s_lshl_b32 s%d, s%d, 4' % (sT3, sNT))
            a.e('s_add_u32 s%d, s%d, s%d' % (sT3, sT3, sK))
            a.e('s_lshl_b32 s%d, s%d, 11' % (sT3, sT3))
            a.e('s_add_u32 s%d, s%d, %d' % (sT3, sT3, WOP_OFF))
            a.e('s_cmp_eq_u32 s%d, 1' % sISWO)
            a.e('s_cselect_b32 s%d, s%d, s%d' % (sT, sT3, sT))
            a.e('s_cselect_b32 s%d, 32, 64' % sT2)
            a.e('v_cmp_le_u32 vcc, s%d, v0' % sT2)
            a.e('s_waitcnt lgkmcnt(0)')
            a.e('v_cndmask_b32 v%d, v%d, 0, vcc' % (P + 6, P + 6))
            a.e('v_cndmask_b32 v%d, v%d, 0, vcc' % (P + 7, P + 7))
            a.e('buffer_store_dwordx4 %s, v%d, %s, s%d offen' % (vr(P, 4), vST, sr(SWS, 4), sT))
            a.e('buffer_store_dwordx4 %s, v%d, %s, s%d offen offset:1024' % (vr(P + 4, 4), vST, sr(SWS, 4), sT))

    main_loop('B', [SW1, SW1, SLX, SW3, SW3], [64 * 3584] * 5, prep_issue, None, prep_finish)
    TMP = WF[0]
    a.e('s_lshl_b32 s%d, s%d, 3' % (sT3, sRB))
    a.e('s_lshl_b32 s3, s%d, 1' % sW)
    a.e('s_add_u32 s%d, s%d, s3' % (sT3, sT3))
    a.e('s_mul_i32 s3, s%d, 112' % sT3)
    a.e('s_mul_i32 s%d, s%d, 5' % (sT, sC))
    a.e('s_add_u32 s3, s3, s%d' % sT)
    a.e('s_add_u32 s3, s3, 32')
    a.e('s_lshl_b32 s3, s3, 10')
    a.e('s_add_u32 s3, s3, %d' % H_OFF)
    nst = 0
    for r in range(2):
        for m in range(5):
            o = 36 + 4 * (nst % 4)
            silu_mul(a, accb(m, r), TMP, o, sCON)
            a.e('buffer_store_dwordx4 %s, v%d, %s, s3 offen' % (vr(o, 4), vST, sr(SWS, 4)))
            a.e('s_add_u32 s3, s3, %d' % (1024 if m < 4 else (112 - 4) * 1024))
            nst += 1
    stamp(a, 9, vSTAMP)
    stamp(a, 11, vSTAMP, real=True)
    stamp_store(a, vSTAMP, SWS, sW8, 8, STAMP_OFF, 8)
    a.lab('K1_END')
    a.e('s_endpgm')
    return a.final()


def gen_k2():
    a = Asm()
    a.sp = 36
    SWS, SOUT = 8, 12
    sW, sRB, sCB, sT, sT2 = 16, 17, 18, 19, 20
    sH = [24, 25]
    sW2 = [26, 27]
    sKVT, sPQ, sWO = 28, [29, 30], [31, 32]
    vST = 1
    vG = [2, 4]
    vOMG = [6, 8]
    vSTAMP = 15
    DF = int(os.environ.get('DF', '10'))
    FB = 16
    HB = FB + 64
    OB = HB + 40
    OP = OB + 16
    TM = OP + 8
    BB = TM + 8
    NV = BB + 64
    accA = lambda rt, nt: vr(FB + 16 * (2 * rt + nt), 16)
    accB = lambda rt, nt: vr(BB + 16 * (2 * rt + nt), 16)

    a.lab('k2_kernel')
    SDBG = 40
    vFLAG = 14
    a.e('s_cmp_ge_u32 s2, 240')
    a.e('s_cbranch_scc1 K2_END')
    a.e('s_load_dwordx4 s[4:7], s[0:1], 64')
    a.e('s_load_dwordx2 s[44:45], s[0:1], 80')
    a.e('s_cmp_lt_u32 s2, 16')
    a.e('s_cbranch_scc1 K2_HELPER')
    a.e('s_sub_u32 s2, s2, 16')
    a.e('v_lshrrev_b32 v8, 6, v0')
    a.e('v_and_b32 v0, 63, v0')
    a.e('v_readfirstlane_b32 s%d, v8' % sW)
    a.e('v_lshlrev_b32 v%d, 4, v0' % vST)
    a.e('s_and_b32 s3, s2, 7')
    a.e('s_lshr_b32 s%d, s2, 3' % sT)
    a.e('s_mul_i32 s%d, s%d, 9363' % (sT2, sT))
    a.e('s_lshr_b32 s%d, s%d, 16' % (sT2, sT2))
    a.e('s_mul_i32 s%d, s%d, 7' % (sCB, sT2))
    a.e('s_sub_u32 s%d, s%d, s%d' % (sCB, sT, sCB))
    a.e('s_lshl_b32 s3, s3, 2')
    a.e('s_add_u32 s%d, s3, s%d' % (sRB, sT2))
    if MAP == 'bad':
        a.e('s_mul_i32 s%d, s2, 9363' % sRB)
        a.e('s_lshr_b32 s%d, s%d, 16' % (sRB, sRB))
        a.e('s_mul_i32 s%d, s%d, 7' % (sCB, sRB))
        a.e('s_sub_u32 s%d, s2, s%d' % (sCB, sCB))
    sG, sD = 33, 34
    if ROT:
        a.e('s_lshl_b32 s3, s%d, 1' % sT2)
        a.e('s_add_u32 s3, s3, s%d' % sCB)
        a.e('s_sub_u32 s%d, s3, 7' % sG)
        a.e('s_cmp_ge_u32 s3, 7')
        a.e('s_cselect_b32 s%d, s%d, s3' % (sG, sG))
    else:
        a.e('s_mov_b32 s%d, 0' % sG)
    a.e('s_mul_i32 s%d, s%d, %d' % (sT, sW, 28 * 1024))
    a.e('s_lshl_b32 s3, s%d, 12' % sG)
    a.e('s_add_u32 s%d, s%d, s3' % (sT, sT))
    a.e('s_mul_i32 s%d, s%d, %d' % (sH[0], sRB, 2 * 112 * 1024))
    a.e('s_add_u32 s%d, s%d, s%d' % (sH[0], sH[0], sT))
    a.e('s_add_u32 s%d, s%d, %d' % (sH[0], sH[0], H_OFF))
    a.e('s_add_u32 s%d, s%d, %d' % (sH[1], sH[0], 112 * 1024))
    a.e('s_mul_i32 s%d, s%d, %d' % (sW2[0], sCB, 2 * 112 * 1024))
    a.e('s_add_u32 s%d, s%d, s%d' % (sW2[0], sW2[0], sT))
    a.e('s_add_u32 s%d, s%d, %d' % (sW2[0], sW2[0], W2P_OFF))
    a.e('s_add_u32 s%d, s%d, %d' % (sW2[1], sW2[0], 112 * 1024))
    a.e('s_lshl_b32 s%d, s%d, 13' % (sT, sW))
    a.e('s_add_u32 s%d, s%d, %d' % (sKVT, sT, KVT_OFF))
    a.e('s_lshl_b32 s%d, s%d, 16' % (sPQ[0], sRB))
    a.e('s_add_u32 s%d, s%d, s%d' % (sPQ[0], sPQ[0], sT))
    a.e('s_add_u32 s%d, s%d, %d' % (sPQ[0], sPQ[0], PQ_OFF))
    a.e('s_add_u32 s%d, s%d, %d' % (sPQ[1], sPQ[0], 32768))
    a.e('s_lshl_b32 s%d, s%d, 16' % (sWO[0], sCB))
    a.e('s_add_u32 s%d, s%d, s%d' % (sWO[0], sWO[0], sT))
    a.e('s_add_u32 s%d, s%d, %d' % (sWO[0], sWO[0], WOP_OFF))
    a.e('s_add_u32 s%d, s%d, %d' % (sWO[1], sWO[0], 32768))
    a.e('v_and_b32 v8, 31, v0')
    a.e('v_lshlrev_b32 v8, 2, v8')
    a.e('s_lshl_b32 s%d, s%d, 8' % (sT, sRB))
    a.e('s_add_u32 s%d, s%d, %d' % (sT, sT, G_OFF))
    a.e('s_waitcnt lgkmcnt(0)')
    srd(a, SWS, 44, WS_SRD)
    srd(a, SOUT, 4, SZ_OUT)
    srd(a, SDBG, 6, 256)
    stamp(a, 0, vSTAMP)
    stamp(a, 10, vSTAMP, real=True)
    issued = []

    def ld(dst, sbase, off, tag, agpr=False):
        d = ('a[%d:%d]' % (dst, dst + 3)) if agpr else vr(dst, 4)
        a.e('buffer_load_dwordx4 %s, v%d, %s, s%d offen offset:%d%s' % (d, vST, sr(SWS, 4), sbase, off, ' sc1' if sbase == sKVT else ''))
        issued.append(tag)

    ar = lambda i: 'a[%d:%d]' % (i, i + 3)

    a.e('buffer_load_dword v%d, v8, %s, s%d offen' % (vG[0], sr(SWS, 4), sT))
    a.e('buffer_load_dword v%d, v8, %s, s%d offen offset:128' % (vG[1], sr(SWS, 4), sT))
    issued += ['g', 'g']

    items = []
    hpos = {16: 0, 20: 1, 24: 2, 27: 3}
    for f in range(28):
        items.append(('F', f))
        if f in hpos:
            items.append(('H', hpos[f]))
    FLAG_ISSUE, FLAG_CHECK = 9, 13

    def issue(it):
        kind, idx = it
        if kind == 'F':
            b = (idx % DF) * 16
            off = (idx % 4) * 1024
            ld(b, sH[0], off, it, True)
            ld(b + 4, sH[1], off, it, True)
            ld(b + 8, sW2[0], off, it, True)
            ld(b + 12, sW2[1], off, it, True)
            if idx % 4 == 3:
                a.e('s_add_u32 s%d, s%d, 1' % (sG, sG))
                a.e('s_cmp_eq_u32 s%d, 7' % sG)
                a.e('s_cselect_b32 s%d, 0, s%d' % (sG, sG))
                a.e('s_mov_b32 s%d, 4096' % sD)
                a.e('s_cselect_b32 s%d, 0x%x, s%d' % (sD, (-6 * 4096) & 0xffffffff, sD))
                for s in sH + sW2:
                    a.e('s_add_u32 s%d, s%d, s%d' % (s, s, sD))
        else:
            b = HB
            off = (idx % 2) * 2048
            for j in range(2):
                ld(b + 4 * j, sKVT, off + 1024 * j, it)
            for rt in range(2):
                for j in range(2):
                    ld(b + 8 + 8 * rt + 4 * j, sPQ[rt], off + 1024 * j, it)
            for nt in range(2):
                for j in range(2):
                    ld(b + 24 + 8 * nt + 4 * j, sWO[nt], off + 1024 * j, it)
            if idx % 2 == 1:
                for s in [sKVT] + sPQ + sWO:
                    a.e('s_add_u32 s%d, s%d, 4096' % (s, s))

    def wait_for(it):
        last = max(i for i, t in enumerate(issued) if t == it)
        a.e('s_waitcnt vmcnt(%d)' % min(63, len(issued) - 1 - last))

    firstB = [True]
    firstA = [True]

    def compute(it):
        kind, idx = it
        wait_for(it)
        if kind == 'F':
            b = (idx % DF) * 16
            for rt in range(2):
                for nt in range(2):
                    a.e('v_mfma_f32_32x32x16_bf16 %s, %s, %s, %s' % (accB(rt, nt), ar(b + 8 + 4 * nt), ar(b + 4 * rt),
                                                                   '0' if firstB[0] else accB(rt, nt)))
            firstB[0] = False
        else:
            b = HB
            for rt in range(2):
                a.e('v_mfma_f32_32x32x16_bf16 %s, %s, %s, 0' % (vr(OB, 16), vr(b, 4), vr(b + 8 + 8 * rt, 4)))
                a.e('v_mfma_f32_32x32x16_bf16 %s, %s, %s, %s' % (vr(OB, 16), vr(b + 4, 4), vr(b + 8 + 8 * rt + 4, 4), vr(OB, 16)))
                a.e('v_add_f32 v%d, %s, v%d' % (TM, EPS, OB + 12))
                a.e('v_mov_b32 v%d, v%d' % (TM + 1, TM))
                a.e('v_permlane32_swap_b32 v%d, v%d' % (TM, TM + 1))
                a.e('v_rcp_f32 v%d, v%d' % (TM, TM + 1))
                a.e('v_mul_f32 v%d, v%d, v%d' % (TM, TM, vG[rt]))
                a.e('v_mov_b32 v%d, v%d' % (TM + 1, TM))
                for i in range(8):
                    a.e('v_pk_mul_f32 %s, %s, %s' % (vr(OB + 2 * i, 2), vr(OB + 2 * i, 2), vr(TM, 2)))
                for i in range(8):
                    a.e('v_cvt_pk_bf16_f32 v%d, v%d, v%d' % (OP + i, OB + 2 * i, OB + 2 * i + 1))
                for j in range(2):
                    for nt in range(2):
                        a.e('v_mfma_f32_32x32x16_bf16 %s, %s, %s, %s' % (
                            accA(rt, nt), vr(b + 24 + 8 * nt + 4 * j, 4), vr(OP + 4 * j, 4),
                            '0' if (firstA[0] and j == 0) else accA(rt, nt)))
            firstA[0] = False

    nxt = 0

    def can_issue(k, cur):
        kind, idx = items[k]
        if kind == 'F':
            if idx < DF:
                return True
            return items.index(('F', idx - DF)) < cur
        else:
            if idx < 1:
                return cur > FLAG_CHECK
            return items.index(('H', idx - 1)) < cur

    order = list(range(len(items)))
    pending = list(range(len(items)))
    for cur in range(len(items)):
        progressed = True
        while progressed:
            progressed = False
            for k in pending:
                kind, idx = items[k]
                if can_issue(k, cur) and (k <= cur + DF + 2):
                    issue(items[k])
                    pending.remove(k)
                    progressed = True
                    break
                if kind == 'F':
                    break
        compute(items[cur])
        if cur == FLAG_ISSUE:
            a.e('v_mov_b32 v13, 0')
            a.e('buffer_load_dword v%d, v13, %s, 0 offen sc1' % (vFLAG, sr(SDBG, 4)))
            issued.append('flag')
        if cur == FLAG_CHECK:
            wait_for('flag')
            a.lab('K2_POLL')
            a.e('v_readfirstlane_b32 s3, v%d' % vFLAG)
            a.e('s_cmp_ge_u32 s3, 16')
            a.e('s_cbranch_scc1 K2_READY')
            a.e('s_sleep 2')
            a.e('buffer_load_dword v%d, v13, %s, 0 offen sc1' % (vFLAG, sr(SDBG, 4)))
            a.e('s_waitcnt vmcnt(0)')
            a.e('s_branch K2_POLL')
            a.lab('K2_READY')
        if cur % 8 == 0:
            stamp(a, 1 + cur // 8, vSTAMP)
    stamp(a, 5, vSTAMP)
    for rt in range(2):
        a.e('v_sub_f32 v%d, 1.0, v%d' % (vOMG[rt], vG[rt]))
        a.e('v_cvt_pk_bf16_f32 v%d, v%d, v%d' % (vOMG[rt], vOMG[rt], vOMG[rt]))
        a.e('v_and_b32 v%d, 0xffff0000, v%d' % (vOMG[rt] + 1, vOMG[rt]))
        a.e('v_mov_b32 v%d, v%d' % (vOMG[rt], vOMG[rt] + 1))
        a.e('v_mov_b32 v%d, v%d' % (vG[rt] + 1, vG[rt]))
    a.e('s_lshl_b32 s%d, s%d, 12' % (sT, sW))
    a.e('v_add_u32 v10, s%d, v%d' % (sT, vST))
    R = BB
    for t in range(4):
        rt = t >> 1
        for i in range(8):
            a.e('v_pk_fma_f32 %s, %s, %s, %s' % (vr(R + 16 * t + 2 * i, 2), vr(R + 16 * t + 2 * i, 2), vr(vOMG[rt], 2), vr(FB + 16 * t + 2 * i, 2)))
        for q in range(4):
            a.e('ds_write_b128 v10, %s offset:%d' % (vr(R + 16 * t + 4 * q, 4), 16384 * t + 1024 * q))
    a.e('s_waitcnt lgkmcnt(0)')
    a.e('s_barrier')
    stamp(a, 6, vSTAMP)
    a.e('s_lshl_b32 s%d, s%d, 14' % (sT, sW))
    a.e('v_add_u32 v10, s%d, v%d' % (sT, vST))
    for p in range(4):
        for q in range(4):
            a.e('ds_read_b128 %s, v10 offset:%d' % (vr(R + 16 * p + 4 * q, 4), 4096 * p + 1024 * q))
    a.e('s_lshr_b32 s%d, s%d, 1' % (sT, sW))
    a.e('s_lshl_b32 s%d, s%d, 1' % (sT2, sRB))
    a.e('s_add_u32 s%d, s%d, s%d' % (sT, sT, sT2))
    a.e('s_mul_i32 s%d, s%d, %d' % (sT, sT, 32 * 896))
    a.e('s_and_b32 s%d, s%d, 1' % (sT2, sW))
    a.e('s_lshl_b32 s%d, s%d, 6' % (sT2, sT2))
    a.e('s_add_u32 s%d, s%d, s%d' % (sT, sT, sT2))
    a.e('s_lshl_b32 s%d, s%d, 7' % (sT2, sCB))
    a.e('s_add_u32 s%d, s%d, s%d' % (sT, sT, sT2))
    a.e('v_and_b32 v9, 31, v0')
    a.e('v_mul_u32_u24 v9, 896, v9')
    a.e('v_lshrrev_b32 v10, 5, v0')
    a.e('v_lshl_add_u32 v9, v10, 5, v9')
    a.e('s_waitcnt lgkmcnt(0)')
    for i in range(8):
        a.e('v_pk_add_f32 %s, %s, %s' % (vr(R + 2 * i, 2), vr(R + 2 * i, 2), vr(R + 16 + 2 * i, 2)))
        a.e('v_pk_add_f32 %s, %s, %s' % (vr(R + 32 + 2 * i, 2), vr(R + 32 + 2 * i, 2), vr(R + 48 + 2 * i, 2)))
    for i in range(8):
        a.e('v_pk_add_f32 %s, %s, %s' % (vr(R + 2 * i, 2), vr(R + 2 * i, 2), vr(R + 32 + 2 * i, 2)))
    for i in range(8):
        a.e('v_cvt_pk_bf16_f32 v%d, v%d, v%d' % (HB + i, R + 2 * i, R + 2 * i + 1))
    a.e('buffer_store_dwordx4 %s, v9, %s, s%d offen' % (vr(HB, 4), sr(SOUT, 4), sT))
    a.e('buffer_store_dwordx4 %s, v9, %s, s%d offen offset:16' % (vr(HB + 4, 4), sr(SOUT, 4), sT))
    stamp(a, 9, vSTAMP)
    stamp(a, 11, vSTAMP, real=True)
    stamp_store(a, vSTAMP, SWS, sW, 4, STAMP_OFF + (1 << 20), 8)
    a.lab('K2_END')
    a.e('s_endpgm')
    a.lab('K2_HELPER')
    a.e('v_lshlrev_b32 v1, 4, v0')
    a.e('s_lshl_b32 s3, s2, 15')
    a.e('s_add_u32 s3, s3, %d' % KVP_OFF)
    a.e('s_waitcnt lgkmcnt(0)')
    srd(a, SWS, 44, WS_SRD)
    srd(a, SDBG, 6, 256)
    for p_ in range(8):
        a.e('buffer_load_dwordx4 %s, v1, %s, s3 offen' % (vr(4 + 4 * p_, 4), sr(SWS, 4)))
        a.e('s_add_u32 s3, s3, 4096')
    a.e('v_cmp_le_u32 vcc, 224, v0')
    a.e('v_lshrrev_b32 v2, 7, v0')
    a.e('v_lshlrev_b32 v2, 10, v2')
    a.e('v_and_b32 v3, 63, v0')
    a.e('v_lshl_add_u32 v2, v3, 4, v2')
    a.e('v_bfe_u32 v3, v0, 6, 1')
    a.e('v_lshl_add_u32 v2, v3, 3, v2')
    a.e('s_lshl_b32 s3, s2, 11')
    a.e('s_add_u32 s3, s3, %d' % KVT_OFF)
    for p_ in range(1, 8):
        a.e('s_waitcnt vmcnt(%d)' % (7 - p_))
        a.e('v_pk_add_f32 v[4:5], v[4:5], %s' % vr(4 + 4 * p_, 2))
        a.e('v_pk_add_f32 v[6:7], v[6:7], %s' % vr(6 + 4 * p_, 2))
    for k in range(4):
        a.e('v_cndmask_b32 v%d, v%d, 0, vcc' % (4 + k, 4 + k))
    a.e('v_cvt_pk_bf16_f32 v8, v4, v5')
    a.e('v_cvt_pk_bf16_f32 v9, v6, v7')
    a.e('buffer_store_dwordx2 v[8:9], v2, %s, s3 offen sc1' % sr(SWS, 4))
    a.e('s_waitcnt vmcnt(0)')
    a.e('s_barrier')
    a.e('v_cmp_eq_u32 vcc, 0, v0')
    a.e('s_and_saveexec_b64 s[20:21], vcc')
    a.e('s_cbranch_execz K2_HEND')
    a.e('v_mov_b32 v10, 1')
    a.e('v_mov_b32 v11, 0')
    a.e('buffer_atomic_add v10, v11, %s, 0 offen' % sr(SDBG, 4))
    a.lab('K2_HEND')
    a.e('s_endpgm')
    return a.final(), NV


def kd(name, accoff, nfv, nsg):
    return '''.amdhsa_kernel %s
  .amdhsa_next_free_vgpr %d
  .amdhsa_next_free_sgpr %d
  .amdhsa_accum_offset %d
  .amdhsa_group_segment_fixed_size 0
  .amdhsa_kernarg_size 88
  .amdhsa_user_sgpr_count 2
  .amdhsa_user_sgpr_kernarg_segment_ptr 1
  .amdhsa_system_sgpr_workgroup_id_x 1
  .amdhsa_float_denorm_mode_32 3
.end_amdhsa_kernel
''' % (name, nfv, nsg, accoff)


def main(out):
    k1 = gen_k1()
    pol = os.environ.get('STPOL', 'sc1')
    if pol:
        k1 = '\n'.join((ln + ' ' + pol) if ('buffer_store_dwordx4' in ln and 'sc1' not in ln) else ln for ln in k1.split('\n'))
    k2, nv2 = gen_k2()
    acc2 = (nv2 + 3) // 4 * 4
    s = '; generated by gen/gen10.py\n'
    s += '; @launch kernel=k1_kernel grid=(256,1,1) block=(512,1,1) lds=%d\n' % LDS_K1
    s += '; @launch kernel=k2_kernel grid=(240,1,1) block=(256,1,1) lds=65536\n'
    s += '.amdgcn_target "amdgcn-amd-amdhsa--gfx950"\n.text\n'
    for nm, body in (('k1_kernel', k1), ('k2_kernel', k2)):
        s += '.globl %s\n.p2align 8\n.type %s,@function\n' % (nm, nm) + body
    s += '.section .rodata,"a"\n.p2align 6\n'
    s += kd('k1_kernel', 256, 256, 102)
    s += '.p2align 6\n' + kd('k2_kernel', acc2, acc2 + 256, 48)
    open(out, 'w').write(s)


if __name__ == '__main__':
    main(sys.argv[1] if len(sys.argv) > 1 else 'cdna_kernels/%s.s' % NAME)
```

```python
import sys, os
sys.path.insert(0, 'gen')
from asmlib import Asm

NAME = 'gated_mix__linear_attn_block__glu_gated_swiglu__prompt'
PQ_OFF = 0
H_OFF = PQ_OFF + 64 * 16 * 2 * 1024
KVP_OFF = H_OFF + 64 * 112 * 1024
KVT_OFF = KVP_OFF + 16 * 8 * 4096
W2P_OFF = KVT_OFF + 16 * 2 * 1024
WOP_OFF = W2P_OFF + 14 * 112 * 1024
G_OFF = WOP_OFF + 14 * 16 * 2 * 1024
WS_BYTES = G_OFF + 2048 * 4
WS_SRD = 32 << 20

SZ_X = 2048 * 448 * 2
SZ_WQKV = 448 * 1344 * 2
SZ_WO = 448 * 448 * 2
SZ_W1 = 448 * 1792 * 2
SZ_W2 = 1792 * 448 * 2
SZ_GW = 448 * 2
SZ_OUT = 2048 * 448 * 2

STAGE = 53376
XREG = 32768
WOFF_A = [0, 4096, 8192, 12288, 16384 + 32]
WOFF_B = [0, 10368]
GWX = 3 * STAGE
LDS_K1 = 163840
LOG2E = '0x3fb8aa3b'
NLOG2E = '0xbfb8aa3b'
EPS = '0x358637bd'

STAMPS = os.environ.get('STAMPS', '0') == '1'
STAMP_OFF = 16 << 20
PREFETCH = os.environ.get('PREFETCH', '0') == '1'
ROT = os.environ.get('ROT', '0') == '1'
EARLY = os.environ.get('EARLY', '0') == '1'
PF2 = os.environ.get('PF2', '0') == '1'
MAP = os.environ.get('MAP', 'blk')


def stamp(a, k, vreg, sp=None, real=False):
    if not STAMPS:
        return
    sp = a.sp
    a.e('%s s[%d:%d]' % ('s_memrealtime' if real else 's_memtime', sp, sp + 1))
    a.e('s_waitcnt lgkmcnt(0)')
    a.e('v_writelane_b32 v%d, s%d, %d' % (vreg, sp, k))


def stamp_store(a, vreg, srdws, wave_sgpr, nwaves, base, tmpv, sp=None):
    if not STAMPS:
        return
    sp = a.sp
    a.e('s_mul_i32 s%d, s2, %d' % (sp, nwaves))
    a.e('s_add_u32 s%d, s%d, s%d' % (sp, sp, wave_sgpr))
    a.e('s_lshl_b32 s%d, s%d, 8' % (sp, sp))
    a.e('s_add_u32 s%d, s%d, %d' % (sp, sp, base))
    a.e('v_lshlrev_b32 v%d, 2, v0' % tmpv)
    a.e('buffer_store_dword v%d, v%d, s[%d:%d], s%d offen' % (vreg, tmpv, srdws, srdws + 3, sp))


def v(i):
    return 'v%d' % i


def vr(i, n):
    return 'v[%d:%d]' % (i, i + n - 1)


def sr(i, n):
    return 's[%d:%d]' % (i, i + n - 1)


def srd(a, d, lo, size):
    a.e('s_mov_b32 s%d, s%d' % (d, lo))
    a.e('s_and_b32 s%d, s%d, 0xffff' % (d + 1, lo + 1))
    a.e('s_mov_b32 s%d, 0x%x' % (d + 2, size))
    a.e('s_mov_b32 s%d, 0x00020000' % (d + 3))


def phi16(a, R, T, O, sC):
    for i in range(8):
        a.e('v_pk_mul_f32 %s, %s, %s' % (vr(T + 2 * i, 2), vr(R + 2 * i, 2), sr(sC, 2)))
    for i in range(16):
        a.e('v_exp_f32 v%d, v%d clamp' % (T + i, T + i))
    for i in range(16):
        a.e('v_max_f32 v%d, 0, v%d' % (R + i, R + i))
    for i in range(8):
        a.e('v_pk_add_f32 %s, %s, %s' % (vr(R + 2 * i, 2), vr(R + 2 * i, 2), sr(sC + 2, 2)))
    for i in range(8):
        a.e('v_pk_add_f32 %s, %s, %s' % (vr(R + 2 * i, 2), vr(R + 2 * i, 2), vr(T + 2 * i, 2)))
    for i in range(8):
        a.e('v_cvt_pk_bf16_f32 v%d, v%d, v%d' % (O + i, R + 2 * i, R + 2 * i + 1))


def silu_mul(a, R, T, O, sC):
    for i in range(4):
        a.e('v_pk_mul_f32 %s, %s, %s' % (vr(T + 2 * i, 2), vr(R + 2 * i, 2), sr(sC + 4, 2)))
    for i in range(8):
        a.e('v_exp_f32 v%d, v%d' % (T + i, T + i))
    for i in range(4):
        a.e('v_pk_mul_f32 %s, %s, %s' % (vr(R + 2 * i, 2), vr(R + 2 * i, 2), vr(R + 8 + 2 * i, 2)))
    for i in range(4):
        a.e('v_pk_add_f32 %s, %s, %s' % (vr(T + 2 * i, 2), vr(T + 2 * i, 2), sr(sC + 6, 2)))
    for i in range(8):
        a.e('v_rcp_f32 v%d, v%d' % (T + i, T + i))
    for i in range(4):
        a.e('v_pk_mul_f32 %s, %s, %s' % (vr(R + 2 * i, 2), vr(R + 2 * i, 2), vr(T + 2 * i, 2)))
    for i in range(4):
        a.e('v_cvt_pk_bf16_f32 v%d, v%d, v%d' % (O + i, R + 2 * i, R + 2 * i + 1))


def consts(a, sC):
    for k, val in enumerate([LOG2E, LOG2E, EPS, EPS, NLOG2E, NLOG2E, '0x3f800000', '0x3f800000']):
        a.e('s_mov_b32 s%d, %s' % (sC + k, val))


def gen_k1():
    a = Asm()
    a.sp = 100
    SX, SWQKV, SW1, SW3, SWS, SW2, SWO, SGW, SDBG = 24, 28, 32, 36, 40, 44, 48, 52, 56
    SLX = 60
    SOFF = [64, 65, 66, 67, 68]
    DEST = [69, 70, 71, 72, 73]
    sW, sRB, sC, sCB, sXD, sT, sT2, sT3 = 74, 75, 76, 77, 78, 79, 80, 81
    sCON = 84
    sEX = 92
    sW8 = 82
    sCH, sXK, sD1, sD2 = 83, 94, 95, 23
    sGWM = 22
    ACC = 96
    WF = [16, 36]
    XF = [56, 64]
    vTID = 1
    vXO = [2, 3]
    vWO = [4, 5, 6, 7, 72]
    vXA = [73, 74, 75, 76]
    vKV, vGU, vQ0, vQ1, vQI, vC128, vST = 77, 78, 79, 80, 81, 82, 83
    vSTAMP = 95
    accb = lambda t, r: ACC + 16 * (2 * t + r)

    a.lab('k1_kernel')
    a.e('s_cmp_ge_u32 s2, 256')
    a.e('s_cbranch_scc1 K1_END')
    a.e('s_load_dwordx4 s[4:7], s[0:1], 0')
    a.e('s_load_dwordx2 s[8:9], s[0:1], 16')
    a.e('s_load_dwordx4 s[12:15], s[0:1], 32')
    a.e('s_load_dwordx4 s[16:19], s[0:1], 48')
    a.e('s_load_dwordx4 s[96:99], s[0:1], 72')
    a.e('v_mov_b32 v%d, v0' % vTID)
    a.e('v_lshrrev_b32 v8, 6, v0')
    a.e('v_and_b32 v0, 63, v0')
    a.e('v_readfirstlane_b32 s%d, v8' % sW8)
    if MAP == 'old':
        a.e('s_and_b32 s3, s2, 7')
        a.e('s_lshr_b32 s%d, s2, 3' % sT)
        a.e('s_and_b32 s%d, s%d, 3' % (sT2, sT))
        a.e('s_lshl_b32 s3, s3, 2')
        a.e('s_add_u32 s%d, s3, s%d' % (sCB, sT2))
        a.e('s_lshr_b32 s%d, s%d, 2' % (sRB, sT))
    elif MAP == 'bad':
        a.e('s_and_b32 s%d, s2, 7' % sRB)
        a.e('s_lshr_b32 s%d, s2, 3' % sCB)
    else:
        a.e('s_lshr_b32 s%d, s2, 6' % sT)
        a.e('s_add_u32 s3, s2, s%d' % sT)
        a.e('s_and_b32 s3, s3, 7')
        a.e('s_lshl_b32 s%d, s%d, 3' % (sT2, sT))
        a.e('s_add_u32 s%d, s%d, s3' % (sCB, sT2))
        a.e('s_lshr_b32 s%d, s2, 3' % sRB)
        a.e('s_and_b32 s%d, s%d, 7' % (sRB, sRB))
    a.e('s_lshr_b32 s%d, s%d, 1' % (sC, sCB))
    a.e('s_and_b32 s%d, s%d, 3' % (sW, sW8))
    if ROT:
        a.e('s_and_b32 s3, s%d, 3' % sCB)
        a.e('s_lshl_b32 s3, s3, 1')
        a.e('s_add_u32 s3, s3, s%d' % sRB)
        a.e('s_sub_u32 s%d, s3, 7' % sCH)
        a.e('s_cmp_ge_u32 s3, 7')
        a.e('s_cselect_b32 s%d, s%d, s3' % (sCH, sCH))
    else:
        a.e('s_mov_b32 s%d, 0' % sCH)
    a.e('s_lshl_b32 s%d, s%d, 7' % (sXK, sCH))
    a.e('v_and_b32 v%d, 255, v%d' % (vTID, vTID))
    consts(a, sCON)
    a.e('s_lshl_b32 s%d, s%d, 8' % (sT, sRB))
    a.e('s_lshl_b32 s%d, s%d, 6' % (sT2, sW))
    a.e('s_add_u32 s%d, s%d, s%d' % (sT, sT, sT2))
    a.e('v_lshrrev_b32 v8, 3, v0')
    a.e('v_add_u32 v8, s%d, v8' % sT)
    a.e('v_mul_u32_u24 v8, 896, v8')
    a.e('v_and_b32 v9, 7, v0')
    a.e('v_lshrrev_b32 v10, 4, v0')
    a.e('v_xor_b32 v11, v9, v10')
    a.e('v_lshl_add_u32 v%d, v11, 4, v8' % vXO[0])
    a.e('v_xor_b32 v11, 4, v11')
    a.e('v_lshl_add_u32 v%d, v11, 4, v8' % vXO[1])
    a.e('s_lshl_b32 s%d, s%d, 13' % (sXD, sW))
    a.e('v_and_b32 v8, 31, v0')
    a.e('v_lshrrev_b32 v9, 5, v0')
    a.e('v_bfe_u32 v10, v8, 1, 3')
    a.e('v_lshlrev_b32 v11, 7, v8')
    a.e('v_add_u32 v11, s%d, v11' % sXD)
    for ks in range(4):
        a.e('v_add_u32 v12, %d, v9' % (2 * ks))
        a.e('v_xor_b32 v12, v12, v10')
        a.e('v_lshl_add_u32 v%d, v12, 4, v11' % vXA[ks])
    a.e('v_lshlrev_b32 v%d, 4, v0' % vST)
    a.e('v_bfe_u32 v10, v0, 4, 1')
    a.e('v_bfe_u32 v11, v0, 2, 2')
    a.e('v_and_b32 v12, 3, v0')
    a.e('v_lshl_add_u32 v13, v9, 3, v11')
    a.e('v_and_b32 v14, 1, v12')
    a.e('v_lshlrev_b32 v14, 1, v14')
    a.e('v_lshrrev_b32 v15, 1, v12')
    a.e('v_add_u32 v14, v14, v15')
    a.e('v_lshlrev_b32 v14, 3, v14')
    a.e('s_waitcnt lgkmcnt(0)')
    srd(a, SX, 4, SZ_X)
    srd(a, SWQKV, 6, SZ_WQKV)
    srd(a, SW1, 12, SZ_W1)
    srd(a, SW3, 14, SZ_W1)
    srd(a, SWS, 98, WS_SRD)
    srd(a, SW2, 16, SZ_W2)
    srd(a, SWO, 8, SZ_WO)
    srd(a, SGW, 18, SZ_GW)
    srd(a, SDBG, 96, 256)
    stamp(a, 0, vSTAMP)
    stamp(a, 10, vSTAMP, real=True)
    a.e('s_and_b32 s%d, s%d, 1' % (sT, sCB))
    a.e('s_cmp_eq_u32 s%d, 1' % sT)
    a.e('s_cbranch_scc1 K1_TYPEB')

    def dma_chunk(i, slot_srd, slot_step):
        sb = (i % 3) * STAGE
        for q in range(8):
            a.e('s_add_u32 m0, s%d, %d' % (sXD, sb + q * 1024))
            a.e('s_add_u32 s%d, s%d, %d' % (sT, sXK, q * 7168))
            a.e('buffer_load_dwordx4 v%d, %s, s%d offen lds' % (vXO[q & 1], sr(SX, 4), sT))
        a.e('s_add_u32 s%d, s%d, 1' % (sCH, sCH))
        a.e('s_cmp_eq_u32 s%d, 7' % sCH)
        a.e('s_cselect_b32 s%d, 0, s%d' % (sCH, sCH))
        a.e('s_mov_b32 s%d, %d' % (sD1, 64 * 2688))
        a.e('s_cselect_b32 s%d, 0x%x, s%d' % (sD1, (-6 * 64 * 2688) & 0xffffffff, sD1))
        a.e('s_mov_b32 s%d, %d' % (sD2, 64 * 3584))
        a.e('s_cselect_b32 s%d, 0x%x, s%d' % (sD2, (-6 * 64 * 3584) & 0xffffffff, sD2))
        a.e('s_lshl_b32 s%d, s%d, 7' % (sXK, sCH))
        for j in range(5):
            a.e('s_add_u32 m0, s%d, %d' % (DEST[j], sb))
            a.e('s_nop 0')
            a.e('buffer_load_dwordx4 v%d, %s, s%d offen lds' % (vWO[j], sr(slot_srd[j], 4), SOFF[j]))
            a.e('s_add_u32 s%d, s%d, s%d' % (SOFF[j], SOFF[j], sD1 if slot_step[j] == 64 * 2688 else sD2))

    def main_loop(typ, slot_srd, slot_step, extra_at_b5=None, pre_wait=None, loader_tail=None):
        def reads(n):
            i, ks = divmod(n, 4)
            st = n & 1
            L = []
            L.append('ds_read_b128 %s, v%d' % (vr(XF[st], 4), vXA[ks]))
            L.append('ds_read_b128 %s, v%d offset:4096' % (vr(XF[st] + 4, 4), vXA[ks]))
            for t in range(5):
                for rd in range(2):
                    dst = vr(WF[st] + 4 * t + 2 * rd, 2)
                    if typ == 'A':
                        if t == 0:
                            L.append('ds_read_b64_tr_b16 %s, v%d' % (dst, vQ0 if rd == 0 else vQ1))
                        elif t in (1, 2):
                            L.append('ds_read_b64_tr_b16 %s, v%d offset:%d' % (dst, vKV, 4096 * t + ks * 1024 + rd * 256))
                        else:
                            L.append('ds_read_b64_tr_b16 %s, v%d offset:%d' % (dst, vGU, 32 * (t - 3) + ks * 1024 + rd * 256))
                    else:
                        L.append('ds_read_b64_tr_b16 %s, v%d offset:%d' % (dst, vGU, 32 * t + ks * 2560 + rd * 640))
            return L

        def addr_adv(n):
            i, ks = divmod(n, 4)
            if ks == 0:
                delta = STAGE if (i % 3) != 0 else -2 * STAGE
                for r in vXA + [vGU] + ([vKV] if typ == 'A' else []):
                    a.e('v_add_u32 v%d, %d, v%d' % (r, delta, r) if delta > 0 else
                        'v_subrev_u32 v%d, %d, v%d' % (r, -delta, r))
                if typ == 'A':
                    d2 = (delta - 3 * 1024) & 0xffffffff
                    a.e('s_add_u32 s%d, s%d, 1' % (sCH, sCH))
                    a.e('s_cmp_eq_u32 s%d, 7' % sCH)
                    a.e('s_cselect_b32 s%d, 0, s%d' % (sCH, sCH))
                    a.e('s_mov_b32 s3, 128')
                    a.e('s_cselect_b32 s3, 0x%x, s3' % ((-3456) & 0xffffffff))
                    a.e('v_mov_b32 v8, 0x%x' % d2)
                    a.e('v_mov_b32 v9, s3')
                    a.e('v_cndmask_b32 v8, v8, v9, %s' % sr(sGWM, 2))
                    a.e('v_add_u32 v%d, v8, v%d' % (vQ0, vQ0))
                    a.e('v_add_u32 v%d, v8, v%d' % (vQ1, vQ1))
            elif typ == 'A':
                a.e('v_add_u32 v%d, v%d, v%d' % (vQ0, vQI, vQ0))
                a.e('v_add_u32 v%d, v%d, v%d' % (vQ1, vQI, vQ1))

        def mfma(n, t, r):
            st = n & 1
            acc = vr(accb(t, r), 16)
            wf = vr(WF[st] + 4 * t, 4)
            xf = vr(XF[st] + 4 * r, 4)
            c = acc if n > 0 else '0'
            if typ == 'A' and t in (1, 2):
                a.e('v_mfma_f32_32x32x16_bf16 %s, %s, %s, %s' % (acc, xf, wf, c))
            else:
                a.e('v_mfma_f32_32x32x16_bf16 %s, %s, %s, %s' % (acc, wf, xf, c))

        for j in range(5):
            a.e('s_mul_i32 s3, s%d, %d' % (sCH, slot_step[j]))
            a.e('s_add_u32 s%d, s%d, s3' % (SOFF[j], SOFF[j]))
        if typ == 'A':
            a.e('s_lshl_b32 s3, s%d, 9' % sCH)
            a.e('v_mov_b32 v8, s3')
            a.e('v_cndmask_b32 v8, 0, v8, %s' % sr(sGWM, 2))
            a.e('v_add_u32 v%d, v8, v%d' % (vQ0, vQ0))
            a.e('v_add_u32 v%d, v8, v%d' % (vQ1, vQ1))
        a.e('s_cmp_lt_u32 s%d, 4' % sW8)
        a.e('s_cbranch_scc1 K1%s_COMPUTE' % typ)
        outstanding = []
        dma_chunk(0, slot_srd, slot_step)
        outstanding.append(13)
        stamp(a, 1, vSTAMP)
        outstanding.append(0)
        if pre_wait:
            pre_wait(sum(outstanding))
        if not EARLY:
            dma_chunk(1, slot_srd, slot_step)
            outstanding.append(13)
        stamp(a, 2, vSTAMP)
        a.e('s_waitcnt vmcnt(%d) lgkmcnt(0)' % sum(outstanding[1:]))
        outstanding.pop(0)
        stamp(a, 3, vSTAMP)
        a.e('s_barrier')
        if EARLY:
            dma_chunk(1, slot_srd, slot_step)
            outstanding.append(13)
        dma_chunk(2, slot_srd, slot_step)
        outstanding.append(13)
        if PREFETCH:
            npf = 0
            a.e('s_lshr_b32 s3, s2, 3')
            a.e('s_lshl_b32 s3, s3, 6')
            a.e('v_add_u32 v16, s3, v0')
            a.e('v_mul_u32_u24 v16, 896, v16')
            a.e('s_lshl_b32 s3, s%d, 7' % sW)
            a.e('s_add_u32 s3, s3, 384')
            a.e('buffer_load_dword v17, v16, %s, s3 offen' % sr(SX, 4))
            npf += 1
            a.e('s_and_b32 s%d, s%d, 3' % (sT2, sRB))
            for j in range(5):
                a.e('s_mul_i32 s3, s%d, %d' % (sT2, slot_step[j]))
                a.e('s_add_u32 s3, s3, s%d' % SOFF[j])
                a.e('buffer_load_dwordx4 %s, v%d, %s, s3 offen' % (vr(20 + 4 * j, 4), vWO[j], sr(slot_srd[j], 4)))
                npf += 1
            outstanding[-1] += npf
        outstanding = [outstanding[0] + outstanding[1]] + outstanding[2:]
        for i in range(6):
            a.e('s_waitcnt vmcnt(%d)' % sum(outstanding[1:]))
            outstanding.pop(0)
            a.e('s_barrier')
            if i + 3 <= 6:
                dma_chunk(i + 3, slot_srd, slot_step)
                outstanding.append(13)
            elif i == 4 and extra_at_b5:
                outstanding.append(extra_at_b5())
        if loader_tail:
            loader_tail()
        stamp(a, 9, vSTAMP)
        stamp(a, 11, vSTAMP, real=True)
        stamp_store(a, vSTAMP, SWS, sW8, 8, STAMP_OFF, 8)
        a.e('s_endpgm')
        a.lab('K1%s_COMPUTE' % typ)
        if PF2:
            a.e('s_lshr_b32 s3, s2, 3')
            a.e('s_lshl_b32 s3, s3, 2')
            a.e('s_add_u32 s3, s3, s%d' % sW)
            a.e('s_mul_i32 s3, s3, %d' % (16 * 896))
            a.e('v_lshlrev_b32 v16, 7, v0')
            a.e('v_min_u32 v17, %d, v16' % (47 * 128))
            a.e('buffer_load_dword v18, v16, %s, s3 offen' % sr(SX, 4))
            a.e('s_add_u32 s3, s3, 8192')
            a.e('buffer_load_dword v19, v17, %s, s3 offen' % sr(SX, 4))
            a.e('v_min_u32 v16, 55, v0')
            a.e('s_mul_i32 s3, s%d, 56' % sRB)
            a.e('v_add_u32 v16, s3, v16')
            a.e('v_mul_u32_u24 v17, 3584, v16')
            a.e('v_mul_u32_u24 v16, 2688, v16')
            if typ == 'A':
                a.e('s_mul_i32 s%d, s%d, 56' % (sT, sC))
                a.e('s_lshl_b32 s%d, s%d, 6' % (sT2, sC))
                tg = []
                for rho in range(3):
                    tg.append((SWQKV, 16, sT, rho * 896))
                    tg.append((SWQKV, 16, sT, rho * 896 + 52))
                tg.append((SW1, 17, sT2, 0))
                tg.append((SW3, 17, sT2, 0))
            else:
                a.e('s_mul_i32 s%d, s%d, 160' % (sT, sC))
                a.e('s_add_u32 s%d, s%d, 1024' % (sT, sT))
                tg = [(sd, 17, sT, o) for sd in (SW1, SW3) for o in (0, 80, 156)]
            for w in range(4):
                mine = tg[2 * w:2 * w + 2]
                if not mine:
                    continue
                a.e('s_cmp_lg_u32 s%d, %d' % (sW, w))
                a.e('s_cbranch_scc1 K1%s_PF%d' % (typ, w))
                for n_, (sd, vv, ss, off) in enumerate(mine):
                    a.e('buffer_load_dword v%d, v%d, %s, s%d offen offset:%d' % (20 + n_, vv, sr(sd, 4), ss, off))
                a.lab('K1%s_PF%d' % (typ, w))
        a.e('s_barrier')
        stamp(a, 1, vSTAMP)
        for s in reads(0):
            a.e(s)
        for n in range(28):
            i, ks = divmod(n, 4)
            a.c('step %d' % n)
            a.e('s_waitcnt lgkmcnt(0)')
            if ks == 3 and i < 6:
                a.e('s_barrier')
                stamp(a, 2 + i, vSTAMP)
            mfma(n, 0, 0)
            R = []
            if n + 1 < 28:
                addr_adv(n + 1)
                R = reads(n + 1)
            k = 0
            for m in range(1, 10):
                for s in R[k:k + 2]:
                    a.e(s)
                k += 2
                mfma(n, m // 2, m % 2)
        stamp(a, 8, vSTAMP)

    a.e('v_lshl_add_u32 v15, v10, 2, v12')
    a.e('v_and_b32 v8, 6, v15')
    a.e('v_cmp_eq_u32 vcc, 6, v8')
    a.e('v_xor_b32 v8, 1, v15')
    a.e('v_cndmask_b32 v8, v15, v8, vcc')
    a.e('v_lshlrev_b32 v8, 3, v8')
    a.e('v_lshl_add_u32 v8, v13, 6, v8')
    a.e('v_add_u32 v%d, %d, v8' % (vKV, XREG))
    a.e('v_cmp_eq_u32 %s, 7, v15' % sr(sGWM, 2))
    a.e('v_lshlrev_b32 v9, 3, v13')
    a.e('v_add_u32 v9, %d, v9' % GWX)
    a.e('v_cndmask_b32 v%d, v%d, v9, %s' % (vQ0, vKV, sr(sGWM, 2)))
    a.e('v_add_u32 v8, 256, v%d' % vKV)
    a.e('v_add_u32 v9, 32, v9')
    a.e('v_cndmask_b32 v%d, v8, v9, %s' % (vQ1, sr(sGWM, 2)))
    a.e('v_mov_b32 v%d, 128' % vC128)
    a.e('v_mov_b32 v8, 1024')
    a.e('v_cndmask_b32 v%d, v8, v%d, %s' % (vQI, vC128, sr(sGWM, 2)))
    a.e('v_mul_u32_u24 v8, %d, v10' % (WOFF_A[4] - WOFF_A[3]))
    a.e('v_lshl_add_u32 v8, v13, 6, v8')
    a.e('v_add_u32 v8, v14, v8')
    a.e('v_add_u32 v%d, %d, v8' % (vGU, XREG + WOFF_A[3]))
    a.e('v_lshrrev_b32 v8, 2, v0')
    a.e('v_and_b32 v9, 3, v0')
    a.e('v_lshlrev_b32 v10, 4, v9')
    a.e('v_cmp_eq_u32 vcc, 3, v9')
    a.e('v_mov_b32 v11, 40')
    a.e('v_cndmask_b32 v11, v10, v11, vcc')
    a.e('v_mul_u32_u24 v12, 2688, v8')
    a.e('v_add_u32 v12, v12, v11')
    a.e('v_mul_u32_u24 v13, 3584, v8')
    a.e('v_add_u32 v13, v13, v10')
    a.e('s_mul_i32 s%d, s%d, 56' % (sT, sC))
    a.e('v_add_u32 v%d, s%d, v12' % (vWO[0], sT))
    a.e('v_mov_b32 v%d, v%d' % (vWO[1], vWO[0]))
    a.e('v_mov_b32 v%d, v%d' % (vWO[2], vWO[0]))
    a.e('s_lshl_b32 s3, s%d, 6' % sC)
    a.e('v_add_u32 v%d, s3, v13' % vWO[3])
    a.e('v_mov_b32 v%d, v%d' % (vWO[4], vWO[3]))
    a.e('s_mul_i32 s%d, s%d, %d' % (SOFF[0], sW, 16 * 2688))
    a.e('s_add_u32 s%d, s%d, 896' % (SOFF[1], SOFF[0]))
    a.e('s_add_u32 s%d, s%d, 1792' % (SOFF[2], SOFF[0]))
    a.e('s_mul_i32 s%d, s%d, %d' % (SOFF[3], sW, 16 * 3584))
    a.e('s_mov_b32 s%d, s%d' % (SOFF[4], SOFF[3]))
    a.e('s_lshl_b32 s3, s%d, 10' % sW)
    for j in range(5):
        a.e('s_add_u32 s%d, s3, %d' % (DEST[j], XREG + WOFF_A[j]))
    a.e('v_lshlrev_b32 v8, 1, v%d' % vTID)
    a.e('buffer_load_ushort v10, v8, %s, 0 offen' % sr(SGW, 4))
    a.e('buffer_load_ushort v12, v8, %s, 0 offen offset:512' % sr(SGW, 4))

    def pre_wait_A(nout):
        a.e('s_waitcnt vmcnt(%d)' % nout)
        a.e('v_lshl_or_b32 v10, v10, 16, v10')
        a.e('v_mov_b32 v11, v10')
        a.e('v_lshl_or_b32 v12, v12, 16, v12')
        a.e('v_mov_b32 v13, v12')
        a.e('v_lshlrev_b32 v8, 3, v%d' % vTID)
        a.e('v_add_u32 v8, %d, v8' % GWX)
        a.e('ds_write_b64 v8, v[10:11]')
        a.e('v_cmp_gt_u32 vcc, 192, v%d' % vTID)
        a.e('s_and_saveexec_b64 %s, vcc' % sr(sEX, 2))
        a.e('ds_write_b64 v8, v[12:13] offset:2048')
        a.e('s_mov_b64 exec, %s' % sr(sEX, 2))

    HAND = STAGE + 16384

    def hand_write(tiles):
        a.e('s_mul_i32 s3, s%d, %d' % (sW, 4096 * len(tiles)))
        a.e('v_add_u32 v8, s3, v%d' % vST)
        a.e('v_add_u32 v8, %d, v8' % HAND)
        for n_, b in enumerate(tiles):
            for q in range(4):
                a.e('ds_write_b128 v8, %s offset:%d' % (vr(b + 4 * q, 4), 4096 * n_ + 1024 * q))
        a.e('s_waitcnt lgkmcnt(0)')
        a.e('s_barrier')

    def hand_read(ntiles):
        a.e('s_barrier')
        a.e('s_mul_i32 s3, s%d, %d' % (sW, 4096 * ntiles))
        a.e('v_add_u32 v8, s3, v%d' % vST)
        a.e('v_add_u32 v8, %d, v8' % HAND)
        for n_ in range(ntiles):
            for q in range(4):
                a.e('ds_read_b128 %s, v8 offset:%d' % (vr(ACC + 16 * n_ + 4 * q, 4), 4096 * n_ + 1024 * q))

    def rt0_calc():
        a.e('s_lshl_b32 s%d, s%d, 3' % (sT3, sRB))
        a.e('s_lshl_b32 s3, s%d, 1' % sW)
        a.e('s_add_u32 s%d, s%d, s3' % (sT3, sT3))

    def kv_tail():
        RED = STAGE
        hand_read(4)
        rt0_calc()
        a.e('s_mul_i32 s3, s%d, 112' % sT3)
        a.e('s_lshl_b32 s%d, s%d, 1' % (sT, sC))
        a.e('s_add_u32 s3, s3, s%d' % sT)
        a.e('s_lshl_b32 s3, s3, 10')
        a.e('s_add_u32 s3, s3, %d' % H_OFF)
        a.e('s_add_u32 s%d, s3, %d' % (sT, 112 * 1024))
        for r in range(2):
            for m in range(2):
                n_ = 2 * r + m
                o = 36 + 4 * n_
                a.e('s_waitcnt lgkmcnt(%d)' % (12 - 4 * n_))
                silu_mul(a, ACC + 16 * n_, 16, o, sCON)
                a.e('buffer_store_dwordx4 %s, v%d, %s, %s offen offset:%d' % (vr(o, 4), vST, sr(SWS, 4), 's3' if r == 0 else 's%d' % sT, 1024 * m))
        a.e('s_barrier')
        a.e('s_cmp_lg_u32 s%d, 0' % sW)
        a.e('s_cbranch_scc1 K1A_DONE')
        KR = ACC
        a.e('v_add_u32 v8, %d, v%d' % (RED, vST))
        for p in range(4):
            for q in range(4):
                a.e('ds_read_b128 %s, v8 offset:%d' % (vr(KR + 16 * p + 4 * q, 4), 4096 * p + 1024 * q))
        a.e('s_lshl_b32 s3, s%d, 3' % sC)
        a.e('s_add_u32 s3, s3, s%d' % sRB)
        a.e('s_lshl_b32 s3, s3, 12')
        a.e('s_add_u32 s3, s3, %d' % KVP_OFF)
        a.e('s_waitcnt lgkmcnt(0)')
        for i in range(8):
            a.e('v_pk_add_f32 %s, %s, %s' % (vr(KR + 2 * i, 2), vr(KR + 2 * i, 2), vr(KR + 16 + 2 * i, 2)))
            a.e('v_pk_add_f32 %s, %s, %s' % (vr(KR + 32 + 2 * i, 2), vr(KR + 32 + 2 * i, 2), vr(KR + 48 + 2 * i, 2)))
        for i in range(8):
            a.e('v_pk_add_f32 %s, %s, %s' % (vr(KR + 2 * i, 2), vr(KR + 2 * i, 2), vr(KR + 32 + 2 * i, 2)))
        for q in range(4):
            a.e('buffer_store_dwordx4 %s, v%d, %s, s3 offen offset:%d sc1' % (vr(KR + 4 * q, 4), vST, sr(SWS, 4), 1024 * q))
        a.lab('K1A_DONE')

    main_loop('A', [SWQKV, SWQKV, SWQKV, SW1, SW3], [64 * 2688] * 3 + [64 * 3584] * 2, None, pre_wait_A, kv_tail)
    TMP = WF[0]
    PK = 36
    PV = 44
    a.e('s_lshl_b32 s%d, s%d, 3' % (sT3, sRB))
    a.e('s_lshl_b32 s3, s%d, 1' % sW)
    a.e('s_add_u32 s%d, s%d, s3' % (sT3, sT3))
    hand_write([accb(3, 0), accb(4, 0), accb(3, 1), accb(4, 1)])
    a.e('v_and_b32 v8, 31, v0')
    a.e('v_cmp_le_u32 %s, 28, v8' % sr(sGWM, 2))
    a.e('v_mov_b32 v9, 0x3f803f80')
    KVA = 56
    for r in range(2):
        phi16(a, accb(1, r), TMP, PK, sCON)
        for i in range(8):
            a.e('v_cvt_pk_bf16_f32 v%d, v%d, v%d' % (PV + i, accb(2, r) + 2 * i, accb(2, r) + 2 * i + 1))
        for i in range(8):
            a.e('v_cndmask_b32 v%d, v%d, v9, %s' % (PV + i, PV + i, sr(sGWM, 2)))
        a.e('v_mfma_f32_32x32x16_bf16 %s, %s, %s, %s' % (vr(KVA, 16), vr(PK, 4), vr(PV, 4), '0' if r == 0 else vr(KVA, 16)))
        a.e('v_mfma_f32_32x32x16_bf16 %s, %s, %s, %s' % (vr(KVA, 16), vr(PK + 4, 4), vr(PV + 4, 4), vr(KVA, 16)))
    RED = STAGE
    a.e('s_lshl_b32 s3, s%d, 12' % sW)
    a.e('v_add_u32 v8, s3, v%d' % vST)
    a.e('v_add_u32 v8, %d, v8' % RED)
    for q in range(4):
        a.e('ds_write_b128 v8, %s offset:%d' % (vr(KVA + 4 * q, 4), 1024 * q))
    a.e('s_waitcnt lgkmcnt(0)')
    a.e('s_barrier')
    a.e('v_mov_b32 v10, v%d' % (accb(0, 0) + 12))
    a.e('v_mov_b32 v11, v%d' % (accb(0, 1) + 12))
    a.e('s_lshl_b32 s3, s%d, 4' % sT3)
    a.e('s_add_u32 s3, s3, s%d' % sC)
    a.e('s_lshl_b32 s3, s3, 11')
    a.e('s_add_u32 s%d, s3, 32768' % sT)
    for r in range(2):
        o = PK + 8 * r
        phi16(a, accb(0, r), TMP, o, sCON)
        sb = 's3' if r == 0 else 's%d' % sT
        a.e('buffer_store_dwordx4 %s, v%d, %s, %s offen' % (vr(o, 4), vST, sr(SWS, 4), sb))
        a.e('buffer_store_dwordx4 %s, v%d, %s, %s offen offset:1024' % (vr(o + 4, 4), vST, sr(SWS, 4), sb))
    a.e('s_cmp_lg_u32 s%d, 0' % sC)
    a.e('s_cbranch_scc1 K1A_NOG')
    a.e('v_cvt_pk_bf16_f32 v12, v10, v11')
    a.e('v_lshlrev_b32 v10, 16, v12')
    a.e('v_and_b32 v11, 0xffff0000, v12')
    a.e('v_pk_mul_f32 v[10:11], v[10:11], %s' % sr(sCON + 4, 2))
    a.e('v_exp_f32 v10, v10')
    a.e('v_exp_f32 v11, v11')
    a.e('v_pk_add_f32 v[10:11], v[10:11], %s' % sr(sCON + 6, 2))
    a.e('v_rcp_f32 v10, v10')
    a.e('v_rcp_f32 v11, v11')
    a.e('v_cvt_pk_bf16_f32 v12, v10, v11')
    a.e('v_lshlrev_b32 v10, 16, v12')
    a.e('v_and_b32 v11, 0xffff0000, v12')
    a.e('v_and_b32 v12, 31, v0')
    a.e('v_lshlrev_b32 v12, 2, v12')
    a.e('s_lshl_b32 s3, s%d, 7' % sT3)
    a.e('s_add_u32 s3, s3, %d' % G_OFF)
    a.e('v_cmp_le_u32 vcc, 32, v0')
    a.e('s_and_saveexec_b64 %s, vcc' % sr(sEX, 2))
    a.e('buffer_store_dword v10, v12, %s, s3 offen' % sr(SWS, 4))
    a.e('buffer_store_dword v11, v12, %s, s3 offen offset:128' % sr(SWS, 4))
    a.e('s_mov_b64 exec, %s' % sr(sEX, 2))
    a.lab('K1A_NOG')
    stamp(a, 9, vSTAMP)
    stamp(a, 11, vSTAMP, real=True)
    stamp_store(a, vSTAMP, SWS, sW8, 8, STAMP_OFF, 8)
    a.e('s_endpgm')

    a.lab('K1_TYPEB')
    a.e('v_mul_u32_u24 v8, %d, v10' % WOFF_B[1])
    a.e('v_mul_u32_u24 v9, 160, v13')
    a.e('v_add3_u32 v8, v8, v9, v14')
    a.e('v_add_u32 v%d, %d, v8' % (vGU, XREG))
    a.e('s_mul_i32 s%d, s%d, 160' % (sT, sC))
    a.e('s_add_u32 s%d, s%d, 1024' % (sT, sT))

    def slotB(j, q_sgpr):
        a.e('s_lshl_b32 s3, s%d, 6' % q_sgpr)
        a.e('v_add_u32 v8, s3, v0')
        a.e('v_mul_u32_u24 v9, 6554, v8')
        a.e('v_lshrrev_b32 v9, 16, v9')
        a.e('v_mul_u32_u24 v10, 10, v9')
        a.e('v_sub_u32 v10, v8, v10')
        a.e('v_mul_u32_u24 v9, 3584, v9')
        a.e('v_lshl_add_u32 v9, v10, 4, v9')
        a.e('v_add_u32 v%d, s%d, v9' % (vWO[j], sT))
        a.e('s_mov_b32 s%d, 0' % SOFF[j])
        a.e('s_lshl_b32 s%d, s%d, 10' % (DEST[j], q_sgpr))

    slotB(0, sW)
    a.e('s_add_u32 s%d, s%d, %d' % (DEST[0], DEST[0], XREG + WOFF_B[0]))
    a.e('s_add_u32 s%d, s%d, 4' % (sT2, sW))
    slotB(1, sT2)
    a.e('s_add_u32 s%d, s%d, %d' % (DEST[1], DEST[1], XREG + WOFF_B[0]))
    a.e('s_add_u32 s%d, s%d, 8' % (sT2, sW))
    a.e('s_sub_u32 s%d, s%d, 2' % (sT3, sW))
    a.e('s_cmp_lt_u32 s%d, 2' % sW)
    a.e('s_cselect_b32 s%d, s%d, s%d' % (sT2, sT2, sT3))
    a.e('s_cselect_b64 %s, %s, %s' % (sr(SLX, 2), sr(SW1, 2), sr(SW3, 2)))
    a.e('s_cselect_b64 %s, %s, %s' % (sr(SLX + 2, 2), sr(SW1 + 2, 2), sr(SW3 + 2, 2)))
    a.e('s_mov_b32 s%d, %d' % (sT3, XREG + WOFF_B[1]))
    a.e('s_cselect_b32 s%d, %d, s%d' % (sT3, XREG + WOFF_B[0], sT3))
    slotB(2, sT2)
    a.e('s_add_u32 s%d, s%d, s%d' % (DEST[2], DEST[2], sT3))
    a.e('s_add_u32 s%d, s%d, 2' % (sT2, sW))
    slotB(3, sT2)
    a.e('s_add_u32 s%d, s%d, %d' % (DEST[3], DEST[3], XREG + WOFF_B[1]))
    a.e('s_add_u32 s%d, s%d, 6' % (sT2, sW))
    slotB(4, sT2)
    a.e('s_add_u32 s%d, s%d, %d' % (DEST[4], DEST[4], XREG + WOFF_B[1]))

    PREP = STAGE
    sPU = [[4, 5, 6], [7, 8, 9]]
    sPD = 10

    def prep_issue():
        a.e('s_lshl_b32 s%d, s%d, 12' % (sPD, sW))
        a.e('s_add_u32 s%d, s%d, %d' % (sPD, sPD, PREP))
        a.e('v_lshrrev_b32 v8, 2, v0')
        a.e('v_mul_u32_u24 v8, 896, v8')
        a.e('v_and_b32 v9, 3, v0')
        a.e('v_lshl_add_u32 v8, v9, 4, v8')
        for u in range(2):
            sNT, sK, sISWO = sPU[u]
            a.e('s_lshl_b32 s%d, s%d, 4' % (sT, sRB))
            a.e('s_add_u32 s%d, s%d, s%d' % (sT, sT, sC))
            a.e('s_lshl_b32 s%d, s%d, 2' % (sT, sT))
            a.e('s_add_u32 s%d, s%d, s%d' % (sT, sT, sW))
            a.e('s_lshl_b32 s%d, s%d, 1' % (sT, sT))
            a.e('s_add_u32 s%d, s%d, %d' % (sT, sT, u))
            a.e('s_min_u32 s%d, s%d, 1007' % (sT, sT))
            a.e('s_cmp_ge_u32 s%d, 784' % sT)
            a.e('s_cselect_b32 s%d, 1, 0' % sISWO)
            a.e('s_cselect_b32 s%d, 784, 0' % sT2)
            a.e('s_sub_u32 s%d, s%d, s%d' % (sT, sT, sT2))
            a.e('s_mul_i32 s%d, s%d, 4682' % (sK, sT))
            a.e('s_lshr_b32 s%d, s%d, 16' % (sK, sK))
            a.e('s_mul_i32 s%d, s%d, 14' % (sT2, sK))
            a.e('s_sub_u32 s%d, s%d, s%d' % (sNT, sT, sT2))
            a.e('s_cmp_eq_u32 s%d, 1' % sISWO)
            a.e('s_cselect_b32 s%d, 28, 32' % sT2)
            a.e('s_mul_i32 s%d, s%d, s%d' % (sT2, sT2, sK))
            a.e('s_mul_i32 s%d, s%d, 896' % (sT2, sT2))
            a.e('s_lshl_b32 s%d, s%d, 6' % (sT3, sNT))
            a.e('s_add_u32 s%d, s%d, s%d' % (sT2, sT2, sT3))
            a.e('s_cmp_eq_u32 s%d, 1' % sISWO)
            a.e('s_cselect_b64 %s, %s, %s' % (sr(SLX, 2), sr(SWO, 2), sr(SW2, 2)))
            a.e('s_cselect_b64 %s, %s, %s' % (sr(SLX + 2, 2), sr(SWO + 2, 2), sr(SW2 + 2, 2)))
            a.e('s_add_u32 m0, s%d, %d' % (sPD, 2048 * u))
            a.e('s_add_u32 s%d, s%d, %d' % (sT3, sT2, 16 * 896))
            a.e('buffer_load_dwordx4 v8, %s, s%d offen lds' % (sr(SLX, 4), sT2))
            a.e('s_add_u32 m0, s%d, %d' % (sPD, 2048 * u + 1024))
            a.e('s_nop 0')
            a.e('buffer_load_dwordx4 v8, %s, s%d offen lds' % (sr(SLX, 4), sT3))
        return 4

    def prep_finish():
        a.e('v_lshrrev_b32 v9, 5, v0')
        a.e('v_bfe_u32 v10, v0, 4, 1')
        a.e('v_bfe_u32 v11, v0, 2, 2')
        a.e('v_and_b32 v12, 3, v0')
        a.e('v_lshl_add_u32 v15, v10, 2, v12')
        a.e('v_and_b32 v13, 1, v15')
        a.e('v_lshlrev_b32 v13, 2, v13')
        a.e('v_lshrrev_b32 v14, 1, v15')
        a.e('v_add_u32 v13, v13, v14')
        a.e('v_lshlrev_b32 v13, 3, v13')
        a.e('s_waitcnt vmcnt(0)')
        for u in range(2):
            sNT, sK, sISWO = sPU[u]
            P = ACC + 8 * u
            a.e('s_cmp_eq_u32 s%d, 1' % sISWO)
            a.e('s_cselect_b32 s%d, 2, 3' % sT)
            a.e('s_mov_b32 s%d, 256' % sT2)
            a.e('s_cselect_b32 s%d, 512, s%d' % (sT2, sT2))
            a.e('v_lshlrev_b32 v14, s%d, v9' % sT)
            a.e('v_add_u32 v14, v14, v11')
            a.e('v_lshl_add_u32 v14, v14, 6, v13')
            a.e('v_add_u32 v14, s%d, v14' % sPD)
            a.e('v_add_u32 v15, s%d, v14' % sT2)
            a.e('ds_read_b64_tr_b16 %s, v14 offset:%d' % (vr(P, 2), 2048 * u))
            a.e('ds_read_b64_tr_b16 %s, v15 offset:%d' % (vr(P + 2, 2), 2048 * u))
            a.e('ds_read_b64_tr_b16 %s, v14 offset:%d' % (vr(P + 4, 2), 2048 * u + 1024))
            a.e('ds_read_b64_tr_b16 %s, v15 offset:%d' % (vr(P + 6, 2), 2048 * u + 1024))
            a.e('s_mul_i32 s%d, s%d, 112' % (sT, sNT))
            a.e('s_lshl_b32 s%d, s%d, 1' % (sT2, sK))
            a.e('s_add_u32 s%d, s%d, s%d' % (sT, sT, sT2))
            a.e('s_lshl_b32 s%d, s%d, 10' % (sT, sT))
            a.e('s_add_u32 s%d, s%d, %d' % (sT, sT, W2P_OFF))
            a.e('s_lshl_b32 s%d, s%d, 4' % (sT3, sNT))
            a.e('s_add_u32 s%d, s%d, s%d' % (sT3, sT3, sK))
            a.e('s_lshl_b32 s%d, s%d, 11' % (sT3, sT3))
            a.e('s_add_u32 s%d, s%d, %d' % (sT3, sT3, WOP_OFF))
            a.e('s_cmp_eq_u32 s%d, 1' % sISWO)
            a.e('s_cselect_b32 s%d, s%d, s%d' % (sT, sT3, sT))
            a.e('s_cselect_b32 s%d, 32, 64' % sT2)
            a.e('v_cmp_le_u32 vcc, s%d, v0' % sT2)
            a.e('s_waitcnt lgkmcnt(0)')
            a.e('v_cndmask_b32 v%d, v%d, 0, vcc' % (P + 6, P + 6))
            a.e('v_cndmask_b32 v%d, v%d, 0, vcc' % (P + 7, P + 7))
            a.e('buffer_store_dwordx4 %s, v%d, %s, s%d offen' % (vr(P, 4), vST, sr(SWS, 4), sT))
            a.e('buffer_store_dwordx4 %s, v%d, %s, s%d offen offset:1024' % (vr(P + 4, 4), vST, sr(SWS, 4), sT))

    def tail_B():
        prep_finish()
        hand_read(5)
        rt0_calc()
        a.e('s_add_u32 s%d, s%d, 1' % (sT3, sT3))
        a.e('s_mul_i32 s3, s%d, 112' % sT3)
        a.e('s_mul_i32 s%d, s%d, 5' % (sT, sC))
        a.e('s_add_u32 s3, s3, s%d' % sT)
        a.e('s_add_u32 s3, s3, 32')
        a.e('s_lshl_b32 s3, s3, 10')
        a.e('s_add_u32 s3, s3, %d' % H_OFF)
        for m in range(5):
            o = 36 + 4 * (m % 4)
            a.e('s_waitcnt lgkmcnt(%d)' % min(15, 16 - 4 * m))
            silu_mul(a, ACC + 16 * m, 16, o, sCON)
            a.e('buffer_store_dwordx4 %s, v%d, %s, s3 offen' % (vr(o, 4), vST, sr(SWS, 4)))
            a.e('s_add_u32 s3, s3, 1024')

    main_loop('B', [SW1, SW1, SLX, SW3, SW3], [64 * 3584] * 5, prep_issue, None, tail_B)
    TMP = WF[0]
    a.e('s_lshl_b32 s%d, s%d, 3' % (sT3, sRB))
    a.e('s_lshl_b32 s3, s%d, 1' % sW)
    a.e('s_add_u32 s%d, s%d, s3' % (sT3, sT3))
    a.e('s_mul_i32 s3, s%d, 112' % sT3)
    a.e('s_mul_i32 s%d, s%d, 5' % (sT, sC))
    a.e('s_add_u32 s3, s3, s%d' % sT)
    a.e('s_add_u32 s3, s3, 32')
    a.e('s_lshl_b32 s3, s3, 10')
    a.e('s_add_u32 s3, s3, %d' % H_OFF)
    a.e('s_mov_b32 s%d, s3' % sT2)
    hand_write([accb(m, 1) for m in range(5)])
    for m in range(5):
        o = 36 + 4 * (m % 4)
        silu_mul(a, accb(m, 0), TMP, o, sCON)
        a.e('buffer_store_dwordx4 %s, v%d, %s, s%d offen' % (vr(o, 4), vST, sr(SWS, 4), sT2))
        a.e('s_add_u32 s%d, s%d, 1024' % (sT2, sT2))
    stamp(a, 9, vSTAMP)
    stamp(a, 11, vSTAMP, real=True)
    stamp_store(a, vSTAMP, SWS, sW8, 8, STAMP_OFF, 8)
    a.lab('K1_END')
    a.e('s_endpgm')
    return a.final()


def gen_k2():
    a = Asm()
    a.sp = 36
    SWS, SOUT = 8, 12
    sW, sRB, sCB, sT, sT2 = 16, 17, 18, 19, 20
    sH = [24, 25]
    sW2 = [26, 27]
    sKVT, sPQ, sWO = 28, [29, 30], [31, 32]
    vST = 1
    vG = [2, 4]
    vOMG = [6, 8]
    vSTAMP = 15
    DF = int(os.environ.get('DF', '10'))
    FB = 16
    HB = FB + 64
    OB = HB + 40
    OP = OB + 16
    TM = OP + 8
    BB = TM + 8
    NV = BB + 64
    accA = lambda rt, nt: vr(FB + 16 * (2 * rt + nt), 16)
    accB = lambda rt, nt: vr(BB + 16 * (2 * rt + nt), 16)

    a.lab('k2_kernel')
    SDBG = 40
    vFLAG = 14
    a.e('s_cmp_ge_u32 s2, 240')
    a.e('s_cbranch_scc1 K2_END')
    a.e('s_load_dwordx4 s[4:7], s[0:1], 64')
    a.e('s_load_dwordx2 s[44:45], s[0:1], 80')
    a.e('s_cmp_lt_u32 s2, 16')
    a.e('s_cbranch_scc1 K2_HELPER')
    a.e('s_sub_u32 s2, s2, 16')
    a.e('v_lshrrev_b32 v8, 6, v0')
    a.e('v_and_b32 v0, 63, v0')
    a.e('v_readfirstlane_b32 s%d, v8' % sW)
    a.e('v_lshlrev_b32 v%d, 4, v0' % vST)
    a.e('s_and_b32 s3, s2, 7')
    a.e('s_lshr_b32 s%d, s2, 3' % sT)
    a.e('s_mul_i32 s%d, s%d, 9363' % (sT2, sT))
    a.e('s_lshr_b32 s%d, s%d, 16' % (sT2, sT2))
    a.e('s_mul_i32 s%d, s%d, 7' % (sCB, sT2))
    a.e('s_sub_u32 s%d, s%d, s%d' % (sCB, sT, sCB))
    a.e('s_lshl_b32 s3, s3, 2')
    a.e('s_add_u32 s%d, s3, s%d' % (sRB, sT2))
    if MAP == 'bad':
        a.e('s_mul_i32 s%d, s2, 9363' % sRB)
        a.e('s_lshr_b32 s%d, s%d, 16' % (sRB, sRB))
        a.e('s_mul_i32 s%d, s%d, 7' % (sCB, sRB))
        a.e('s_sub_u32 s%d, s2, s%d' % (sCB, sCB))
    sG, sD = 33, 34
    if ROT:
        a.e('s_lshl_b32 s3, s%d, 1' % sT2)
        a.e('s_add_u32 s3, s3, s%d' % sCB)
        a.e('s_sub_u32 s%d, s3, 7' % sG)
        a.e('s_cmp_ge_u32 s3, 7')
        a.e('s_cselect_b32 s%d, s%d, s3' % (sG, sG))
    else:
        a.e('s_mov_b32 s%d, 0' % sG)
    a.e('s_mul_i32 s%d, s%d, %d' % (sT, sW, 28 * 1024))
    a.e('s_lshl_b32 s3, s%d, 12' % sG)
    a.e('s_add_u32 s%d, s%d, s3' % (sT, sT))
    a.e('s_mul_i32 s%d, s%d, %d' % (sH[0], sRB, 2 * 112 * 1024))
    a.e('s_add_u32 s%d, s%d, s%d' % (sH[0], sH[0], sT))
    a.e('s_add_u32 s%d, s%d, %d' % (sH[0], sH[0], H_OFF))
    a.e('s_add_u32 s%d, s%d, %d' % (sH[1], sH[0], 112 * 1024))
    a.e('s_mul_i32 s%d, s%d, %d' % (sW2[0], sCB, 2 * 112 * 1024))
    a.e('s_add_u32 s%d, s%d, s%d' % (sW2[0], sW2[0], sT))
    a.e('s_add_u32 s%d, s%d, %d' % (sW2[0], sW2[0], W2P_OFF))
    a.e('s_add_u32 s%d, s%d, %d' % (sW2[1], sW2[0], 112 * 1024))
    a.e('s_lshl_b32 s%d, s%d, 13' % (sT, sW))
    a.e('s_add_u32 s%d, s%d, %d' % (sKVT, sT, KVT_OFF))
    a.e('s_lshl_b32 s%d, s%d, 16' % (sPQ[0], sRB))
    a.e('s_add_u32 s%d, s%d, s%d' % (sPQ[0], sPQ[0], sT))
    a.e('s_add_u32 s%d, s%d, %d' % (sPQ[0], sPQ[0], PQ_OFF))
    a.e('s_add_u32 s%d, s%d, %d' % (sPQ[1], sPQ[0], 32768))
    a.e('s_lshl_b32 s%d, s%d, 16' % (sWO[0], sCB))
    a.e('s_add_u32 s%d, s%d, s%d' % (sWO[0], sWO[0], sT))
    a.e('s_add_u32 s%d, s%d, %d' % (sWO[0], sWO[0], WOP_OFF))
    a.e('s_add_u32 s%d, s%d, %d' % (sWO[1], sWO[0], 32768))
    a.e('v_and_b32 v8, 31, v0')
    a.e('v_lshlrev_b32 v8, 2, v8')
    a.e('s_lshl_b32 s%d, s%d, 8' % (sT, sRB))
    a.e('s_add_u32 s%d, s%d, %d' % (sT, sT, G_OFF))
    a.e('s_waitcnt lgkmcnt(0)')
    srd(a, SWS, 44, WS_SRD)
    srd(a, SOUT, 4, SZ_OUT)
    srd(a, SDBG, 6, 256)
    stamp(a, 0, vSTAMP)
    stamp(a, 10, vSTAMP, real=True)
    issued = []

    def ld(dst, sbase, off, tag, agpr=False):
        d = ('a[%d:%d]' % (dst, dst + 3)) if agpr else vr(dst, 4)
        a.e('buffer_load_dwordx4 %s, v%d, %s, s%d offen offset:%d%s' % (d, vST, sr(SWS, 4), sbase, off, ' sc1' if sbase == sKVT else ''))
        issued.append(tag)

    ar = lambda i: 'a[%d:%d]' % (i, i + 3)

    a.e('buffer_load_dword v%d, v8, %s, s%d offen' % (vG[0], sr(SWS, 4), sT))
    a.e('buffer_load_dword v%d, v8, %s, s%d offen offset:128' % (vG[1], sr(SWS, 4), sT))
    issued += ['g', 'g']

    items = []
    hpos = {16: 0, 20: 1, 24: 2, 27: 3}
    for f in range(28):
        items.append(('F', f))
        if f in hpos:
            items.append(('H', hpos[f]))
    FLAG_ISSUE, FLAG_CHECK = 9, 13

    def issue(it):
        kind, idx = it
        if kind == 'F':
            b = (idx % DF) * 16
            off = (idx % 4) * 1024
            ld(b, sH[0], off, it, True)
            ld(b + 4, sH[1], off, it, True)
            ld(b + 8, sW2[0], off, it, True)
            ld(b + 12, sW2[1], off, it, True)
            if idx % 4 == 3:
                a.e('s_add_u32 s%d, s%d, 1' % (sG, sG))
                a.e('s_cmp_eq_u32 s%d, 7' % sG)
                a.e('s_cselect_b32 s%d, 0, s%d' % (sG, sG))
                a.e('s_mov_b32 s%d, 4096' % sD)
                a.e('s_cselect_b32 s%d, 0x%x, s%d' % (sD, (-6 * 4096) & 0xffffffff, sD))
                for s in sH + sW2:
                    a.e('s_add_u32 s%d, s%d, s%d' % (s, s, sD))
        else:
            b = HB
            off = (idx % 2) * 2048
            for j in range(2):
                ld(b + 4 * j, sKVT, off + 1024 * j, it)
            for rt in range(2):
                for j in range(2):
                    ld(b + 8 + 8 * rt + 4 * j, sPQ[rt], off + 1024 * j, it)
            for nt in range(2):
                for j in range(2):
                    ld(b + 24 + 8 * nt + 4 * j, sWO[nt], off + 1024 * j, it)
            if idx % 2 == 1:
                for s in [sKVT] + sPQ + sWO:
                    a.e('s_add_u32 s%d, s%d, 4096' % (s, s))

    def wait_for(it):
        last = max(i for i, t in enumerate(issued) if t == it)
        a.e('s_waitcnt vmcnt(%d)' % min(63, len(issued) - 1 - last))

    firstB = [True]
    firstA = [True]

    def compute(it, extra):
        start = len(a.lines)
        compute_body(it)
        body = a.lines[start:]
        del a.lines[start:]
        groups = []
        for ln in extra:
            if 'buffer_load' in ln or not groups:
                groups.append([ln])
            else:
                groups[-1].append(ln)
        nm = sum('v_mfma' in ln for ln in body)
        per = -(-len(groups) // nm) if groups else 0
        for ln in body:
            a.lines.append(ln)
            if 'v_mfma' in ln:
                for g in groups[:per]:
                    a.lines.extend(g)
                groups = groups[per:]
        for g in groups:
            a.lines.extend(g)

    def compute_body(it):
        kind, idx = it
        if kind == 'F':
            b = (idx % DF) * 16
            for rt in range(2):
                for nt in range(2):
                    a.e('v_mfma_f32_32x32x16_bf16 %s, %s, %s, %s' % (accB(rt, nt), ar(b + 8 + 4 * nt), ar(b + 4 * rt),
                                                                   '0' if firstB[0] else accB(rt, nt)))
            firstB[0] = False
        else:
            b = HB
            for rt in range(2):
                a.e('v_mfma_f32_32x32x16_bf16 %s, %s, %s, 0' % (vr(OB, 16), vr(b, 4), vr(b + 8 + 8 * rt, 4)))
                a.e('v_mfma_f32_32x32x16_bf16 %s, %s, %s, %s' % (vr(OB, 16), vr(b + 4, 4), vr(b + 8 + 8 * rt + 4, 4), vr(OB, 16)))
                a.e('v_add_f32 v%d, %s, v%d' % (TM, EPS, OB + 12))
                a.e('v_mov_b32 v%d, v%d' % (TM + 1, TM))
                a.e('v_permlane32_swap_b32 v%d, v%d' % (TM, TM + 1))
                a.e('v_rcp_f32 v%d, v%d' % (TM, TM + 1))
                a.e('v_mul_f32 v%d, v%d, v%d' % (TM, TM, vG[rt]))
                a.e('v_mov_b32 v%d, v%d' % (TM + 1, TM))
                for i in range(8):
                    a.e('v_pk_mul_f32 %s, %s, %s' % (vr(OB + 2 * i, 2), vr(OB + 2 * i, 2), vr(TM, 2)))
                for i in range(8):
                    a.e('v_cvt_pk_bf16_f32 v%d, v%d, v%d' % (OP + i, OB + 2 * i, OB + 2 * i + 1))
                for j in range(2):
                    for nt in range(2):
                        a.e('v_mfma_f32_32x32x16_bf16 %s, %s, %s, %s' % (
                            accA(rt, nt), vr(b + 24 + 8 * nt + 4 * j, 4), vr(OP + 4 * j, 4),
                            '0' if (firstA[0] and j == 0) else accA(rt, nt)))
            firstA[0] = False

    nxt = 0

    def can_issue(k, cur):
        kind, idx = items[k]
        if kind == 'F':
            if idx < DF:
                return True
            return items.index(('F', idx - DF)) < cur
        else:
            if idx < 1:
                return cur > FLAG_CHECK
            return items.index(('H', idx - 1)) < cur

    order = list(range(len(items)))
    pending = list(range(len(items)))
    for cur in range(len(items)):
        if cur > 0:
            wait_for(items[cur])
        cap0 = len(a.lines)
        progressed = True
        while progressed:
            progressed = False
            for k in pending:
                kind, idx = items[k]
                if can_issue(k, cur) and (k <= cur + DF + 2):
                    issue(items[k])
                    pending.remove(k)
                    progressed = True
                    break
                if kind == 'F':
                    break
        extra = a.lines[cap0:]
        del a.lines[cap0:]
        if cur == 0:
            a.lines.extend(extra)
            extra = []
            wait_for(items[cur])
        compute(items[cur], extra)
        if cur == FLAG_ISSUE:
            a.e('v_mov_b32 v13, 0')
            a.e('buffer_load_dword v%d, v13, %s, 0 offen sc1' % (vFLAG, sr(SDBG, 4)))
            issued.append('flag')
        if cur == FLAG_CHECK:
            wait_for('flag')
            a.lab('K2_POLL')
            a.e('v_readfirstlane_b32 s3, v%d' % vFLAG)
            a.e('s_cmp_ge_u32 s3, 16')
            a.e('s_cbranch_scc1 K2_READY')
            a.e('s_sleep 2')
            a.e('buffer_load_dword v%d, v13, %s, 0 offen sc1' % (vFLAG, sr(SDBG, 4)))
            a.e('s_waitcnt vmcnt(0)')
            a.e('s_branch K2_POLL')
            a.lab('K2_READY')
        if cur % 8 == 0:
            stamp(a, 1 + cur // 8, vSTAMP)
    stamp(a, 5, vSTAMP)
    for rt in range(2):
        a.e('v_sub_f32 v%d, 1.0, v%d' % (vOMG[rt], vG[rt]))
        a.e('v_cvt_pk_bf16_f32 v%d, v%d, v%d' % (vOMG[rt], vOMG[rt], vOMG[rt]))
        a.e('v_and_b32 v%d, 0xffff0000, v%d' % (vOMG[rt] + 1, vOMG[rt]))
        a.e('v_mov_b32 v%d, v%d' % (vOMG[rt], vOMG[rt] + 1))
        a.e('v_mov_b32 v%d, v%d' % (vG[rt] + 1, vG[rt]))
    a.e('s_lshl_b32 s%d, s%d, 12' % (sT, sW))
    a.e('v_add_u32 v10, s%d, v%d' % (sT, vST))
    R = BB
    for t in range(4):
        rt = t >> 1
        for i in range(8):
            a.e('v_pk_fma_f32 %s, %s, %s, %s' % (vr(R + 16 * t + 2 * i, 2), vr(R + 16 * t + 2 * i, 2), vr(vOMG[rt], 2), vr(FB + 16 * t + 2 * i, 2)))
        for q in range(4):
            a.e('ds_write_b128 v10, %s offset:%d' % (vr(R + 16 * t + 4 * q, 4), 16384 * t + 1024 * q))
    a.e('s_waitcnt lgkmcnt(0)')
    a.e('s_barrier')
    stamp(a, 6, vSTAMP)
    a.e('s_lshl_b32 s%d, s%d, 14' % (sT, sW))
    a.e('v_add_u32 v10, s%d, v%d' % (sT, vST))
    for p in range(4):
        for q in range(4):
            a.e('ds_read_b128 %s, v10 offset:%d' % (vr(R + 16 * p + 4 * q, 4), 4096 * p + 1024 * q))
    a.e('s_lshr_b32 s%d, s%d, 1' % (sT, sW))
    a.e('s_lshl_b32 s%d, s%d, 1' % (sT2, sRB))
    a.e('s_add_u32 s%d, s%d, s%d' % (sT, sT, sT2))
    a.e('s_mul_i32 s%d, s%d, %d' % (sT, sT, 32 * 896))
    a.e('s_and_b32 s%d, s%d, 1' % (sT2, sW))
    a.e('s_lshl_b32 s%d, s%d, 6' % (sT2, sT2))
    a.e('s_add_u32 s%d, s%d, s%d' % (sT, sT, sT2))
    a.e('s_lshl_b32 s%d, s%d, 7' % (sT2, sCB))
    a.e('s_add_u32 s%d, s%d, s%d' % (sT, sT, sT2))
    a.e('v_and_b32 v9, 31, v0')
    a.e('v_mul_u32_u24 v9, 896, v9')
    a.e('v_lshrrev_b32 v10, 5, v0')
    a.e('v_lshl_add_u32 v9, v10, 5, v9')
    a.e('s_waitcnt lgkmcnt(0)')
    for i in range(8):
        a.e('v_pk_add_f32 %s, %s, %s' % (vr(R + 2 * i, 2), vr(R + 2 * i, 2), vr(R + 16 + 2 * i, 2)))
        a.e('v_pk_add_f32 %s, %s, %s' % (vr(R + 32 + 2 * i, 2), vr(R + 32 + 2 * i, 2), vr(R + 48 + 2 * i, 2)))
    for i in range(8):
        a.e('v_pk_add_f32 %s, %s, %s' % (vr(R + 2 * i, 2), vr(R + 2 * i, 2), vr(R + 32 + 2 * i, 2)))
    for i in range(8):
        a.e('v_cvt_pk_bf16_f32 v%d, v%d, v%d' % (HB + i, R + 2 * i, R + 2 * i + 1))
    a.e('buffer_store_dwordx4 %s, v9, %s, s%d offen' % (vr(HB, 4), sr(SOUT, 4), sT))
    a.e('buffer_store_dwordx4 %s, v9, %s, s%d offen offset:16' % (vr(HB + 4, 4), sr(SOUT, 4), sT))
    stamp(a, 9, vSTAMP)
    stamp(a, 11, vSTAMP, real=True)
    stamp_store(a, vSTAMP, SWS, sW, 4, STAMP_OFF + (1 << 20), 8)
    a.lab('K2_END')
    a.e('s_endpgm')
    a.lab('K2_HELPER')
    a.e('v_lshlrev_b32 v1, 4, v0')
    a.e('s_lshl_b32 s3, s2, 15')
    a.e('s_add_u32 s3, s3, %d' % KVP_OFF)
    a.e('s_waitcnt lgkmcnt(0)')
    srd(a, SWS, 44, WS_SRD)
    srd(a, SDBG, 6, 256)
    for p_ in range(8):
        a.e('buffer_load_dwordx4 %s, v1, %s, s3 offen' % (vr(4 + 4 * p_, 4), sr(SWS, 4)))
        a.e('s_add_u32 s3, s3, 4096')
    a.e('v_cmp_le_u32 vcc, 224, v0')
    a.e('v_lshrrev_b32 v2, 7, v0')
    a.e('v_lshlrev_b32 v2, 10, v2')
    a.e('v_and_b32 v3, 63, v0')
    a.e('v_lshl_add_u32 v2, v3, 4, v2')
    a.e('v_bfe_u32 v3, v0, 6, 1')
    a.e('v_lshl_add_u32 v2, v3, 3, v2')
    a.e('s_lshl_b32 s3, s2, 11')
    a.e('s_add_u32 s3, s3, %d' % KVT_OFF)
    for p_ in range(1, 8):
        a.e('s_waitcnt vmcnt(%d)' % (7 - p_))
        a.e('v_pk_add_f32 v[4:5], v[4:5], %s' % vr(4 + 4 * p_, 2))
        a.e('v_pk_add_f32 v[6:7], v[6:7], %s' % vr(6 + 4 * p_, 2))
    for k in range(4):
        a.e('v_cndmask_b32 v%d, v%d, 0, vcc' % (4 + k, 4 + k))
    a.e('v_cvt_pk_bf16_f32 v8, v4, v5')
    a.e('v_cvt_pk_bf16_f32 v9, v6, v7')
    a.e('buffer_store_dwordx2 v[8:9], v2, %s, s3 offen sc1' % sr(SWS, 4))
    a.e('s_waitcnt vmcnt(0)')
    a.e('s_barrier')
    a.e('v_cmp_eq_u32 vcc, 0, v0')
    a.e('s_and_saveexec_b64 s[20:21], vcc')
    a.e('s_cbranch_execz K2_HEND')
    a.e('v_mov_b32 v10, 1')
    a.e('v_mov_b32 v11, 0')
    a.e('buffer_atomic_add v10, v11, %s, 0 offen' % sr(SDBG, 4))
    a.lab('K2_HEND')
    a.e('s_endpgm')
    return a.final(), NV


def kd(name, accoff, nfv, nsg):
    return '''.amdhsa_kernel %s
  .amdhsa_next_free_vgpr %d
  .amdhsa_next_free_sgpr %d
  .amdhsa_accum_offset %d
  .amdhsa_group_segment_fixed_size 0
  .amdhsa_kernarg_size 88
  .amdhsa_user_sgpr_count 2
  .amdhsa_user_sgpr_kernarg_segment_ptr 1
  .amdhsa_system_sgpr_workgroup_id_x 1
  .amdhsa_float_denorm_mode_32 3
.end_amdhsa_kernel
''' % (name, nfv, nsg, accoff)


def main(out):
    k1 = gen_k1()
    pol = os.environ.get('STPOL', 'sc1')
    if pol:
        k1 = '\n'.join((ln + ' ' + pol) if ('buffer_store_dwordx4' in ln and 'sc1' not in ln) else ln for ln in k1.split('\n'))
    k2, nv2 = gen_k2()
    acc2 = (nv2 + 3) // 4 * 4
    s = '; generated by gen/gen12.py\n'
    s += '; @launch kernel=k1_kernel grid=(256,1,1) block=(512,1,1) lds=%d\n' % LDS_K1
    s += '; @launch kernel=k2_kernel grid=(240,1,1) block=(256,1,1) lds=65536\n'
    s += '.amdgcn_target "amdgcn-amd-amdhsa--gfx950"\n.text\n'
    for nm, body in (('k1_kernel', k1), ('k2_kernel', k2)):
        s += '.globl %s\n.p2align 8\n.type %s,@function\n' % (nm, nm) + body
    s += '.section .rodata,"a"\n.p2align 6\n'
    s += kd('k1_kernel', 256, 256, 102)
    s += '.p2align 6\n' + kd('k2_kernel', acc2, acc2 + 256, 48)
    open(out, 'w').write(s)


if __name__ == '__main__':
    main(sys.argv[1] if len(sys.argv) > 1 else 'cdna_kernels/%s.s' % NAME)
```

```python
import sys, os
sys.path.insert(0, 'gen')
from asmlib import Asm

NAME = 'gated_mix__linear_attn_block__glu_gated_swiglu__prompt'
PQ_OFF = 0
H_OFF = PQ_OFF + 64 * 16 * 2 * 1024
KVP_OFF = H_OFF + 64 * 112 * 1024
KVT_OFF = KVP_OFF + 16 * 8 * 4096
W2P_OFF = KVT_OFF + 16 * 2 * 1024
WOP_OFF = W2P_OFF + 14 * 112 * 1024
G_OFF = WOP_OFF + 14 * 16 * 2 * 1024
WS_BYTES = G_OFF + 2048 * 4
WS_SRD = 32 << 20

SZ_X = 2048 * 448 * 2
SZ_WQKV = 448 * 1344 * 2
SZ_WO = 448 * 448 * 2
SZ_W1 = 448 * 1792 * 2
SZ_W2 = 1792 * 448 * 2
SZ_GW = 448 * 2
SZ_OUT = 2048 * 448 * 2

STAGE = 53376
XREG = 32768
WOFF_A = [0, 4096, 8192, 12288, 16384 + 32]
WOFF_B = [0, 10368]
GWX = 3 * STAGE
LDS_K1 = 163840
LOG2E = '0x3fb8aa3b'
NLOG2E = '0xbfb8aa3b'
EPS = '0x358637bd'

STAMPS = os.environ.get('STAMPS', '0') == '1'
STAMP_OFF = 16 << 20
PREFETCH = os.environ.get('PREFETCH', '0') == '1'
ROT = os.environ.get('ROT', '0') == '1'
EARLY = os.environ.get('EARLY', '0') == '1'
PF2 = os.environ.get('PF2', '0') == '1'
MAP = os.environ.get('MAP', 'blk')


def stamp(a, k, vreg, sp=None, real=False):
    if not STAMPS:
        return
    sp = a.sp
    a.e('%s s[%d:%d]' % ('s_memrealtime' if real else 's_memtime', sp, sp + 1))
    a.e('s_waitcnt lgkmcnt(0)')
    a.e('v_writelane_b32 v%d, s%d, %d' % (vreg, sp, k))


def stamp_store(a, vreg, srdws, wave_sgpr, nwaves, base, tmpv, sp=None):
    if not STAMPS:
        return
    sp = a.sp
    a.e('s_mul_i32 s%d, s2, %d' % (sp, nwaves))
    a.e('s_add_u32 s%d, s%d, s%d' % (sp, sp, wave_sgpr))
    a.e('s_lshl_b32 s%d, s%d, 8' % (sp, sp))
    a.e('s_add_u32 s%d, s%d, %d' % (sp, sp, base))
    a.e('v_lshlrev_b32 v%d, 2, v0' % tmpv)
    a.e('buffer_store_dword v%d, v%d, s[%d:%d], s%d offen' % (vreg, tmpv, srdws, srdws + 3, sp))


def v(i):
    return 'v%d' % i


def vr(i, n):
    return 'v[%d:%d]' % (i, i + n - 1)


def sr(i, n):
    return 's[%d:%d]' % (i, i + n - 1)


def srd(a, d, lo, size):
    a.e('s_mov_b32 s%d, s%d' % (d, lo))
    a.e('s_and_b32 s%d, s%d, 0xffff' % (d + 1, lo + 1))
    a.e('s_mov_b32 s%d, 0x%x' % (d + 2, size))
    a.e('s_mov_b32 s%d, 0x00020000' % (d + 3))


def phi16(a, R, T, O, sC):
    for i in range(8):
        a.e('v_pk_mul_f32 %s, %s, %s' % (vr(T + 2 * i, 2), vr(R + 2 * i, 2), sr(sC, 2)))
    for i in range(16):
        a.e('v_exp_f32 v%d, v%d clamp' % (T + i, T + i))
    for i in range(16):
        a.e('v_max_f32 v%d, 0, v%d' % (R + i, R + i))
    for i in range(8):
        a.e('v_pk_add_f32 %s, %s, %s' % (vr(R + 2 * i, 2), vr(R + 2 * i, 2), sr(sC + 2, 2)))
    for i in range(8):
        a.e('v_pk_add_f32 %s, %s, %s' % (vr(R + 2 * i, 2), vr(R + 2 * i, 2), vr(T + 2 * i, 2)))
    for i in range(8):
        a.e('v_cvt_pk_bf16_f32 v%d, v%d, v%d' % (O + i, R + 2 * i, R + 2 * i + 1))


def silu_mul(a, R, T, O, sC):
    for i in range(4):
        a.e('v_pk_mul_f32 %s, %s, %s' % (vr(T + 2 * i, 2), vr(R + 2 * i, 2), sr(sC + 4, 2)))
    for i in range(8):
        a.e('v_exp_f32 v%d, v%d' % (T + i, T + i))
    for i in range(4):
        a.e('v_pk_mul_f32 %s, %s, %s' % (vr(R + 2 * i, 2), vr(R + 2 * i, 2), vr(R + 8 + 2 * i, 2)))
    for i in range(4):
        a.e('v_pk_add_f32 %s, %s, %s' % (vr(T + 2 * i, 2), vr(T + 2 * i, 2), sr(sC + 6, 2)))
    for i in range(8):
        a.e('v_rcp_f32 v%d, v%d' % (T + i, T + i))
    for i in range(4):
        a.e('v_pk_mul_f32 %s, %s, %s' % (vr(R + 2 * i, 2), vr(R + 2 * i, 2), vr(T + 2 * i, 2)))
    for i in range(4):
        a.e('v_cvt_pk_bf16_f32 v%d, v%d, v%d' % (O + i, R + 2 * i, R + 2 * i + 1))


def consts(a, sC):
    for k, val in enumerate([LOG2E, LOG2E, EPS, EPS, NLOG2E, NLOG2E, '0x3f800000', '0x3f800000']):
        a.e('s_mov_b32 s%d, %s' % (sC + k, val))


def gen_k1():
    a = Asm()
    a.sp = 100
    SX, SWQKV, SW1, SW3, SWS, SW2, SWO, SGW, SDBG = 24, 28, 32, 36, 40, 44, 48, 52, 56
    SLX = 60
    SOFF = [64, 65, 66, 67, 68]
    DEST = [69, 70, 71, 72, 73]
    sW, sRB, sC, sCB, sXD, sT, sT2, sT3 = 74, 75, 76, 77, 78, 79, 80, 81
    sCON = 84
    sEX = 92
    sW8 = 82
    sCH, sXK, sD1, sD2 = 83, 94, 95, 23
    sGWM = 22
    ACC = 96
    WF = [16, 36]
    XF = [56, 64]
    vTID = 1
    vXO = [2, 3]
    vWO = [4, 5, 6, 7, 72]
    vXA = [73, 74, 75, 76]
    vKV, vGU, vQ0, vQ1, vQI, vC128, vST = 77, 78, 79, 80, 81, 82, 83
    vSTAMP = 95
    accb = lambda t, r: ACC + 16 * (2 * t + r)

    a.lab('k1_kernel')
    a.e('s_cmp_ge_u32 s2, 256')
    a.e('s_cbranch_scc1 K1_END')
    a.e('s_load_dwordx4 s[4:7], s[0:1], 0')
    a.e('s_load_dwordx2 s[8:9], s[0:1], 16')
    a.e('s_load_dwordx4 s[12:15], s[0:1], 32')
    a.e('s_load_dwordx4 s[16:19], s[0:1], 48')
    a.e('s_load_dwordx4 s[96:99], s[0:1], 72')
    a.e('v_mov_b32 v%d, v0' % vTID)
    a.e('v_lshrrev_b32 v8, 6, v0')
    a.e('v_and_b32 v0, 63, v0')
    a.e('v_readfirstlane_b32 s%d, v8' % sW8)
    if MAP == 'old':
        a.e('s_and_b32 s3, s2, 7')
        a.e('s_lshr_b32 s%d, s2, 3' % sT)
        a.e('s_and_b32 s%d, s%d, 3' % (sT2, sT))
        a.e('s_lshl_b32 s3, s3, 2')
        a.e('s_add_u32 s%d, s3, s%d' % (sCB, sT2))
        a.e('s_lshr_b32 s%d, s%d, 2' % (sRB, sT))
    elif MAP == 'bad':
        a.e('s_and_b32 s%d, s2, 7' % sRB)
        a.e('s_lshr_b32 s%d, s2, 3' % sCB)
    else:
        a.e('s_lshr_b32 s%d, s2, 6' % sT)
        a.e('s_add_u32 s3, s2, s%d' % sT)
        a.e('s_and_b32 s3, s3, 7')
        a.e('s_lshl_b32 s%d, s%d, 3' % (sT2, sT))
        a.e('s_add_u32 s%d, s%d, s3' % (sCB, sT2))
        a.e('s_lshr_b32 s%d, s2, 3' % sRB)
        a.e('s_and_b32 s%d, s%d, 7' % (sRB, sRB))
    a.e('s_lshr_b32 s%d, s%d, 1' % (sC, sCB))
    a.e('s_and_b32 s%d, s%d, 3' % (sW, sW8))
    if ROT:
        a.e('s_and_b32 s3, s%d, 3' % sCB)
        a.e('s_lshl_b32 s3, s3, 1')
        a.e('s_add_u32 s3, s3, s%d' % sRB)
        a.e('s_sub_u32 s%d, s3, 7' % sCH)
        a.e('s_cmp_ge_u32 s3, 7')
        a.e('s_cselect_b32 s%d, s%d, s3' % (sCH, sCH))
    else:
        a.e('s_mov_b32 s%d, 0' % sCH)
    a.e('s_lshl_b32 s%d, s%d, 7' % (sXK, sCH))
    a.e('v_and_b32 v%d, 255, v%d' % (vTID, vTID))
    consts(a, sCON)
    a.e('s_lshl_b32 s%d, s%d, 8' % (sT, sRB))
    a.e('s_lshl_b32 s%d, s%d, 6' % (sT2, sW))
    a.e('s_add_u32 s%d, s%d, s%d' % (sT, sT, sT2))
    a.e('v_lshrrev_b32 v8, 3, v0')
    a.e('v_add_u32 v8, s%d, v8' % sT)
    a.e('v_mul_u32_u24 v8, 896, v8')
    a.e('v_and_b32 v9, 7, v0')
    a.e('v_lshrrev_b32 v10, 4, v0')
    a.e('v_xor_b32 v11, v9, v10')
    a.e('v_lshl_add_u32 v%d, v11, 4, v8' % vXO[0])
    a.e('v_xor_b32 v11, 4, v11')
    a.e('v_lshl_add_u32 v%d, v11, 4, v8' % vXO[1])
    a.e('s_lshl_b32 s%d, s%d, 13' % (sXD, sW))
    a.e('v_and_b32 v8, 31, v0')
    a.e('v_lshrrev_b32 v9, 5, v0')
    a.e('v_bfe_u32 v10, v8, 1, 3')
    a.e('v_lshlrev_b32 v11, 7, v8')
    a.e('v_add_u32 v11, s%d, v11' % sXD)
    for ks in range(4):
        a.e('v_add_u32 v12, %d, v9' % (2 * ks))
        a.e('v_xor_b32 v12, v12, v10')
        a.e('v_lshl_add_u32 v%d, v12, 4, v11' % vXA[ks])
    a.e('v_lshlrev_b32 v%d, 4, v0' % vST)
    a.e('v_bfe_u32 v10, v0, 4, 1')
    a.e('v_bfe_u32 v11, v0, 2, 2')
    a.e('v_and_b32 v12, 3, v0')
    a.e('v_lshl_add_u32 v13, v9, 3, v11')
    a.e('v_and_b32 v14, 1, v12')
    a.e('v_lshlrev_b32 v14, 1, v14')
    a.e('v_lshrrev_b32 v15, 1, v12')
    a.e('v_add_u32 v14, v14, v15')
    a.e('v_lshlrev_b32 v14, 3, v14')
    a.e('s_waitcnt lgkmcnt(0)')
    srd(a, SX, 4, SZ_X)
    srd(a, SWQKV, 6, SZ_WQKV)
    srd(a, SW1, 12, SZ_W1)
    srd(a, SW3, 14, SZ_W1)
    srd(a, SWS, 98, WS_SRD)
    srd(a, SW2, 16, SZ_W2)
    srd(a, SWO, 8, SZ_WO)
    srd(a, SGW, 18, SZ_GW)
    srd(a, SDBG, 96, 256)
    stamp(a, 0, vSTAMP)
    stamp(a, 10, vSTAMP, real=True)
    a.e('s_and_b32 s%d, s%d, 1' % (sT, sCB))
    a.e('s_cmp_eq_u32 s%d, 1' % sT)
    a.e('s_cbranch_scc1 K1_TYPEB')

    def dma_chunk(i, slot_srd, slot_step):
        sb = (i % 3) * STAGE
        for q in range(8):
            a.e('s_add_u32 m0, s%d, %d' % (sXD, sb + q * 1024))
            a.e('s_add_u32 s%d, s%d, %d' % (sT, sXK, q * 7168))
            a.e('buffer_load_dwordx4 v%d, %s, s%d offen lds' % (vXO[q & 1], sr(SX, 4), sT))
        a.e('s_add_u32 s%d, s%d, 1' % (sCH, sCH))
        a.e('s_cmp_eq_u32 s%d, 7' % sCH)
        a.e('s_cselect_b32 s%d, 0, s%d' % (sCH, sCH))
        a.e('s_mov_b32 s%d, %d' % (sD1, 64 * 2688))
        a.e('s_cselect_b32 s%d, 0x%x, s%d' % (sD1, (-6 * 64 * 2688) & 0xffffffff, sD1))
        a.e('s_mov_b32 s%d, %d' % (sD2, 64 * 3584))
        a.e('s_cselect_b32 s%d, 0x%x, s%d' % (sD2, (-6 * 64 * 3584) & 0xffffffff, sD2))
        a.e('s_lshl_b32 s%d, s%d, 7' % (sXK, sCH))
        for j in range(5):
            a.e('s_add_u32 m0, s%d, %d' % (DEST[j], sb))
            a.e('s_nop 0')
            a.e('buffer_load_dwordx4 v%d, %s, s%d offen lds' % (vWO[j], sr(slot_srd[j], 4), SOFF[j]))
            a.e('s_add_u32 s%d, s%d, s%d' % (SOFF[j], SOFF[j], sD1 if slot_step[j] == 64 * 2688 else sD2))

    def main_loop(typ, slot_srd, slot_step, extra_at_b5=None, pre_wait=None, loader_tail=None):
        def reads(n):
            i, ks = divmod(n, 4)
            st = n & 1
            L = []
            L.append('ds_read_b128 %s, v%d' % (vr(XF[st], 4), vXA[ks]))
            L.append('ds_read_b128 %s, v%d offset:4096' % (vr(XF[st] + 4, 4), vXA[ks]))
            for t in range(5):
                for rd in range(2):
                    dst = vr(WF[st] + 4 * t + 2 * rd, 2)
                    if typ == 'A':
                        if t == 0:
                            L.append('ds_read_b64_tr_b16 %s, v%d' % (dst, vQ0 if rd == 0 else vQ1))
                        elif t in (1, 2):
                            L.append('ds_read_b64_tr_b16 %s, v%d offset:%d' % (dst, vKV, 4096 * t + ks * 1024 + rd * 256))
                        else:
                            L.append('ds_read_b64_tr_b16 %s, v%d offset:%d' % (dst, vGU, 32 * (t - 3) + ks * 1024 + rd * 256))
                    else:
                        L.append('ds_read_b64_tr_b16 %s, v%d offset:%d' % (dst, vGU, 32 * t + ks * 2560 + rd * 640))
            return L

        def addr_adv(n):
            i, ks = divmod(n, 4)
            if ks == 0:
                delta = STAGE if (i % 3) != 0 else -2 * STAGE
                for r in vXA + [vGU] + ([vKV] if typ == 'A' else []):
                    a.e('v_add_u32 v%d, %d, v%d' % (r, delta, r) if delta > 0 else
                        'v_subrev_u32 v%d, %d, v%d' % (r, -delta, r))
                if typ == 'A':
                    d2 = (delta - 3 * 1024) & 0xffffffff
                    a.e('s_add_u32 s%d, s%d, 1' % (sCH, sCH))
                    a.e('s_cmp_eq_u32 s%d, 7' % sCH)
                    a.e('s_cselect_b32 s%d, 0, s%d' % (sCH, sCH))
                    a.e('s_mov_b32 s3, 128')
                    a.e('s_cselect_b32 s3, 0x%x, s3' % ((-3456) & 0xffffffff))
                    a.e('v_mov_b32 v8, 0x%x' % d2)
                    a.e('v_mov_b32 v9, s3')
                    a.e('v_cndmask_b32 v8, v8, v9, %s' % sr(sGWM, 2))
                    a.e('v_add_u32 v%d, v8, v%d' % (vQ0, vQ0))
                    a.e('v_add_u32 v%d, v8, v%d' % (vQ1, vQ1))
            elif typ == 'A':
                a.e('v_add_u32 v%d, v%d, v%d' % (vQ0, vQI, vQ0))
                a.e('v_add_u32 v%d, v%d, v%d' % (vQ1, vQI, vQ1))

        def mfma(n, t, r):
            st = n & 1
            acc = vr(accb(t, r), 16)
            wf = vr(WF[st] + 4 * t, 4)
            xf = vr(XF[st] + 4 * r, 4)
            c = acc if n > 0 else '0'
            if typ == 'A' and t in (1, 2):
                a.e('v_mfma_f32_32x32x16_bf16 %s, %s, %s, %s' % (acc, xf, wf, c))
            else:
                a.e('v_mfma_f32_32x32x16_bf16 %s, %s, %s, %s' % (acc, wf, xf, c))

        for j in range(5):
            a.e('s_mul_i32 s3, s%d, %d' % (sCH, slot_step[j]))
            a.e('s_add_u32 s%d, s%d, s3' % (SOFF[j], SOFF[j]))
        if typ == 'A':
            a.e('s_lshl_b32 s3, s%d, 9' % sCH)
            a.e('v_mov_b32 v8, s3')
            a.e('v_cndmask_b32 v8, 0, v8, %s' % sr(sGWM, 2))
            a.e('v_add_u32 v%d, v8, v%d' % (vQ0, vQ0))
            a.e('v_add_u32 v%d, v8, v%d' % (vQ1, vQ1))
        a.e('s_cmp_lt_u32 s%d, 4' % sW8)
        a.e('s_cbranch_scc1 K1%s_COMPUTE' % typ)
        outstanding = []
        dma_chunk(0, slot_srd, slot_step)
        outstanding.append(13)
        stamp(a, 1, vSTAMP)
        outstanding.append(0)
        if pre_wait:
            pre_wait(sum(outstanding))
        if not EARLY:
            dma_chunk(1, slot_srd, slot_step)
            outstanding.append(13)
        stamp(a, 2, vSTAMP)
        a.e('s_waitcnt vmcnt(%d) lgkmcnt(0)' % sum(outstanding[1:]))
        outstanding.pop(0)
        stamp(a, 3, vSTAMP)
        a.e('s_barrier')
        if EARLY:
            dma_chunk(1, slot_srd, slot_step)
            outstanding.append(13)
        dma_chunk(2, slot_srd, slot_step)
        outstanding.append(13)
        if PREFETCH:
            npf = 0
            a.e('s_lshr_b32 s3, s2, 3')
            a.e('s_lshl_b32 s3, s3, 6')
            a.e('v_add_u32 v16, s3, v0')
            a.e('v_mul_u32_u24 v16, 896, v16')
            a.e('s_lshl_b32 s3, s%d, 7' % sW)
            a.e('s_add_u32 s3, s3, 384')
            a.e('buffer_load_dword v17, v16, %s, s3 offen' % sr(SX, 4))
            npf += 1
            a.e('s_and_b32 s%d, s%d, 3' % (sT2, sRB))
            for j in range(5):
                a.e('s_mul_i32 s3, s%d, %d' % (sT2, slot_step[j]))
                a.e('s_add_u32 s3, s3, s%d' % SOFF[j])
                a.e('buffer_load_dwordx4 %s, v%d, %s, s3 offen' % (vr(20 + 4 * j, 4), vWO[j], sr(slot_srd[j], 4)))
                npf += 1
            outstanding[-1] += npf
        outstanding = [outstanding[0] + outstanding[1]] + outstanding[2:]
        for i in range(6):
            a.e('s_waitcnt vmcnt(%d)' % sum(outstanding[1:]))
            outstanding.pop(0)
            a.e('s_barrier')
            if i + 3 <= 6:
                dma_chunk(i + 3, slot_srd, slot_step)
                outstanding.append(13)
            elif i == 4 and extra_at_b5:
                outstanding.append(extra_at_b5())
        if loader_tail:
            loader_tail()
        stamp(a, 9, vSTAMP)
        stamp(a, 11, vSTAMP, real=True)
        stamp_store(a, vSTAMP, SWS, sW8, 8, STAMP_OFF, 8)
        a.e('s_endpgm')
        a.lab('K1%s_COMPUTE' % typ)
        if PF2:
            a.e('s_lshr_b32 s3, s2, 3')
            a.e('s_lshl_b32 s3, s3, 2')
            a.e('s_add_u32 s3, s3, s%d' % sW)
            a.e('s_mul_i32 s3, s3, %d' % (16 * 896))
            a.e('v_lshlrev_b32 v16, 7, v0')
            a.e('v_min_u32 v17, %d, v16' % (47 * 128))
            a.e('buffer_load_dword v18, v16, %s, s3 offen' % sr(SX, 4))
            a.e('s_add_u32 s3, s3, 8192')
            a.e('buffer_load_dword v19, v17, %s, s3 offen' % sr(SX, 4))
            a.e('v_min_u32 v16, 55, v0')
            a.e('s_mul_i32 s3, s%d, 56' % sRB)
            a.e('v_add_u32 v16, s3, v16')
            a.e('v_mul_u32_u24 v17, 3584, v16')
            a.e('v_mul_u32_u24 v16, 2688, v16')
            if typ == 'A':
                a.e('s_mul_i32 s%d, s%d, 56' % (sT, sC))
                a.e('s_lshl_b32 s%d, s%d, 6' % (sT2, sC))
                tg = []
                for rho in range(3):
                    tg.append((SWQKV, 16, sT, rho * 896))
                    tg.append((SWQKV, 16, sT, rho * 896 + 52))
                tg.append((SW1, 17, sT2, 0))
                tg.append((SW3, 17, sT2, 0))
            else:
                a.e('s_mul_i32 s%d, s%d, 160' % (sT, sC))
                a.e('s_add_u32 s%d, s%d, 1024' % (sT, sT))
                tg = [(sd, 17, sT, o) for sd in (SW1, SW3) for o in (0, 80, 156)]
            for w in range(4):
                mine = tg[2 * w:2 * w + 2]
                if not mine:
                    continue
                a.e('s_cmp_lg_u32 s%d, %d' % (sW, w))
                a.e('s_cbranch_scc1 K1%s_PF%d' % (typ, w))
                for n_, (sd, vv, ss, off) in enumerate(mine):
                    a.e('buffer_load_dword v%d, v%d, %s, s%d offen offset:%d' % (20 + n_, vv, sr(sd, 4), ss, off))
                a.lab('K1%s_PF%d' % (typ, w))
        a.e('s_barrier')
        stamp(a, 1, vSTAMP)
        for s in reads(0):
            a.e(s)
        for n in range(28):
            i, ks = divmod(n, 4)
            a.c('step %d' % n)
            a.e('s_waitcnt lgkmcnt(0)')
            if ks == 3 and i < 6:
                a.e('s_barrier')
                stamp(a, 2 + i, vSTAMP)
            mfma(n, 0, 0)
            R = []
            if n + 1 < 28:
                addr_adv(n + 1)
                R = reads(n + 1)
            k = 0
            for m in range(1, 10):
                for s in R[k:k + 2]:
                    a.e(s)
                k += 2
                mfma(n, m // 2, m % 2)
        stamp(a, 8, vSTAMP)

    a.e('v_lshl_add_u32 v15, v10, 2, v12')
    a.e('v_and_b32 v8, 6, v15')
    a.e('v_cmp_eq_u32 vcc, 6, v8')
    a.e('v_xor_b32 v8, 1, v15')
    a.e('v_cndmask_b32 v8, v15, v8, vcc')
    a.e('v_lshlrev_b32 v8, 3, v8')
    a.e('v_lshl_add_u32 v8, v13, 6, v8')
    a.e('v_add_u32 v%d, %d, v8' % (vKV, XREG))
    a.e('v_cmp_eq_u32 %s, 7, v15' % sr(sGWM, 2))
    a.e('v_lshlrev_b32 v9, 3, v13')
    a.e('v_add_u32 v9, %d, v9' % GWX)
    a.e('v_cndmask_b32 v%d, v%d, v9, %s' % (vQ0, vKV, sr(sGWM, 2)))
    a.e('v_add_u32 v8, 256, v%d' % vKV)
    a.e('v_add_u32 v9, 32, v9')
    a.e('v_cndmask_b32 v%d, v8, v9, %s' % (vQ1, sr(sGWM, 2)))
    a.e('v_mov_b32 v%d, 128' % vC128)
    a.e('v_mov_b32 v8, 1024')
    a.e('v_cndmask_b32 v%d, v8, v%d, %s' % (vQI, vC128, sr(sGWM, 2)))
    a.e('v_mul_u32_u24 v8, %d, v10' % (WOFF_A[4] - WOFF_A[3]))
    a.e('v_lshl_add_u32 v8, v13, 6, v8')
    a.e('v_add_u32 v8, v14, v8')
    a.e('v_add_u32 v%d, %d, v8' % (vGU, XREG + WOFF_A[3]))
    a.e('v_lshrrev_b32 v8, 2, v0')
    a.e('v_and_b32 v9, 3, v0')
    a.e('v_lshlrev_b32 v10, 4, v9')
    a.e('v_cmp_eq_u32 vcc, 3, v9')
    a.e('v_mov_b32 v11, 40')
    a.e('v_cndmask_b32 v11, v10, v11, vcc')
    a.e('v_mul_u32_u24 v12, 2688, v8')
    a.e('v_add_u32 v12, v12, v11')
    a.e('v_mul_u32_u24 v13, 3584, v8')
    a.e('v_add_u32 v13, v13, v10')
    a.e('s_mul_i32 s%d, s%d, 56' % (sT, sC))
    a.e('v_add_u32 v%d, s%d, v12' % (vWO[0], sT))
    a.e('v_mov_b32 v%d, v%d' % (vWO[1], vWO[0]))
    a.e('v_mov_b32 v%d, v%d' % (vWO[2], vWO[0]))
    a.e('s_lshl_b32 s3, s%d, 6' % sC)
    a.e('v_add_u32 v%d, s3, v13' % vWO[3])
    a.e('v_mov_b32 v%d, v%d' % (vWO[4], vWO[3]))
    a.e('s_mul_i32 s%d, s%d, %d' % (SOFF[0], sW, 16 * 2688))
    a.e('s_add_u32 s%d, s%d, 896' % (SOFF[1], SOFF[0]))
    a.e('s_add_u32 s%d, s%d, 1792' % (SOFF[2], SOFF[0]))
    a.e('s_mul_i32 s%d, s%d, %d' % (SOFF[3], sW, 16 * 3584))
    a.e('s_mov_b32 s%d, s%d' % (SOFF[4], SOFF[3]))
    a.e('s_lshl_b32 s3, s%d, 10' % sW)
    for j in range(5):
        a.e('s_add_u32 s%d, s3, %d' % (DEST[j], XREG + WOFF_A[j]))
    a.e('v_lshlrev_b32 v8, 1, v%d' % vTID)
    a.e('buffer_load_ushort v10, v8, %s, 0 offen' % sr(SGW, 4))
    a.e('buffer_load_ushort v12, v8, %s, 0 offen offset:512' % sr(SGW, 4))

    def pre_wait_A(nout):
        a.e('s_waitcnt vmcnt(%d)' % nout)
        a.e('v_lshl_or_b32 v10, v10, 16, v10')
        a.e('v_mov_b32 v11, v10')
        a.e('v_lshl_or_b32 v12, v12, 16, v12')
        a.e('v_mov_b32 v13, v12')
        a.e('v_lshlrev_b32 v8, 3, v%d' % vTID)
        a.e('v_add_u32 v8, %d, v8' % GWX)
        a.e('ds_write_b64 v8, v[10:11]')
        a.e('v_cmp_gt_u32 vcc, 192, v%d' % vTID)
        a.e('s_and_saveexec_b64 %s, vcc' % sr(sEX, 2))
        a.e('ds_write_b64 v8, v[12:13] offset:2048')
        a.e('s_mov_b64 exec, %s' % sr(sEX, 2))

    def kv_tail():
        RED = STAGE
        a.e('s_barrier')
        a.e('s_cmp_lg_u32 s%d, 0' % sW)
        a.e('s_cbranch_scc1 K1A_DONE')
        KR = ACC
        a.e('v_add_u32 v8, %d, v%d' % (RED, vST))
        for p in range(4):
            for q in range(4):
                a.e('ds_read_b128 %s, v8 offset:%d' % (vr(KR + 16 * p + 4 * q, 4), 4096 * p + 1024 * q))
        a.e('s_lshl_b32 s3, s%d, 3' % sC)
        a.e('s_add_u32 s3, s3, s%d' % sRB)
        a.e('s_lshl_b32 s3, s3, 12')
        a.e('s_add_u32 s3, s3, %d' % KVP_OFF)
        a.e('s_waitcnt lgkmcnt(0)')
        for i in range(8):
            a.e('v_pk_add_f32 %s, %s, %s' % (vr(KR + 2 * i, 2), vr(KR + 2 * i, 2), vr(KR + 16 + 2 * i, 2)))
            a.e('v_pk_add_f32 %s, %s, %s' % (vr(KR + 32 + 2 * i, 2), vr(KR + 32 + 2 * i, 2), vr(KR + 48 + 2 * i, 2)))
        for i in range(8):
            a.e('v_pk_add_f32 %s, %s, %s' % (vr(KR + 2 * i, 2), vr(KR + 2 * i, 2), vr(KR + 32 + 2 * i, 2)))
        for q in range(4):
            a.e('buffer_store_dwordx4 %s, v%d, %s, s3 offen offset:%d sc1' % (vr(KR + 4 * q, 4), vST, sr(SWS, 4), 1024 * q))
        a.lab('K1A_DONE')

    main_loop('A', [SWQKV, SWQKV, SWQKV, SW1, SW3], [64 * 2688] * 3 + [64 * 3584] * 2, None, pre_wait_A, kv_tail)
    TMP = WF[0]
    PK = 36
    PV = 44
    a.e('s_lshl_b32 s%d, s%d, 3' % (sT3, sRB))
    a.e('s_lshl_b32 s3, s%d, 1' % sW)
    a.e('s_add_u32 s%d, s%d, s3' % (sT3, sT3))
    a.e('v_and_b32 v8, 31, v0')
    a.e('v_cmp_le_u32 %s, 28, v8' % sr(sGWM, 2))
    a.e('v_mov_b32 v9, 0x3f803f80')
    KVA = 56
    for r in range(2):
        phi16(a, accb(1, r), TMP, PK, sCON)
        for i in range(8):
            a.e('v_cvt_pk_bf16_f32 v%d, v%d, v%d' % (PV + i, accb(2, r) + 2 * i, accb(2, r) + 2 * i + 1))
        for i in range(8):
            a.e('v_cndmask_b32 v%d, v%d, v9, %s' % (PV + i, PV + i, sr(sGWM, 2)))
        a.e('v_mfma_f32_32x32x16_bf16 %s, %s, %s, %s' % (vr(KVA, 16), vr(PK, 4), vr(PV, 4), '0' if r == 0 else vr(KVA, 16)))
        a.e('v_mfma_f32_32x32x16_bf16 %s, %s, %s, %s' % (vr(KVA, 16), vr(PK + 4, 4), vr(PV + 4, 4), vr(KVA, 16)))
    RED = STAGE
    a.e('s_lshl_b32 s3, s%d, 12' % sW)
    a.e('v_add_u32 v8, s3, v%d' % vST)
    a.e('v_add_u32 v8, %d, v8' % RED)
    for q in range(4):
        a.e('ds_write_b128 v8, %s offset:%d' % (vr(KVA + 4 * q, 4), 1024 * q))
    a.e('s_waitcnt lgkmcnt(0)')
    a.e('s_barrier')
    a.e('v_mov_b32 v10, v%d' % (accb(0, 0) + 12))
    a.e('v_mov_b32 v11, v%d' % (accb(0, 1) + 12))
    a.e('s_lshl_b32 s3, s%d, 4' % sT3)
    a.e('s_add_u32 s3, s3, s%d' % sC)
    a.e('s_lshl_b32 s3, s3, 11')
    a.e('s_add_u32 s%d, s3, 32768' % sT)
    for r in range(2):
        o = PK + 8 * r
        phi16(a, accb(0, r), TMP, o, sCON)
        sb = 's3' if r == 0 else 's%d' % sT
        a.e('buffer_store_dwordx4 %s, v%d, %s, %s offen' % (vr(o, 4), vST, sr(SWS, 4), sb))
        a.e('buffer_store_dwordx4 %s, v%d, %s, %s offen offset:1024' % (vr(o + 4, 4), vST, sr(SWS, 4), sb))
    a.e('s_cmp_lg_u32 s%d, 0' % sC)
    a.e('s_cbranch_scc1 K1A_NOG')
    a.e('v_cvt_pk_bf16_f32 v12, v10, v11')
    a.e('v_lshlrev_b32 v10, 16, v12')
    a.e('v_and_b32 v11, 0xffff0000, v12')
    a.e('v_pk_mul_f32 v[10:11], v[10:11], %s' % sr(sCON + 4, 2))
    a.e('v_exp_f32 v10, v10')
    a.e('v_exp_f32 v11, v11')
    a.e('v_pk_add_f32 v[10:11], v[10:11], %s' % sr(sCON + 6, 2))
    a.e('v_rcp_f32 v10, v10')
    a.e('v_rcp_f32 v11, v11')
    a.e('v_cvt_pk_bf16_f32 v12, v10, v11')
    a.e('v_lshlrev_b32 v10, 16, v12')
    a.e('v_and_b32 v11, 0xffff0000, v12')
    a.e('v_and_b32 v12, 31, v0')
    a.e('v_lshlrev_b32 v12, 2, v12')
    a.e('s_lshl_b32 s3, s%d, 7' % sT3)
    a.e('s_add_u32 s3, s3, %d' % G_OFF)
    a.e('v_cmp_le_u32 vcc, 32, v0')
    a.e('s_and_saveexec_b64 %s, vcc' % sr(sEX, 2))
    a.e('buffer_store_dword v10, v12, %s, s3 offen' % sr(SWS, 4))
    a.e('buffer_store_dword v11, v12, %s, s3 offen offset:128' % sr(SWS, 4))
    a.e('s_mov_b64 exec, %s' % sr(sEX, 2))
    a.lab('K1A_NOG')
    a.e('s_mul_i32 s3, s%d, 112' % sT3)
    a.e('s_lshl_b32 s%d, s%d, 1' % (sT, sC))
    a.e('s_add_u32 s3, s3, s%d' % sT)
    a.e('s_lshl_b32 s3, s3, 10')
    a.e('s_add_u32 s3, s3, %d' % H_OFF)
    a.e('s_add_u32 s%d, s3, %d' % (sT, 112 * 1024))
    for r in range(2):
        for m in range(2):
            o = PK + 4 * (2 * r + m)
            silu_mul(a, accb(3 + m, r), TMP, o, sCON)
            a.e('buffer_store_dwordx4 %s, v%d, %s, %s offen offset:%d' % (vr(o, 4), vST, sr(SWS, 4), 's3' if r == 0 else 's%d' % sT, 1024 * m))
    stamp(a, 9, vSTAMP)
    stamp(a, 11, vSTAMP, real=True)
    stamp_store(a, vSTAMP, SWS, sW8, 8, STAMP_OFF, 8)
    a.e('s_endpgm')

    a.lab('K1_TYPEB')
    a.e('v_mul_u32_u24 v8, %d, v10' % WOFF_B[1])
    a.e('v_mul_u32_u24 v9, 160, v13')
    a.e('v_add3_u32 v8, v8, v9, v14')
    a.e('v_add_u32 v%d, %d, v8' % (vGU, XREG))
    a.e('s_mul_i32 s%d, s%d, 160' % (sT, sC))
    a.e('s_add_u32 s%d, s%d, 1024' % (sT, sT))

    def slotB(j, q_sgpr):
        a.e('s_lshl_b32 s3, s%d, 6' % q_sgpr)
        a.e('v_add_u32 v8, s3, v0')
        a.e('v_mul_u32_u24 v9, 6554, v8')
        a.e('v_lshrrev_b32 v9, 16, v9')
        a.e('v_mul_u32_u24 v10, 10, v9')
        a.e('v_sub_u32 v10, v8, v10')
        a.e('v_mul_u32_u24 v9, 3584, v9')
        a.e('v_lshl_add_u32 v9, v10, 4, v9')
        a.e('v_add_u32 v%d, s%d, v9' % (vWO[j], sT))
        a.e('s_mov_b32 s%d, 0' % SOFF[j])
        a.e('s_lshl_b32 s%d, s%d, 10' % (DEST[j], q_sgpr))

    slotB(0, sW)
    a.e('s_add_u32 s%d, s%d, %d' % (DEST[0], DEST[0], XREG + WOFF_B[0]))
    a.e('s_add_u32 s%d, s%d, 4' % (sT2, sW))
    slotB(1, sT2)
    a.e('s_add_u32 s%d, s%d, %d' % (DEST[1], DEST[1], XREG + WOFF_B[0]))
    a.e('s_add_u32 s%d, s%d, 8' % (sT2, sW))
    a.e('s_sub_u32 s%d, s%d, 2' % (sT3, sW))
    a.e('s_cmp_lt_u32 s%d, 2' % sW)
    a.e('s_cselect_b32 s%d, s%d, s%d' % (sT2, sT2, sT3))
    a.e('s_cselect_b64 %s, %s, %s' % (sr(SLX, 2), sr(SW1, 2), sr(SW3, 2)))
    a.e('s_cselect_b64 %s, %s, %s' % (sr(SLX + 2, 2), sr(SW1 + 2, 2), sr(SW3 + 2, 2)))
    a.e('s_mov_b32 s%d, %d' % (sT3, XREG + WOFF_B[1]))
    a.e('s_cselect_b32 s%d, %d, s%d' % (sT3, XREG + WOFF_B[0], sT3))
    slotB(2, sT2)
    a.e('s_add_u32 s%d, s%d, s%d' % (DEST[2], DEST[2], sT3))
    a.e('s_add_u32 s%d, s%d, 2' % (sT2, sW))
    slotB(3, sT2)
    a.e('s_add_u32 s%d, s%d, %d' % (DEST[3], DEST[3], XREG + WOFF_B[1]))
    a.e('s_add_u32 s%d, s%d, 6' % (sT2, sW))
    slotB(4, sT2)
    a.e('s_add_u32 s%d, s%d, %d' % (DEST[4], DEST[4], XREG + WOFF_B[1]))

    PREP = STAGE
    sPU = [[4, 5, 6], [7, 8, 9]]
    sPD = 10

    def prep_issue():
        a.e('s_lshl_b32 s%d, s%d, 12' % (sPD, sW))
        a.e('s_add_u32 s%d, s%d, %d' % (sPD, sPD, PREP))
        a.e('v_lshrrev_b32 v8, 2, v0')
        a.e('v_mul_u32_u24 v8, 896, v8')
        a.e('v_and_b32 v9, 3, v0')
        a.e('v_lshl_add_u32 v8, v9, 4, v8')
        for u in range(2):
            sNT, sK, sISWO = sPU[u]
            a.e('s_lshl_b32 s%d, s%d, 4' % (sT, sRB))
            a.e('s_add_u32 s%d, s%d, s%d' % (sT, sT, sC))
            a.e('s_lshl_b32 s%d, s%d, 2' % (sT, sT))
            a.e('s_add_u32 s%d, s%d, s%d' % (sT, sT, sW))
            a.e('s_lshl_b32 s%d, s%d, 1' % (sT, sT))
            a.e('s_add_u32 s%d, s%d, %d' % (sT, sT, u))
            a.e('s_min_u32 s%d, s%d, 1007' % (sT, sT))
            a.e('s_cmp_ge_u32 s%d, 784' % sT)
            a.e('s_cselect_b32 s%d, 1, 0' % sISWO)
            a.e('s_cselect_b32 s%d, 784, 0' % sT2)
            a.e('s_sub_u32 s%d, s%d, s%d' % (sT, sT, sT2))
            a.e('s_mul_i32 s%d, s%d, 4682' % (sK, sT))
            a.e('s_lshr_b32 s%d, s%d, 16' % (sK, sK))
            a.e('s_mul_i32 s%d, s%d, 14' % (sT2, sK))
            a.e('s_sub_u32 s%d, s%d, s%d' % (sNT, sT, sT2))
            a.e('s_cmp_eq_u32 s%d, 1' % sISWO)
            a.e('s_cselect_b32 s%d, 28, 32' % sT2)
            a.e('s_mul_i32 s%d, s%d, s%d' % (sT2, sT2, sK))
            a.e('s_mul_i32 s%d, s%d, 896' % (sT2, sT2))
            a.e('s_lshl_b32 s%d, s%d, 6' % (sT3, sNT))
            a.e('s_add_u32 s%d, s%d, s%d' % (sT2, sT2, sT3))
            a.e('s_cmp_eq_u32 s%d, 1' % sISWO)
            a.e('s_cselect_b64 %s, %s, %s' % (sr(SLX, 2), sr(SWO, 2), sr(SW2, 2)))
            a.e('s_cselect_b64 %s, %s, %s' % (sr(SLX + 2, 2), sr(SWO + 2, 2), sr(SW2 + 2, 2)))
            a.e('s_add_u32 m0, s%d, %d' % (sPD, 2048 * u))
            a.e('s_add_u32 s%d, s%d, %d' % (sT3, sT2, 16 * 896))
            a.e('buffer_load_dwordx4 v8, %s, s%d offen lds' % (sr(SLX, 4), sT2))
            a.e('s_add_u32 m0, s%d, %d' % (sPD, 2048 * u + 1024))
            a.e('s_nop 0')
            a.e('buffer_load_dwordx4 v8, %s, s%d offen lds' % (sr(SLX, 4), sT3))
        return 4

    def prep_finish():
        a.e('v_lshrrev_b32 v9, 5, v0')
        a.e('v_bfe_u32 v10, v0, 4, 1')
        a.e('v_bfe_u32 v11, v0, 2, 2')
        a.e('v_and_b32 v12, 3, v0')
        a.e('v_lshl_add_u32 v15, v10, 2, v12')
        a.e('v_and_b32 v13, 1, v15')
        a.e('v_lshlrev_b32 v13, 2, v13')
        a.e('v_lshrrev_b32 v14, 1, v15')
        a.e('v_add_u32 v13, v13, v14')
        a.e('v_lshlrev_b32 v13, 3, v13')
        a.e('s_waitcnt vmcnt(0)')
        for u in range(2):
            sNT, sK, sISWO = sPU[u]
            P = ACC + 8 * u
            a.e('s_cmp_eq_u32 s%d, 1' % sISWO)
            a.e('s_cselect_b32 s%d, 2, 3' % sT)
            a.e('s_mov_b32 s%d, 256' % sT2)
            a.e('s_cselect_b32 s%d, 512, s%d' % (sT2, sT2))
            a.e('v_lshlrev_b32 v14, s%d, v9' % sT)
            a.e('v_add_u32 v14, v14, v11')
            a.e('v_lshl_add_u32 v14, v14, 6, v13')
            a.e('v_add_u32 v14, s%d, v14' % sPD)
            a.e('v_add_u32 v15, s%d, v14' % sT2)
            a.e('ds_read_b64_tr_b16 %s, v14 offset:%d' % (vr(P, 2), 2048 * u))
            a.e('ds_read_b64_tr_b16 %s, v15 offset:%d' % (vr(P + 2, 2), 2048 * u))
            a.e('ds_read_b64_tr_b16 %s, v14 offset:%d' % (vr(P + 4, 2), 2048 * u + 1024))
            a.e('ds_read_b64_tr_b16 %s, v15 offset:%d' % (vr(P + 6, 2), 2048 * u + 1024))
            a.e('s_mul_i32 s%d, s%d, 112' % (sT, sNT))
            a.e('s_lshl_b32 s%d, s%d, 1' % (sT2, sK))
            a.e('s_add_u32 s%d, s%d, s%d' % (sT, sT, sT2))
            a.e('s_lshl_b32 s%d, s%d, 10' % (sT, sT))
            a.e('s_add_u32 s%d, s%d, %d' % (sT, sT, W2P_OFF))
            a.e('s_lshl_b32 s%d, s%d, 4' % (sT3, sNT))
            a.e('s_add_u32 s%d, s%d, s%d' % (sT3, sT3, sK))
            a.e('s_lshl_b32 s%d, s%d, 11' % (sT3, sT3))
            a.e('s_add_u32 s%d, s%d, %d' % (sT3, sT3, WOP_OFF))
            a.e('s_cmp_eq_u32 s%d, 1' % sISWO)
            a.e('s_cselect_b32 s%d, s%d, s%d' % (sT, sT3, sT))
            a.e('s_cselect_b32 s%d, 32, 64' % sT2)
            a.e('v_cmp_le_u32 vcc, s%d, v0' % sT2)
            a.e('s_waitcnt lgkmcnt(0)')
            a.e('v_cndmask_b32 v%d, v%d, 0, vcc' % (P + 6, P + 6))
            a.e('v_cndmask_b32 v%d, v%d, 0, vcc' % (P + 7, P + 7))
            a.e('buffer_store_dwordx4 %s, v%d, %s, s%d offen' % (vr(P, 4), vST, sr(SWS, 4), sT))
            a.e('buffer_store_dwordx4 %s, v%d, %s, s%d offen offset:1024' % (vr(P + 4, 4), vST, sr(SWS, 4), sT))

    main_loop('B', [SW1, SW1, SLX, SW3, SW3], [64 * 3584] * 5, prep_issue, None, prep_finish)
    TMP = WF[0]
    a.e('s_lshl_b32 s%d, s%d, 3' % (sT3, sRB))
    a.e('s_lshl_b32 s3, s%d, 1' % sW)
    a.e('s_add_u32 s%d, s%d, s3' % (sT3, sT3))
    a.e('s_mul_i32 s3, s%d, 112' % sT3)
    a.e('s_mul_i32 s%d, s%d, 5' % (sT, sC))
    a.e('s_add_u32 s3, s3, s%d' % sT)
    a.e('s_add_u32 s3, s3, 32')
    a.e('s_lshl_b32 s3, s3, 10')
    a.e('s_add_u32 s3, s3, %d' % H_OFF)
    nst = 0
    for r in range(2):
        for m in range(5):
            o = 36 + 4 * (nst % 4)
            silu_mul(a, accb(m, r), TMP, o, sCON)
            a.e('buffer_store_dwordx4 %s, v%d, %s, s3 offen' % (vr(o, 4), vST, sr(SWS, 4)))
            a.e('s_add_u32 s3, s3, %d' % (1024 if m < 4 else (112 - 4) * 1024))
            nst += 1
    stamp(a, 9, vSTAMP)
    stamp(a, 11, vSTAMP, real=True)
    stamp_store(a, vSTAMP, SWS, sW8, 8, STAMP_OFF, 8)
    a.lab('K1_END')
    a.e('s_endpgm')
    return a.final()


def gen_k2():
    a = Asm()
    a.sp = 36
    SWS, SOUT = 8, 12
    sW, sRB, sCB, sT, sT2 = 16, 17, 18, 19, 20
    sH = [24, 25]
    sW2 = [26, 27]
    sKVT, sPQ, sWO = 28, [29, 30], [31, 32]
    vST = 1
    vG = [2, 4]
    vOMG = [6, 8]
    vSTAMP = 15
    DF = int(os.environ.get('DF', '10'))
    FB = 16
    HB = FB + 64
    OB = HB + 40
    OP = OB + 16
    TM = OP + 8
    BB = TM + 8
    NV = BB + 64
    accA = lambda rt, nt: vr(FB + 16 * (2 * rt + nt), 16)
    accB = lambda rt, nt: vr(BB + 16 * (2 * rt + nt), 16)

    a.lab('k2_kernel')
    SDBG = 40
    vFLAG = 14
    a.e('s_cmp_ge_u32 s2, 240')
    a.e('s_cbranch_scc1 K2_END')
    a.e('s_load_dwordx4 s[4:7], s[0:1], 64')
    a.e('s_load_dwordx2 s[44:45], s[0:1], 80')
    a.e('s_cmp_lt_u32 s2, 16')
    a.e('s_cbranch_scc1 K2_HELPER')
    a.e('s_sub_u32 s2, s2, 16')
    a.e('v_lshrrev_b32 v8, 6, v0')
    a.e('v_and_b32 v0, 63, v0')
    a.e('v_readfirstlane_b32 s%d, v8' % sW)
    a.e('v_lshlrev_b32 v%d, 4, v0' % vST)
    a.e('s_and_b32 s3, s2, 7')
    a.e('s_lshr_b32 s%d, s2, 3' % sT)
    a.e('s_mul_i32 s%d, s%d, 9363' % (sT2, sT))
    a.e('s_lshr_b32 s%d, s%d, 16' % (sT2, sT2))
    a.e('s_mul_i32 s%d, s%d, 7' % (sCB, sT2))
    a.e('s_sub_u32 s%d, s%d, s%d' % (sCB, sT, sCB))
    a.e('s_lshl_b32 s3, s3, 2')
    a.e('s_add_u32 s%d, s3, s%d' % (sRB, sT2))
    if MAP == 'bad':
        a.e('s_mul_i32 s%d, s2, 9363' % sRB)
        a.e('s_lshr_b32 s%d, s%d, 16' % (sRB, sRB))
        a.e('s_mul_i32 s%d, s%d, 7' % (sCB, sRB))
        a.e('s_sub_u32 s%d, s2, s%d' % (sCB, sCB))
    sG, sD = 33, 34
    if ROT:
        a.e('s_lshl_b32 s3, s%d, 1' % sT2)
        a.e('s_add_u32 s3, s3, s%d' % sCB)
        a.e('s_sub_u32 s%d, s3, 7' % sG)
        a.e('s_cmp_ge_u32 s3, 7')
        a.e('s_cselect_b32 s%d, s%d, s3' % (sG, sG))
    else:
        a.e('s_mov_b32 s%d, 0' % sG)
    a.e('s_mul_i32 s%d, s%d, %d' % (sT, sW, 28 * 1024))
    a.e('s_lshl_b32 s3, s%d, 12' % sG)
    a.e('s_add_u32 s%d, s%d, s3' % (sT, sT))
    a.e('s_mul_i32 s%d, s%d, %d' % (sH[0], sRB, 2 * 112 * 1024))
    a.e('s_add_u32 s%d, s%d, s%d' % (sH[0], sH[0], sT))
    a.e('s_add_u32 s%d, s%d, %d' % (sH[0], sH[0], H_OFF))
    a.e('s_add_u32 s%d, s%d, %d' % (sH[1], sH[0], 112 * 1024))
    a.e('s_mul_i32 s%d, s%d, %d' % (sW2[0], sCB, 2 * 112 * 1024))
    a.e('s_add_u32 s%d, s%d, s%d' % (sW2[0], sW2[0], sT))
    a.e('s_add_u32 s%d, s%d, %d' % (sW2[0], sW2[0], W2P_OFF))
    a.e('s_add_u32 s%d, s%d, %d' % (sW2[1], sW2[0], 112 * 1024))
    a.e('s_lshl_b32 s%d, s%d, 13' % (sT, sW))
    a.e('s_add_u32 s%d, s%d, %d' % (sKVT, sT, KVT_OFF))
    a.e('s_lshl_b32 s%d, s%d, 16' % (sPQ[0], sRB))
    a.e('s_add_u32 s%d, s%d, s%d' % (sPQ[0], sPQ[0], sT))
    a.e('s_add_u32 s%d, s%d, %d' % (sPQ[0], sPQ[0], PQ_OFF))
    a.e('s_add_u32 s%d, s%d, %d' % (sPQ[1], sPQ[0], 32768))
    a.e('s_lshl_b32 s%d, s%d, 16' % (sWO[0], sCB))
    a.e('s_add_u32 s%d, s%d, s%d' % (sWO[0], sWO[0], sT))
    a.e('s_add_u32 s%d, s%d, %d' % (sWO[0], sWO[0], WOP_OFF))
    a.e('s_add_u32 s%d, s%d, %d' % (sWO[1], sWO[0], 32768))
    a.e('v_and_b32 v8, 31, v0')
    a.e('v_lshlrev_b32 v8, 2, v8')
    a.e('s_lshl_b32 s%d, s%d, 8' % (sT, sRB))
    a.e('s_add_u32 s%d, s%d, %d' % (sT, sT, G_OFF))
    a.e('s_waitcnt lgkmcnt(0)')
    srd(a, SWS, 44, WS_SRD)
    srd(a, SOUT, 4, SZ_OUT)
    srd(a, SDBG, 6, 256)
    stamp(a, 0, vSTAMP)
    stamp(a, 10, vSTAMP, real=True)
    issued = []

    def ld(dst, sbase, off, tag, agpr=False):
        d = ('a[%d:%d]' % (dst, dst + 3)) if agpr else vr(dst, 4)
        a.e('buffer_load_dwordx4 %s, v%d, %s, s%d offen offset:%d%s' % (d, vST, sr(SWS, 4), sbase, off, ' sc1' if sbase == sKVT else ''))
        issued.append(tag)

    ar = lambda i: 'a[%d:%d]' % (i, i + 3)

    a.e('buffer_load_dword v%d, v8, %s, s%d offen' % (vG[0], sr(SWS, 4), sT))
    a.e('buffer_load_dword v%d, v8, %s, s%d offen offset:128' % (vG[1], sr(SWS, 4), sT))
    issued += ['g', 'g']

    items = []
    hpos = {16: 0, 20: 1, 24: 2, 27: 3}
    for f in range(28):
        items.append(('F', f))
        if f in hpos:
            items.append(('H', hpos[f]))
    FLAG_ISSUE, FLAG_CHECK = 9, 13

    def issue(it):
        kind, idx = it
        if kind == 'F':
            b = (idx % DF) * 16
            off = (idx % 4) * 1024
            ld(b, sH[0], off, it, True)
            ld(b + 4, sH[1], off, it, True)
            ld(b + 8, sW2[0], off, it, True)
            ld(b + 12, sW2[1], off, it, True)
            if idx % 4 == 3:
                a.e('s_add_u32 s%d, s%d, 1' % (sG, sG))
                a.e('s_cmp_eq_u32 s%d, 7' % sG)
                a.e('s_cselect_b32 s%d, 0, s%d' % (sG, sG))
                a.e('s_mov_b32 s%d, 4096' % sD)
                a.e('s_cselect_b32 s%d, 0x%x, s%d' % (sD, (-6 * 4096) & 0xffffffff, sD))
                for s in sH + sW2:
                    a.e('s_add_u32 s%d, s%d, s%d' % (s, s, sD))
        else:
            b = HB
            off = (idx % 2) * 2048
            for j in range(2):
                ld(b + 4 * j, sKVT, off + 1024 * j, it)
            for rt in range(2):
                for j in range(2):
                    ld(b + 8 + 8 * rt + 4 * j, sPQ[rt], off + 1024 * j, it)
            for nt in range(2):
                for j in range(2):
                    ld(b + 24 + 8 * nt + 4 * j, sWO[nt], off + 1024 * j, it)
            if idx % 2 == 1:
                for s in [sKVT] + sPQ + sWO:
                    a.e('s_add_u32 s%d, s%d, 4096' % (s, s))

    def wait_for(it):
        last = max(i for i, t in enumerate(issued) if t == it)
        a.e('s_waitcnt vmcnt(%d)' % min(63, len(issued) - 1 - last))

    firstB = [True]
    firstA = [True]

    def compute(it, extra):
        start = len(a.lines)
        compute_body(it)
        body = a.lines[start:]
        del a.lines[start:]
        groups = []
        for ln in extra:
            if 'buffer_load' in ln or not groups:
                groups.append([ln])
            else:
                groups[-1].append(ln)
        nm = sum('v_mfma' in ln for ln in body)
        per = -(-len(groups) // nm) if groups else 0
        for ln in body:
            a.lines.append(ln)
            if 'v_mfma' in ln:
                for g in groups[:per]:
                    a.lines.extend(g)
                groups = groups[per:]
        for g in groups:
            a.lines.extend(g)

    def compute_body(it):
        kind, idx = it
        if kind == 'F':
            b = (idx % DF) * 16
            for rt in range(2):
                for nt in range(2):
                    a.e('v_mfma_f32_32x32x16_bf16 %s, %s, %s, %s' % (accB(rt, nt), ar(b + 8 + 4 * nt), ar(b + 4 * rt),
                                                                   '0' if firstB[0] else accB(rt, nt)))
            firstB[0] = False
        else:
            b = HB
            for rt in range(2):
                a.e('v_mfma_f32_32x32x16_bf16 %s, %s, %s, 0' % (vr(OB, 16), vr(b, 4), vr(b + 8 + 8 * rt, 4)))
                a.e('v_mfma_f32_32x32x16_bf16 %s, %s, %s, %s' % (vr(OB, 16), vr(b + 4, 4), vr(b + 8 + 8 * rt + 4, 4), vr(OB, 16)))
                a.e('v_add_f32 v%d, %s, v%d' % (TM, EPS, OB + 12))
                a.e('v_mov_b32 v%d, v%d' % (TM + 1, TM))
                a.e('v_permlane32_swap_b32 v%d, v%d' % (TM, TM + 1))
                a.e('v_rcp_f32 v%d, v%d' % (TM, TM + 1))
                a.e('v_mul_f32 v%d, v%d, v%d' % (TM, TM, vG[rt]))
                a.e('v_mov_b32 v%d, v%d' % (TM + 1, TM))
                for i in range(8):
                    a.e('v_pk_mul_f32 %s, %s, %s' % (vr(OB + 2 * i, 2), vr(OB + 2 * i, 2), vr(TM, 2)))
                for i in range(8):
                    a.e('v_cvt_pk_bf16_f32 v%d, v%d, v%d' % (OP + i, OB + 2 * i, OB + 2 * i + 1))
                for j in range(2):
                    for nt in range(2):
                        a.e('v_mfma_f32_32x32x16_bf16 %s, %s, %s, %s' % (
                            accA(rt, nt), vr(b + 24 + 8 * nt + 4 * j, 4), vr(OP + 4 * j, 4),
                            '0' if (firstA[0] and j == 0) else accA(rt, nt)))
            firstA[0] = False

    nxt = 0

    def can_issue(k, cur):
        kind, idx = items[k]
        if kind == 'F':
            if idx < DF:
                return True
            return items.index(('F', idx - DF)) < cur
        else:
            if idx < 1:
                return cur > FLAG_CHECK
            return items.index(('H', idx - 1)) < cur

    order = list(range(len(items)))
    pending = list(range(len(items)))
    for cur in range(len(items)):
        if cur > 0:
            wait_for(items[cur])
        cap0 = len(a.lines)
        progressed = True
        while progressed:
            progressed = False
            for k in pending:
                kind, idx = items[k]
                if can_issue(k, cur) and (k <= cur + DF + 2):
                    issue(items[k])
                    pending.remove(k)
                    progressed = True
                    break
                if kind == 'F':
                    break
        extra = a.lines[cap0:]
        del a.lines[cap0:]
        if cur == 0:
            a.lines.extend(extra)
            extra = []
            wait_for(items[cur])
        compute(items[cur], extra)
        if cur == FLAG_ISSUE:
            a.e('v_mov_b32 v13, 0')
            a.e('buffer_load_dword v%d, v13, %s, 0 offen sc1' % (vFLAG, sr(SDBG, 4)))
            issued.append('flag')
        if cur == FLAG_CHECK:
            wait_for('flag')
            a.lab('K2_POLL')
            a.e('v_readfirstlane_b32 s3, v%d' % vFLAG)
            a.e('s_cmp_ge_u32 s3, 16')
            a.e('s_cbranch_scc1 K2_READY')
            a.e('s_sleep 2')
            a.e('buffer_load_dword v%d, v13, %s, 0 offen sc1' % (vFLAG, sr(SDBG, 4)))
            a.e('s_waitcnt vmcnt(0)')
            a.e('s_branch K2_POLL')
            a.lab('K2_READY')
        if cur % 8 == 0:
            stamp(a, 1 + cur // 8, vSTAMP)
    stamp(a, 5, vSTAMP)
    for rt in range(2):
        a.e('v_sub_f32 v%d, 1.0, v%d' % (vOMG[rt], vG[rt]))
        a.e('v_cvt_pk_bf16_f32 v%d, v%d, v%d' % (vOMG[rt], vOMG[rt], vOMG[rt]))
        a.e('v_and_b32 v%d, 0xffff0000, v%d' % (vOMG[rt] + 1, vOMG[rt]))
        a.e('v_mov_b32 v%d, v%d' % (vOMG[rt], vOMG[rt] + 1))
        a.e('v_mov_b32 v%d, v%d' % (vG[rt] + 1, vG[rt]))
    a.e('s_lshl_b32 s%d, s%d, 12' % (sT, sW))
    a.e('v_add_u32 v10, s%d, v%d' % (sT, vST))
    R = BB
    for t in range(4):
        rt = t >> 1
        for i in range(8):
            a.e('v_pk_fma_f32 %s, %s, %s, %s' % (vr(R + 16 * t + 2 * i, 2), vr(R + 16 * t + 2 * i, 2), vr(vOMG[rt], 2), vr(FB + 16 * t + 2 * i, 2)))
        for q in range(4):
            a.e('ds_write_b128 v10, %s offset:%d' % (vr(R + 16 * t + 4 * q, 4), 16384 * t + 1024 * q))
    a.e('s_waitcnt lgkmcnt(0)')
    a.e('s_barrier')
    stamp(a, 6, vSTAMP)
    a.e('s_lshl_b32 s%d, s%d, 14' % (sT, sW))
    a.e('v_add_u32 v10, s%d, v%d' % (sT, vST))
    for p in range(4):
        for q in range(4):
            a.e('ds_read_b128 %s, v10 offset:%d' % (vr(R + 16 * p + 4 * q, 4), 4096 * p + 1024 * q))
    a.e('s_lshr_b32 s%d, s%d, 1' % (sT, sW))
    a.e('s_lshl_b32 s%d, s%d, 1' % (sT2, sRB))
    a.e('s_add_u32 s%d, s%d, s%d' % (sT, sT, sT2))
    a.e('s_mul_i32 s%d, s%d, %d' % (sT, sT, 32 * 896))
    a.e('s_and_b32 s%d, s%d, 1' % (sT2, sW))
    a.e('s_lshl_b32 s%d, s%d, 6' % (sT2, sT2))
    a.e('s_add_u32 s%d, s%d, s%d' % (sT, sT, sT2))
    a.e('s_lshl_b32 s%d, s%d, 7' % (sT2, sCB))
    a.e('s_add_u32 s%d, s%d, s%d' % (sT, sT, sT2))
    a.e('v_and_b32 v9, 31, v0')
    a.e('v_mul_u32_u24 v9, 896, v9')
    a.e('v_lshrrev_b32 v10, 5, v0')
    a.e('v_lshl_add_u32 v9, v10, 5, v9')
    a.e('s_waitcnt lgkmcnt(0)')
    for i in range(8):
        a.e('v_pk_add_f32 %s, %s, %s' % (vr(R + 2 * i, 2), vr(R + 2 * i, 2), vr(R + 16 + 2 * i, 2)))
        a.e('v_pk_add_f32 %s, %s, %s' % (vr(R + 32 + 2 * i, 2), vr(R + 32 + 2 * i, 2), vr(R + 48 + 2 * i, 2)))
    for i in range(8):
        a.e('v_pk_add_f32 %s, %s, %s' % (vr(R + 2 * i, 2), vr(R + 2 * i, 2), vr(R + 32 + 2 * i, 2)))
    for i in range(8):
        a.e('v_cvt_pk_bf16_f32 v%d, v%d, v%d' % (HB + i, R + 2 * i, R + 2 * i + 1))
    a.e('buffer_store_dwordx4 %s, v9, %s, s%d offen' % (vr(HB, 4), sr(SOUT, 4), sT))
    a.e('buffer_store_dwordx4 %s, v9, %s, s%d offen offset:16' % (vr(HB + 4, 4), sr(SOUT, 4), sT))
    stamp(a, 9, vSTAMP)
    stamp(a, 11, vSTAMP, real=True)
    stamp_store(a, vSTAMP, SWS, sW, 4, STAMP_OFF + (1 << 20), 8)
    a.lab('K2_END')
    a.e('s_endpgm')
    a.lab('K2_HELPER')
    a.e('v_lshlrev_b32 v1, 4, v0')
    a.e('s_lshl_b32 s3, s2, 15')
    a.e('s_add_u32 s3, s3, %d' % KVP_OFF)
    a.e('s_waitcnt lgkmcnt(0)')
    srd(a, SWS, 44, WS_SRD)
    srd(a, SDBG, 6, 256)
    for p_ in range(8):
        a.e('buffer_load_dwordx4 %s, v1, %s, s3 offen' % (vr(4 + 4 * p_, 4), sr(SWS, 4)))
        a.e('s_add_u32 s3, s3, 4096')
    a.e('v_cmp_le_u32 vcc, 224, v0')
    a.e('v_lshrrev_b32 v2, 7, v0')
    a.e('v_lshlrev_b32 v2, 10, v2')
    a.e('v_and_b32 v3, 63, v0')
    a.e('v_lshl_add_u32 v2, v3, 4, v2')
    a.e('v_bfe_u32 v3, v0, 6, 1')
    a.e('v_lshl_add_u32 v2, v3, 3, v2')
    a.e('s_lshl_b32 s3, s2, 11')
    a.e('s_add_u32 s3, s3, %d' % KVT_OFF)
    for p_ in range(1, 8):
        a.e('s_waitcnt vmcnt(%d)' % (7 - p_))
        a.e('v_pk_add_f32 v[4:5], v[4:5], %s' % vr(4 + 4 * p_, 2))
        a.e('v_pk_add_f32 v[6:7], v[6:7], %s' % vr(6 + 4 * p_, 2))
    for k in range(4):
        a.e('v_cndmask_b32 v%d, v%d, 0, vcc' % (4 + k, 4 + k))
    a.e('v_cvt_pk_bf16_f32 v8, v4, v5')
    a.e('v_cvt_pk_bf16_f32 v9, v6, v7')
    a.e('buffer_store_dwordx2 v[8:9], v2, %s, s3 offen sc1' % sr(SWS, 4))
    a.e('s_waitcnt vmcnt(0)')
    a.e('s_barrier')
    a.e('v_cmp_eq_u32 vcc, 0, v0')
    a.e('s_and_saveexec_b64 s[20:21], vcc')
    a.e('s_cbranch_execz K2_HEND')
    a.e('v_mov_b32 v10, 1')
    a.e('v_mov_b32 v11, 0')
    a.e('buffer_atomic_add v10, v11, %s, 0 offen' % sr(SDBG, 4))
    a.lab('K2_HEND')
    a.e('s_endpgm')
    return a.final(), NV


def kd(name, accoff, nfv, nsg):
    return '''.amdhsa_kernel %s
  .amdhsa_next_free_vgpr %d
  .amdhsa_next_free_sgpr %d
  .amdhsa_accum_offset %d
  .amdhsa_group_segment_fixed_size 0
  .amdhsa_kernarg_size 88
  .amdhsa_user_sgpr_count 2
  .amdhsa_user_sgpr_kernarg_segment_ptr 1
  .amdhsa_system_sgpr_workgroup_id_x 1
  .amdhsa_float_denorm_mode_32 3
.end_amdhsa_kernel
''' % (name, nfv, nsg, accoff)


def main(out):
    k1 = gen_k1()
    pol = os.environ.get('STPOL', 'sc1')
    if pol:
        k1 = '\n'.join((ln + ' ' + pol) if ('buffer_store_dwordx4' in ln and 'sc1' not in ln) else ln for ln in k1.split('\n'))
    k2, nv2 = gen_k2()
    acc2 = (nv2 + 3) // 4 * 4
    s = '; generated by gen/gen11.py\n'
    s += '; @launch kernel=k1_kernel grid=(256,1,1) block=(512,1,1) lds=%d\n' % LDS_K1
    s += '; @launch kernel=k2_kernel grid=(240,1,1) block=(256,1,1) lds=65536\n'
    s += '.amdgcn_target "amdgcn-amd-amdhsa--gfx950"\n.text\n'
    for nm, body in (('k1_kernel', k1), ('k2_kernel', k2)):
        s += '.globl %s\n.p2align 8\n.type %s,@function\n' % (nm, nm) + body
    s += '.section .rodata,"a"\n.p2align 6\n'
    s += kd('k1_kernel', 256, 256, 102)
    s += '.p2align 6\n' + kd('k2_kernel', acc2, acc2 + 256, 48)
    open(out, 'w').write(s)


if __name__ == '__main__':
    main(sys.argv[1] if len(sys.argv) > 1 else 'cdna_kernels/%s.s' % NAME)
```

```python
import sys, os
sys.path.insert(0, 'gen')
from asmlib import Asm

NAME = 'gated_mix__linear_attn_block__glu_gated_swiglu__prompt'
PQ_OFF = 0
H_OFF = PQ_OFF + 64 * 16 * 2 * 1024
KVP_OFF = H_OFF + 64 * 112 * 1024
KVT_OFF = KVP_OFF + 16 * 8 * 4096
W2P_OFF = KVT_OFF + 16 * 2 * 1024
WOP_OFF = W2P_OFF + 14 * 112 * 1024
G_OFF = WOP_OFF + 14 * 16 * 2 * 1024
WS_BYTES = G_OFF + 2048 * 4
WS_SRD = 32 << 20

SZ_X = 2048 * 448 * 2
SZ_WQKV = 448 * 1344 * 2
SZ_WO = 448 * 448 * 2
SZ_W1 = 448 * 1792 * 2
SZ_W2 = 1792 * 448 * 2
SZ_GW = 448 * 2
SZ_OUT = 2048 * 448 * 2

STAGE = 53376
XREG = 32768
WOFF_A = [0, 4096, 8192, 12288, 16384 + 32]
WOFF_B = [0, 10368]
GWX = 3 * STAGE
LDS_K1 = 163840
LOG2E = '0x3fb8aa3b'
NLOG2E = '0xbfb8aa3b'
EPS = '0x358637bd'

STAMPS = os.environ.get('STAMPS', '0') == '1'
STAMP_OFF = 16 << 20
PREFETCH = os.environ.get('PREFETCH', '0') == '1'
ROT = os.environ.get('ROT', '0') == '1'
EARLY = os.environ.get('EARLY', '0') == '1'
PF2 = os.environ.get('PF2', '0') == '1'
MAP = os.environ.get('MAP', 'blk')


def stamp(a, k, vreg, sp=None, real=False):
    if not STAMPS:
        return
    sp = a.sp
    a.e('%s s[%d:%d]' % ('s_memrealtime' if real else 's_memtime', sp, sp + 1))
    a.e('s_waitcnt lgkmcnt(0)')
    a.e('v_writelane_b32 v%d, s%d, %d' % (vreg, sp, k))


def stamp_store(a, vreg, srdws, wave_sgpr, nwaves, base, tmpv, sp=None):
    if not STAMPS:
        return
    sp = a.sp
    a.e('s_mul_i32 s%d, s2, %d' % (sp, nwaves))
    a.e('s_add_u32 s%d, s%d, s%d' % (sp, sp, wave_sgpr))
    a.e('s_lshl_b32 s%d, s%d, 8' % (sp, sp))
    a.e('s_add_u32 s%d, s%d, %d' % (sp, sp, base))
    a.e('v_lshlrev_b32 v%d, 2, v0' % tmpv)
    a.e('buffer_store_dword v%d, v%d, s[%d:%d], s%d offen' % (vreg, tmpv, srdws, srdws + 3, sp))


def v(i):
    return 'v%d' % i


def vr(i, n):
    return 'v[%d:%d]' % (i, i + n - 1)


def sr(i, n):
    return 's[%d:%d]' % (i, i + n - 1)


def srd(a, d, lo, size):
    a.e('s_mov_b32 s%d, s%d' % (d, lo))
    a.e('s_and_b32 s%d, s%d, 0xffff' % (d + 1, lo + 1))
    a.e('s_mov_b32 s%d, 0x%x' % (d + 2, size))
    a.e('s_mov_b32 s%d, 0x00020000' % (d + 3))


def phi16(a, R, T, O, sC):
    for i in range(8):
        a.e('v_pk_mul_f32 %s, %s, %s' % (vr(T + 2 * i, 2), vr(R + 2 * i, 2), sr(sC, 2)))
    for i in range(16):
        a.e('v_exp_f32 v%d, v%d clamp' % (T + i, T + i))
    for i in range(16):
        a.e('v_max_f32 v%d, 0, v%d' % (R + i, R + i))
    for i in range(8):
        a.e('v_pk_add_f32 %s, %s, %s' % (vr(R + 2 * i, 2), vr(R + 2 * i, 2), sr(sC + 2, 2)))
    for i in range(8):
        a.e('v_pk_add_f32 %s, %s, %s' % (vr(R + 2 * i, 2), vr(R + 2 * i, 2), vr(T + 2 * i, 2)))
    for i in range(8):
        a.e('v_cvt_pk_bf16_f32 v%d, v%d, v%d' % (O + i, R + 2 * i, R + 2 * i + 1))


def silu_mul(a, R, T, O, sC):
    for i in range(4):
        a.e('v_pk_mul_f32 %s, %s, %s' % (vr(T + 2 * i, 2), vr(R + 2 * i, 2), sr(sC + 4, 2)))
    for i in range(8):
        a.e('v_exp_f32 v%d, v%d' % (T + i, T + i))
    for i in range(4):
        a.e('v_pk_mul_f32 %s, %s, %s' % (vr(R + 2 * i, 2), vr(R + 2 * i, 2), vr(R + 8 + 2 * i, 2)))
    for i in range(4):
        a.e('v_pk_add_f32 %s, %s, %s' % (vr(T + 2 * i, 2), vr(T + 2 * i, 2), sr(sC + 6, 2)))
    for i in range(8):
        a.e('v_rcp_f32 v%d, v%d' % (T + i, T + i))
    for i in range(4):
        a.e('v_pk_mul_f32 %s, %s, %s' % (vr(R + 2 * i, 2), vr(R + 2 * i, 2), vr(T + 2 * i, 2)))
    for i in range(4):
        a.e('v_cvt_pk_bf16_f32 v%d, v%d, v%d' % (O + i, R + 2 * i, R + 2 * i + 1))


def consts(a, sC):
    for k, val in enumerate([LOG2E, LOG2E, EPS, EPS, NLOG2E, NLOG2E, '0x3f800000', '0x3f800000']):
        a.e('s_mov_b32 s%d, %s' % (sC + k, val))


def gen_k1():
    a = Asm()
    a.sp = 100
    SX, SWQKV, SW1, SW3, SWS, SW2, SWO, SGW, SDBG = 24, 28, 32, 36, 40, 44, 48, 52, 56
    SLX = 60
    SOFF = [64, 65, 66, 67, 68]
    DEST = [69, 70, 71, 72, 73]
    sW, sRB, sC, sCB, sXD, sT, sT2, sT3 = 74, 75, 76, 77, 78, 79, 80, 81
    sCON = 84
    sEX = 92
    sW8 = 82
    sCH, sXK, sD1, sD2 = 83, 94, 95, 23
    sGWM = 22
    ACC = 96
    WF = [16, 36]
    XF = [56, 64]
    vTID = 1
    vXO = [2, 3]
    vWO = [4, 5, 6, 7, 72]
    vXA = [73, 74, 75, 76]
    vKV, vGU, vQ0, vQ1, vQI, vC128, vST = 77, 78, 79, 80, 81, 82, 83
    vSTAMP = 95
    accb = lambda t, r: ACC + 16 * (2 * t + r)

    a.lab('k1_kernel')
    a.e('s_cmp_ge_u32 s2, 256')
    a.e('s_cbranch_scc1 K1_END')
    a.e('s_load_dwordx4 s[4:7], s[0:1], 0')
    a.e('s_load_dwordx2 s[8:9], s[0:1], 16')
    a.e('s_load_dwordx4 s[12:15], s[0:1], 32')
    a.e('s_load_dwordx4 s[16:19], s[0:1], 48')
    a.e('s_load_dwordx4 s[96:99], s[0:1], 72')
    a.e('v_mov_b32 v%d, v0' % vTID)
    a.e('v_lshrrev_b32 v8, 6, v0')
    a.e('v_and_b32 v0, 63, v0')
    a.e('v_readfirstlane_b32 s%d, v8' % sW8)
    if MAP == 'old':
        a.e('s_and_b32 s3, s2, 7')
        a.e('s_lshr_b32 s%d, s2, 3' % sT)
        a.e('s_and_b32 s%d, s%d, 3' % (sT2, sT))
        a.e('s_lshl_b32 s3, s3, 2')
        a.e('s_add_u32 s%d, s3, s%d' % (sCB, sT2))
        a.e('s_lshr_b32 s%d, s%d, 2' % (sRB, sT))
    elif MAP == 'bad':
        a.e('s_and_b32 s%d, s2, 7' % sRB)
        a.e('s_lshr_b32 s%d, s2, 3' % sCB)
    else:
        a.e('s_lshr_b32 s%d, s2, 6' % sT)
        a.e('s_add_u32 s3, s2, s%d' % sT)
        a.e('s_and_b32 s3, s3, 7')
        a.e('s_lshl_b32 s%d, s%d, 3' % (sT2, sT))
        a.e('s_add_u32 s%d, s%d, s3' % (sCB, sT2))
        a.e('s_lshr_b32 s%d, s2, 3' % sRB)
        a.e('s_and_b32 s%d, s%d, 7' % (sRB, sRB))
    a.e('s_lshr_b32 s%d, s%d, 1' % (sC, sCB))
    a.e('s_and_b32 s%d, s%d, 3' % (sW, sW8))
    if ROT:
        a.e('s_and_b32 s3, s%d, 3' % sCB)
        a.e('s_lshl_b32 s3, s3, 1')
        a.e('s_add_u32 s3, s3, s%d' % sRB)
        a.e('s_sub_u32 s%d, s3, 7' % sCH)
        a.e('s_cmp_ge_u32 s3, 7')
        a.e('s_cselect_b32 s%d, s%d, s3' % (sCH, sCH))
    else:
        a.e('s_mov_b32 s%d, 0' % sCH)
    a.e('s_lshl_b32 s%d, s%d, 7' % (sXK, sCH))
    a.e('v_and_b32 v%d, 255, v%d' % (vTID, vTID))
    consts(a, sCON)
    a.e('s_lshl_b32 s%d, s%d, 8' % (sT, sRB))
    a.e('s_lshl_b32 s%d, s%d, 6' % (sT2, sW))
    a.e('s_add_u32 s%d, s%d, s%d' % (sT, sT, sT2))
    a.e('v_lshrrev_b32 v8, 3, v0')
    a.e('v_add_u32 v8, s%d, v8' % sT)
    a.e('v_mul_u32_u24 v8, 896, v8')
    a.e('v_and_b32 v9, 7, v0')
    a.e('v_lshrrev_b32 v10, 4, v0')
    a.e('v_xor_b32 v11, v9, v10')
    a.e('v_lshl_add_u32 v%d, v11, 4, v8' % vXO[0])
    a.e('v_xor_b32 v11, 4, v11')
    a.e('v_lshl_add_u32 v%d, v11, 4, v8' % vXO[1])
    a.e('s_lshl_b32 s%d, s%d, 13' % (sXD, sW))
    a.e('v_and_b32 v8, 31, v0')
    a.e('v_lshrrev_b32 v9, 5, v0')
    a.e('v_bfe_u32 v10, v8, 1, 3')
    a.e('v_lshlrev_b32 v11, 7, v8')
    a.e('v_add_u32 v11, s%d, v11' % sXD)
    for ks in range(4):
        a.e('v_add_u32 v12, %d, v9' % (2 * ks))
        a.e('v_xor_b32 v12, v12, v10')
        a.e('v_lshl_add_u32 v%d, v12, 4, v11' % vXA[ks])
    a.e('v_lshlrev_b32 v%d, 4, v0' % vST)
    a.e('v_bfe_u32 v10, v0, 4, 1')
    a.e('v_bfe_u32 v11, v0, 2, 2')
    a.e('v_and_b32 v12, 3, v0')
    a.e('v_lshl_add_u32 v13, v9, 3, v11')
    a.e('v_and_b32 v14, 1, v12')
    a.e('v_lshlrev_b32 v14, 1, v14')
    a.e('v_lshrrev_b32 v15, 1, v12')
    a.e('v_add_u32 v14, v14, v15')
    a.e('v_lshlrev_b32 v14, 3, v14')
    a.e('s_waitcnt lgkmcnt(0)')
    srd(a, SX, 4, SZ_X)
    srd(a, SWQKV, 6, SZ_WQKV)
    srd(a, SW1, 12, SZ_W1)
    srd(a, SW3, 14, SZ_W1)
    srd(a, SWS, 98, WS_SRD)
    srd(a, SW2, 16, SZ_W2)
    srd(a, SWO, 8, SZ_WO)
    srd(a, SGW, 18, SZ_GW)
    srd(a, SDBG, 96, 256)
    stamp(a, 0, vSTAMP)
    stamp(a, 10, vSTAMP, real=True)
    a.e('s_and_b32 s%d, s%d, 1' % (sT, sCB))
    a.e('s_cmp_eq_u32 s%d, 1' % sT)
    a.e('s_cbranch_scc1 K1_TYPEB')

    sSB, sXS, sLI = 10, 11, 12

    def dma_chunk(i, slot_srd, slot_step):
        a.e('s_add_u32 s%d, s%d, s%d' % (sXS, sXD, sSB))
        for q in range(8):
            a.e('s_add_u32 m0, s%d, %d' % (sXS, q * 1024))
            a.e('s_add_u32 s%d, s%d, %d' % (sT, sXK, q * 7168))
            a.e('buffer_load_dwordx4 v%d, %s, s%d offen lds' % (vXO[q & 1], sr(SX, 4), sT))
        a.e('s_add_u32 s%d, s%d, 128' % (sXK, sXK))
        for j in range(5):
            a.e('s_add_u32 m0, s%d, s%d' % (DEST[j], sSB))
            a.e('s_nop 0')
            a.e('buffer_load_dwordx4 v%d, %s, s%d offen lds' % (vWO[j], sr(slot_srd[j], 4), SOFF[j]))
            a.e('s_add_u32 s%d, s%d, %d' % (SOFF[j], SOFF[j], slot_step[j]))
        a.e('s_add_u32 s%d, s%d, %d' % (sSB, sSB, STAGE))
        a.e('s_cmp_eq_u32 s%d, %d' % (sSB, 3 * STAGE))
        a.e('s_cselect_b32 s%d, 0, s%d' % (sSB, sSB))

    def main_loop(typ, slot_srd, slot_step, extra_at_b5=None, pre_wait=None, loader_tail=None):
        def reads(n):
            i, ks = divmod(n, 4)
            st = n & 1
            L = []
            L.append('ds_read_b128 %s, v%d' % (vr(XF[st], 4), vXA[ks]))
            L.append('ds_read_b128 %s, v%d offset:4096' % (vr(XF[st] + 4, 4), vXA[ks]))
            for t in range(5):
                for rd in range(2):
                    dst = vr(WF[st] + 4 * t + 2 * rd, 2)
                    if typ == 'A':
                        if t == 0:
                            L.append('ds_read_b64_tr_b16 %s, v%d' % (dst, vQ0 if rd == 0 else vQ1))
                        elif t in (1, 2):
                            L.append('ds_read_b64_tr_b16 %s, v%d offset:%d' % (dst, vKV, 4096 * t + ks * 1024 + rd * 256))
                        else:
                            L.append('ds_read_b64_tr_b16 %s, v%d offset:%d' % (dst, vGU, 32 * (t - 3) + ks * 1024 + rd * 256))
                    else:
                        L.append('ds_read_b64_tr_b16 %s, v%d offset:%d' % (dst, vGU, 32 * t + ks * 2560 + rd * 640))
            return L

        def addr_adv(n):
            i, ks = divmod(n, 4)
            if ks == 0:
                delta = STAGE if (i % 3) != 0 else -2 * STAGE
                for r in vXA + [vGU] + ([vKV] if typ == 'A' else []):
                    a.e('v_add_u32 v%d, %d, v%d' % (r, delta, r) if delta > 0 else
                        'v_subrev_u32 v%d, %d, v%d' % (r, -delta, r))
                if typ == 'A':
                    d2 = (delta - 3 * 1024) & 0xffffffff
                    a.e('s_add_u32 s%d, s%d, 1' % (sCH, sCH))
                    a.e('s_cmp_eq_u32 s%d, 7' % sCH)
                    a.e('s_cselect_b32 s%d, 0, s%d' % (sCH, sCH))
                    a.e('s_mov_b32 s3, 128')
                    a.e('s_cselect_b32 s3, 0x%x, s3' % ((-3456) & 0xffffffff))
                    a.e('v_mov_b32 v8, 0x%x' % d2)
                    a.e('v_mov_b32 v9, s3')
                    a.e('v_cndmask_b32 v8, v8, v9, %s' % sr(sGWM, 2))
                    a.e('v_add_u32 v%d, v8, v%d' % (vQ0, vQ0))
                    a.e('v_add_u32 v%d, v8, v%d' % (vQ1, vQ1))
            elif typ == 'A':
                a.e('v_add_u32 v%d, v%d, v%d' % (vQ0, vQI, vQ0))
                a.e('v_add_u32 v%d, v%d, v%d' % (vQ1, vQI, vQ1))

        def mfma(n, t, r):
            st = n & 1
            acc = vr(accb(t, r), 16)
            wf = vr(WF[st] + 4 * t, 4)
            xf = vr(XF[st] + 4 * r, 4)
            c = acc if n > 0 else '0'
            if typ == 'A' and t in (1, 2):
                a.e('v_mfma_f32_32x32x16_bf16 %s, %s, %s, %s' % (acc, xf, wf, c))
            else:
                a.e('v_mfma_f32_32x32x16_bf16 %s, %s, %s, %s' % (acc, wf, xf, c))

        for j in range(5):
            a.e('s_mul_i32 s3, s%d, %d' % (sCH, slot_step[j]))
            a.e('s_add_u32 s%d, s%d, s3' % (SOFF[j], SOFF[j]))
        if typ == 'A':
            a.e('s_lshl_b32 s3, s%d, 9' % sCH)
            a.e('v_mov_b32 v8, s3')
            a.e('v_cndmask_b32 v8, 0, v8, %s' % sr(sGWM, 2))
            a.e('v_add_u32 v%d, v8, v%d' % (vQ0, vQ0))
            a.e('v_add_u32 v%d, v8, v%d' % (vQ1, vQ1))
        a.e('s_cmp_lt_u32 s%d, 4' % sW8)
        a.e('s_cbranch_scc1 K1%s_COMPUTE' % typ)
        outstanding = []
        a.e('s_mov_b32 s%d, 0' % sSB)
        dma_chunk(0, slot_srd, slot_step)
        outstanding.append(13)
        stamp(a, 1, vSTAMP)
        outstanding.append(0)
        if pre_wait:
            pre_wait(sum(outstanding))
        if not EARLY:
            dma_chunk(1, slot_srd, slot_step)
            outstanding.append(13)
        stamp(a, 2, vSTAMP)
        a.e('s_waitcnt vmcnt(%d) lgkmcnt(0)' % sum(outstanding[1:]))
        outstanding.pop(0)
        stamp(a, 3, vSTAMP)
        a.e('s_barrier')
        if EARLY:
            dma_chunk(1, slot_srd, slot_step)
            outstanding.append(13)
        dma_chunk(2, slot_srd, slot_step)
        outstanding.append(13)
        if PREFETCH:
            npf = 0
            a.e('s_lshr_b32 s3, s2, 3')
            a.e('s_lshl_b32 s3, s3, 6')
            a.e('v_add_u32 v16, s3, v0')
            a.e('v_mul_u32_u24 v16, 896, v16')
            a.e('s_lshl_b32 s3, s%d, 7' % sW)
            a.e('s_add_u32 s3, s3, 384')
            a.e('buffer_load_dword v17, v16, %s, s3 offen' % sr(SX, 4))
            npf += 1
            a.e('s_and_b32 s%d, s%d, 3' % (sT2, sRB))
            for j in range(5):
                a.e('s_mul_i32 s3, s%d, %d' % (sT2, slot_step[j]))
                a.e('s_add_u32 s3, s3, s%d' % SOFF[j])
                a.e('buffer_load_dwordx4 %s, v%d, %s, s3 offen' % (vr(20 + 4 * j, 4), vWO[j], sr(slot_srd[j], 4)))
                npf += 1
            outstanding[-1] += npf
        outstanding = [outstanding[0] + outstanding[1]] + outstanding[2:]
        a.e('s_mov_b32 s%d, 0' % sLI)
        a.lab('K1%s_LLOOP' % typ)
        a.e('s_waitcnt vmcnt(13)')
        a.e('s_barrier')
        dma_chunk(3, slot_srd, slot_step)
        a.e('s_add_u32 s%d, s%d, 1' % (sLI, sLI))
        a.e('s_cmp_lt_u32 s%d, 4' % sLI)
        a.e('s_cbranch_scc1 K1%s_LLOOP' % typ)
        a.e('s_waitcnt vmcnt(13)')
        a.e('s_barrier')
        ne = extra_at_b5() if extra_at_b5 else 0
        a.e('s_waitcnt vmcnt(%d)' % ne)
        a.e('s_barrier')
        if loader_tail:
            loader_tail()
        stamp(a, 9, vSTAMP)
        stamp(a, 11, vSTAMP, real=True)
        stamp_store(a, vSTAMP, SWS, sW8, 8, STAMP_OFF, 8)
        a.e('s_endpgm')
        a.lab('K1%s_COMPUTE' % typ)
        if PF2:
            a.e('s_lshr_b32 s3, s2, 3')
            a.e('s_lshl_b32 s3, s3, 2')
            a.e('s_add_u32 s3, s3, s%d' % sW)
            a.e('s_mul_i32 s3, s3, %d' % (16 * 896))
            a.e('v_lshlrev_b32 v16, 7, v0')
            a.e('v_min_u32 v17, %d, v16' % (47 * 128))
            a.e('buffer_load_dword v18, v16, %s, s3 offen' % sr(SX, 4))
            a.e('s_add_u32 s3, s3, 8192')
            a.e('buffer_load_dword v19, v17, %s, s3 offen' % sr(SX, 4))
            a.e('v_min_u32 v16, 55, v0')
            a.e('s_mul_i32 s3, s%d, 56' % sRB)
            a.e('v_add_u32 v16, s3, v16')
            a.e('v_mul_u32_u24 v17, 3584, v16')
            a.e('v_mul_u32_u24 v16, 2688, v16')
            if typ == 'A':
                a.e('s_mul_i32 s%d, s%d, 56' % (sT, sC))
                a.e('s_lshl_b32 s%d, s%d, 6' % (sT2, sC))
                tg = []
                for rho in range(3):
                    tg.append((SWQKV, 16, sT, rho * 896))
                    tg.append((SWQKV, 16, sT, rho * 896 + 52))
                tg.append((SW1, 17, sT2, 0))
                tg.append((SW3, 17, sT2, 0))
            else:
                a.e('s_mul_i32 s%d, s%d, 160' % (sT, sC))
                a.e('s_add_u32 s%d, s%d, 1024' % (sT, sT))
                tg = [(sd, 17, sT, o) for sd in (SW1, SW3) for o in (0, 80, 156)]
            for w in range(4):
                mine = tg[2 * w:2 * w + 2]
                if not mine:
                    continue
                a.e('s_cmp_lg_u32 s%d, %d' % (sW, w))
                a.e('s_cbranch_scc1 K1%s_PF%d' % (typ, w))
                for n_, (sd, vv, ss, off) in enumerate(mine):
                    a.e('buffer_load_dword v%d, v%d, %s, s%d offen offset:%d' % (20 + n_, vv, sr(sd, 4), ss, off))
                a.lab('K1%s_PF%d' % (typ, w))
        a.e('s_barrier')
        stamp(a, 1, vSTAMP)
        for s in reads(0):
            a.e(s)
        sI, sSG, sDL = 4, 5, 6

        def step(n, cross=False, first=False):
            a.e('s_waitcnt lgkmcnt(0)')
            if cross:
                a.e('s_cmp_eq_u32 s%d, 6' % sI)
                a.e('s_cbranch_scc1 K1%s_NOBAR' % typ)
                a.e('s_barrier')
                a.lab('K1%s_NOBAR' % typ)
            mfma(0 if first else n + 4, 0, 0)
            if cross:
                a.e('s_add_u32 s%d, s%d, 1' % (sSG, sSG))
                a.e('s_cmp_eq_u32 s%d, 3' % sSG)
                a.e('s_cselect_b32 s%d, 0, s%d' % (sSG, sSG))
                a.e('s_mov_b32 s%d, %d' % (sDL, STAGE))
                a.e('s_cselect_b32 s%d, 0x%x, s%d' % (sDL, (-2 * STAGE) & 0xffffffff, sDL))
                for r in vXA + [vGU] + ([vKV] if typ == 'A' else []):
                    a.e('v_add_u32 v%d, s%d, v%d' % (r, sDL, r))
                if typ == 'A':
                    a.e('s_sub_u32 s3, s%d, 3072' % sDL)
                    a.e('v_mov_b32 v8, s3')
                    a.e('v_cndmask_b32 v8, v8, v%d, %s' % (vC128, sr(sGWM, 2)))
                    a.e('v_add_u32 v%d, v8, v%d' % (vQ0, vQ0))
                    a.e('v_add_u32 v%d, v8, v%d' % (vQ1, vQ1))
            elif typ == 'A':
                a.e('v_add_u32 v%d, v%d, v%d' % (vQ0, vQI, vQ0))
                a.e('v_add_u32 v%d, v%d, v%d' % (vQ1, vQI, vQ1))
            R = reads(n + 1)
            k = 0
            for m in range(1, 10):
                for s_ in R[k:k + 2]:
                    a.e(s_)
                k += 2
                mfma(0 if first else n + 4, m // 2, m % 2)

        a.e('s_mov_b32 s%d, 0' % sI)
        a.e('s_mov_b32 s%d, 0' % sSG)
        step(0, first=True)
        a.lab('K1%s_LOOP' % typ)
        step(1)
        step(2)
        step(3, cross=True)
        a.e('s_cmp_eq_u32 s%d, 6' % sI)
        a.e('s_cbranch_scc1 K1%s_LOOPEND' % typ)
        step(4)
        a.e('s_add_u32 s%d, s%d, 1' % (sI, sI))
        a.e('s_branch K1%s_LOOP' % typ)
        a.lab('K1%s_LOOPEND' % typ)
        a.e('s_waitcnt lgkmcnt(0)')
        a.e('s_nop 7')
        a.e('s_nop 7')
        stamp(a, 8, vSTAMP)

    a.e('v_lshl_add_u32 v15, v10, 2, v12')
    a.e('v_and_b32 v8, 6, v15')
    a.e('v_cmp_eq_u32 vcc, 6, v8')
    a.e('v_xor_b32 v8, 1, v15')
    a.e('v_cndmask_b32 v8, v15, v8, vcc')
    a.e('v_lshlrev_b32 v8, 3, v8')
    a.e('v_lshl_add_u32 v8, v13, 6, v8')
    a.e('v_add_u32 v%d, %d, v8' % (vKV, XREG))
    a.e('v_cmp_eq_u32 %s, 7, v15' % sr(sGWM, 2))
    a.e('v_lshlrev_b32 v9, 3, v13')
    a.e('v_add_u32 v9, %d, v9' % GWX)
    a.e('v_cndmask_b32 v%d, v%d, v9, %s' % (vQ0, vKV, sr(sGWM, 2)))
    a.e('v_add_u32 v8, 256, v%d' % vKV)
    a.e('v_add_u32 v9, 32, v9')
    a.e('v_cndmask_b32 v%d, v8, v9, %s' % (vQ1, sr(sGWM, 2)))
    a.e('v_mov_b32 v%d, 128' % vC128)
    a.e('v_mov_b32 v8, 1024')
    a.e('v_cndmask_b32 v%d, v8, v%d, %s' % (vQI, vC128, sr(sGWM, 2)))
    a.e('v_mul_u32_u24 v8, %d, v10' % (WOFF_A[4] - WOFF_A[3]))
    a.e('v_lshl_add_u32 v8, v13, 6, v8')
    a.e('v_add_u32 v8, v14, v8')
    a.e('v_add_u32 v%d, %d, v8' % (vGU, XREG + WOFF_A[3]))
    a.e('v_lshrrev_b32 v8, 2, v0')
    a.e('v_and_b32 v9, 3, v0')
    a.e('v_lshlrev_b32 v10, 4, v9')
    a.e('v_cmp_eq_u32 vcc, 3, v9')
    a.e('v_mov_b32 v11, 40')
    a.e('v_cndmask_b32 v11, v10, v11, vcc')
    a.e('v_mul_u32_u24 v12, 2688, v8')
    a.e('v_add_u32 v12, v12, v11')
    a.e('v_mul_u32_u24 v13, 3584, v8')
    a.e('v_add_u32 v13, v13, v10')
    a.e('s_mul_i32 s%d, s%d, 56' % (sT, sC))
    a.e('v_add_u32 v%d, s%d, v12' % (vWO[0], sT))
    a.e('v_mov_b32 v%d, v%d' % (vWO[1], vWO[0]))
    a.e('v_mov_b32 v%d, v%d' % (vWO[2], vWO[0]))
    a.e('s_lshl_b32 s3, s%d, 6' % sC)
    a.e('v_add_u32 v%d, s3, v13' % vWO[3])
    a.e('v_mov_b32 v%d, v%d' % (vWO[4], vWO[3]))
    a.e('s_mul_i32 s%d, s%d, %d' % (SOFF[0], sW, 16 * 2688))
    a.e('s_add_u32 s%d, s%d, 896' % (SOFF[1], SOFF[0]))
    a.e('s_add_u32 s%d, s%d, 1792' % (SOFF[2], SOFF[0]))
    a.e('s_mul_i32 s%d, s%d, %d' % (SOFF[3], sW, 16 * 3584))
    a.e('s_mov_b32 s%d, s%d' % (SOFF[4], SOFF[3]))
    a.e('s_lshl_b32 s3, s%d, 10' % sW)
    for j in range(5):
        a.e('s_add_u32 s%d, s3, %d' % (DEST[j], XREG + WOFF_A[j]))
    a.e('v_lshlrev_b32 v8, 1, v%d' % vTID)
    a.e('buffer_load_ushort v10, v8, %s, 0 offen' % sr(SGW, 4))
    a.e('buffer_load_ushort v12, v8, %s, 0 offen offset:512' % sr(SGW, 4))

    def pre_wait_A(nout):
        a.e('s_waitcnt vmcnt(%d)' % nout)
        a.e('v_lshl_or_b32 v10, v10, 16, v10')
        a.e('v_mov_b32 v11, v10')
        a.e('v_lshl_or_b32 v12, v12, 16, v12')
        a.e('v_mov_b32 v13, v12')
        a.e('v_lshlrev_b32 v8, 3, v%d' % vTID)
        a.e('v_add_u32 v8, %d, v8' % GWX)
        a.e('ds_write_b64 v8, v[10:11]')
        a.e('v_cmp_gt_u32 vcc, 192, v%d' % vTID)
        a.e('s_and_saveexec_b64 %s, vcc' % sr(sEX, 2))
        a.e('ds_write_b64 v8, v[12:13] offset:2048')
        a.e('s_mov_b64 exec, %s' % sr(sEX, 2))

    def kv_tail():
        RED = STAGE
        a.e('s_barrier')
        a.e('s_cmp_lg_u32 s%d, 0' % sW)
        a.e('s_cbranch_scc1 K1A_DONE')
        KR = ACC
        a.e('v_add_u32 v8, %d, v%d' % (RED, vST))
        for p in range(4):
            for q in range(4):
                a.e('ds_read_b128 %s, v8 offset:%d' % (vr(KR + 16 * p + 4 * q, 4), 4096 * p + 1024 * q))
        a.e('s_lshl_b32 s3, s%d, 3' % sC)
        a.e('s_add_u32 s3, s3, s%d' % sRB)
        a.e('s_lshl_b32 s3, s3, 12')
        a.e('s_add_u32 s3, s3, %d' % KVP_OFF)
        a.e('s_waitcnt lgkmcnt(0)')
        for i in range(8):
            a.e('v_pk_add_f32 %s, %s, %s' % (vr(KR + 2 * i, 2), vr(KR + 2 * i, 2), vr(KR + 16 + 2 * i, 2)))
            a.e('v_pk_add_f32 %s, %s, %s' % (vr(KR + 32 + 2 * i, 2), vr(KR + 32 + 2 * i, 2), vr(KR + 48 + 2 * i, 2)))
        for i in range(8):
            a.e('v_pk_add_f32 %s, %s, %s' % (vr(KR + 2 * i, 2), vr(KR + 2 * i, 2), vr(KR + 32 + 2 * i, 2)))
        for q in range(4):
            a.e('buffer_store_dwordx4 %s, v%d, %s, s3 offen offset:%d sc1' % (vr(KR + 4 * q, 4), vST, sr(SWS, 4), 1024 * q))
        a.lab('K1A_DONE')

    main_loop('A', [SWQKV, SWQKV, SWQKV, SW1, SW3], [64 * 2688] * 3 + [64 * 3584] * 2, None, pre_wait_A, kv_tail)
    TMP = WF[0]
    PK = 36
    PV = 44
    a.e('s_lshl_b32 s%d, s%d, 3' % (sT3, sRB))
    a.e('s_lshl_b32 s3, s%d, 1' % sW)
    a.e('s_add_u32 s%d, s%d, s3' % (sT3, sT3))
    a.e('v_and_b32 v8, 31, v0')
    a.e('v_cmp_le_u32 %s, 28, v8' % sr(sGWM, 2))
    a.e('v_mov_b32 v9, 0x3f803f80')
    KVA = 56
    for r in range(2):
        phi16(a, accb(1, r), TMP, PK, sCON)
        for i in range(8):
            a.e('v_cvt_pk_bf16_f32 v%d, v%d, v%d' % (PV + i, accb(2, r) + 2 * i, accb(2, r) + 2 * i + 1))
        for i in range(8):
            a.e('v_cndmask_b32 v%d, v%d, v9, %s' % (PV + i, PV + i, sr(sGWM, 2)))
        a.e('v_mfma_f32_32x32x16_bf16 %s, %s, %s, %s' % (vr(KVA, 16), vr(PK, 4), vr(PV, 4), '0' if r == 0 else vr(KVA, 16)))
        a.e('v_mfma_f32_32x32x16_bf16 %s, %s, %s, %s' % (vr(KVA, 16), vr(PK + 4, 4), vr(PV + 4, 4), vr(KVA, 16)))
    RED = STAGE
    a.e('s_lshl_b32 s3, s%d, 12' % sW)
    a.e('v_add_u32 v8, s3, v%d' % vST)
    a.e('v_add_u32 v8, %d, v8' % RED)
    for q in range(4):
        a.e('ds_write_b128 v8, %s offset:%d' % (vr(KVA + 4 * q, 4), 1024 * q))
    a.e('s_waitcnt lgkmcnt(0)')
    a.e('s_barrier')
    a.e('v_mov_b32 v10, v%d' % (accb(0, 0) + 12))
    a.e('v_mov_b32 v11, v%d' % (accb(0, 1) + 12))
    a.e('s_lshl_b32 s3, s%d, 4' % sT3)
    a.e('s_add_u32 s3, s3, s%d' % sC)
    a.e('s_lshl_b32 s3, s3, 11')
    a.e('s_add_u32 s%d, s3, 32768' % sT)
    for r in range(2):
        o = PK + 8 * r
        phi16(a, accb(0, r), TMP, o, sCON)
        sb = 's3' if r == 0 else 's%d' % sT
        a.e('buffer_store_dwordx4 %s, v%d, %s, %s offen' % (vr(o, 4), vST, sr(SWS, 4), sb))
        a.e('buffer_store_dwordx4 %s, v%d, %s, %s offen offset:1024' % (vr(o + 4, 4), vST, sr(SWS, 4), sb))
    a.e('s_cmp_lg_u32 s%d, 0' % sC)
    a.e('s_cbranch_scc1 K1A_NOG')
    a.e('v_cvt_pk_bf16_f32 v12, v10, v11')
    a.e('v_lshlrev_b32 v10, 16, v12')
    a.e('v_and_b32 v11, 0xffff0000, v12')
    a.e('v_pk_mul_f32 v[10:11], v[10:11], %s' % sr(sCON + 4, 2))
    a.e('v_exp_f32 v10, v10')
    a.e('v_exp_f32 v11, v11')
    a.e('v_pk_add_f32 v[10:11], v[10:11], %s' % sr(sCON + 6, 2))
    a.e('v_rcp_f32 v10, v10')
    a.e('v_rcp_f32 v11, v11')
    a.e('v_cvt_pk_bf16_f32 v12, v10, v11')
    a.e('v_lshlrev_b32 v10, 16, v12')
    a.e('v_and_b32 v11, 0xffff0000, v12')
    a.e('v_and_b32 v12, 31, v0')
    a.e('v_lshlrev_b32 v12, 2, v12')
    a.e('s_lshl_b32 s3, s%d, 7' % sT3)
    a.e('s_add_u32 s3, s3, %d' % G_OFF)
    a.e('v_cmp_le_u32 vcc, 32, v0')
    a.e('s_and_saveexec_b64 %s, vcc' % sr(sEX, 2))
    a.e('buffer_store_dword v10, v12, %s, s3 offen' % sr(SWS, 4))
    a.e('buffer_store_dword v11, v12, %s, s3 offen offset:128' % sr(SWS, 4))
    a.e('s_mov_b64 exec, %s' % sr(sEX, 2))
    a.lab('K1A_NOG')
    a.e('s_mul_i32 s3, s%d, 112' % sT3)
    a.e('s_lshl_b32 s%d, s%d, 1' % (sT, sC))
    a.e('s_add_u32 s3, s3, s%d' % sT)
    a.e('s_lshl_b32 s3, s3, 10')
    a.e('s_add_u32 s3, s3, %d' % H_OFF)
    a.e('s_add_u32 s%d, s3, %d' % (sT, 112 * 1024))
    for r in range(2):
        for m in range(2):
            o = PK + 4 * (2 * r + m)
            silu_mul(a, accb(3 + m, r), TMP, o, sCON)
            a.e('buffer_store_dwordx4 %s, v%d, %s, %s offen offset:%d' % (vr(o, 4), vST, sr(SWS, 4), 's3' if r == 0 else 's%d' % sT, 1024 * m))
    stamp(a, 9, vSTAMP)
    stamp(a, 11, vSTAMP, real=True)
    stamp_store(a, vSTAMP, SWS, sW8, 8, STAMP_OFF, 8)
    a.e('s_endpgm')

    a.lab('K1_TYPEB')
    a.e('v_mul_u32_u24 v8, %d, v10' % WOFF_B[1])
    a.e('v_mul_u32_u24 v9, 160, v13')
    a.e('v_add3_u32 v8, v8, v9, v14')
    a.e('v_add_u32 v%d, %d, v8' % (vGU, XREG))
    a.e('s_mul_i32 s%d, s%d, 160' % (sT, sC))
    a.e('s_add_u32 s%d, s%d, 1024' % (sT, sT))

    def slotB(j, q_sgpr):
        a.e('s_lshl_b32 s3, s%d, 6' % q_sgpr)
        a.e('v_add_u32 v8, s3, v0')
        a.e('v_mul_u32_u24 v9, 6554, v8')
        a.e('v_lshrrev_b32 v9, 16, v9')
        a.e('v_mul_u32_u24 v10, 10, v9')
        a.e('v_sub_u32 v10, v8, v10')
        a.e('v_mul_u32_u24 v9, 3584, v9')
        a.e('v_lshl_add_u32 v9, v10, 4, v9')
        a.e('v_add_u32 v%d, s%d, v9' % (vWO[j], sT))
        a.e('s_mov_b32 s%d, 0' % SOFF[j])
        a.e('s_lshl_b32 s%d, s%d, 10' % (DEST[j], q_sgpr))

    slotB(0, sW)
    a.e('s_add_u32 s%d, s%d, %d' % (DEST[0], DEST[0], XREG + WOFF_B[0]))
    a.e('s_add_u32 s%d, s%d, 4' % (sT2, sW))
    slotB(1, sT2)
    a.e('s_add_u32 s%d, s%d, %d' % (DEST[1], DEST[1], XREG + WOFF_B[0]))
    a.e('s_add_u32 s%d, s%d, 8' % (sT2, sW))
    a.e('s_sub_u32 s%d, s%d, 2' % (sT3, sW))
    a.e('s_cmp_lt_u32 s%d, 2' % sW)
    a.e('s_cselect_b32 s%d, s%d, s%d' % (sT2, sT2, sT3))
    a.e('s_cselect_b64 %s, %s, %s' % (sr(SLX, 2), sr(SW1, 2), sr(SW3, 2)))
    a.e('s_cselect_b64 %s, %s, %s' % (sr(SLX + 2, 2), sr(SW1 + 2, 2), sr(SW3 + 2, 2)))
    a.e('s_mov_b32 s%d, %d' % (sT3, XREG + WOFF_B[1]))
    a.e('s_cselect_b32 s%d, %d, s%d' % (sT3, XREG + WOFF_B[0], sT3))
    slotB(2, sT2)
    a.e('s_add_u32 s%d, s%d, s%d' % (DEST[2], DEST[2], sT3))
    a.e('s_add_u32 s%d, s%d, 2' % (sT2, sW))
    slotB(3, sT2)
    a.e('s_add_u32 s%d, s%d, %d' % (DEST[3], DEST[3], XREG + WOFF_B[1]))
    a.e('s_add_u32 s%d, s%d, 6' % (sT2, sW))
    slotB(4, sT2)
    a.e('s_add_u32 s%d, s%d, %d' % (DEST[4], DEST[4], XREG + WOFF_B[1]))

    PREP = STAGE
    sPU = [[4, 5, 6], [7, 8, 9]]
    sPD = 10

    def prep_issue():
        a.e('s_lshl_b32 s%d, s%d, 12' % (sPD, sW))
        a.e('s_add_u32 s%d, s%d, %d' % (sPD, sPD, PREP))
        a.e('v_lshrrev_b32 v8, 2, v0')
        a.e('v_mul_u32_u24 v8, 896, v8')
        a.e('v_and_b32 v9, 3, v0')
        a.e('v_lshl_add_u32 v8, v9, 4, v8')
        for u in range(2):
            sNT, sK, sISWO = sPU[u]
            a.e('s_lshl_b32 s%d, s%d, 4' % (sT, sRB))
            a.e('s_add_u32 s%d, s%d, s%d' % (sT, sT, sC))
            a.e('s_lshl_b32 s%d, s%d, 2' % (sT, sT))
            a.e('s_add_u32 s%d, s%d, s%d' % (sT, sT, sW))
            a.e('s_lshl_b32 s%d, s%d, 1' % (sT, sT))
            a.e('s_add_u32 s%d, s%d, %d' % (sT, sT, u))
            a.e('s_min_u32 s%d, s%d, 1007' % (sT, sT))
            a.e('s_cmp_ge_u32 s%d, 784' % sT)
            a.e('s_cselect_b32 s%d, 1, 0' % sISWO)
            a.e('s_cselect_b32 s%d, 784, 0' % sT2)
            a.e('s_sub_u32 s%d, s%d, s%d' % (sT, sT, sT2))
            a.e('s_mul_i32 s%d, s%d, 4682' % (sK, sT))
            a.e('s_lshr_b32 s%d, s%d, 16' % (sK, sK))
            a.e('s_mul_i32 s%d, s%d, 14' % (sT2, sK))
            a.e('s_sub_u32 s%d, s%d, s%d' % (sNT, sT, sT2))
            a.e('s_cmp_eq_u32 s%d, 1' % sISWO)
            a.e('s_cselect_b32 s%d, 28, 32' % sT2)
            a.e('s_mul_i32 s%d, s%d, s%d' % (sT2, sT2, sK))
            a.e('s_mul_i32 s%d, s%d, 896' % (sT2, sT2))
            a.e('s_lshl_b32 s%d, s%d, 6' % (sT3, sNT))
            a.e('s_add_u32 s%d, s%d, s%d' % (sT2, sT2, sT3))
            a.e('s_cmp_eq_u32 s%d, 1' % sISWO)
            a.e('s_cselect_b64 %s, %s, %s' % (sr(SLX, 2), sr(SWO, 2), sr(SW2, 2)))
            a.e('s_cselect_b64 %s, %s, %s' % (sr(SLX + 2, 2), sr(SWO + 2, 2), sr(SW2 + 2, 2)))
            a.e('s_add_u32 m0, s%d, %d' % (sPD, 2048 * u))
            a.e('s_add_u32 s%d, s%d, %d' % (sT3, sT2, 16 * 896))
            a.e('buffer_load_dwordx4 v8, %s, s%d offen lds' % (sr(SLX, 4), sT2))
            a.e('s_add_u32 m0, s%d, %d' % (sPD, 2048 * u + 1024))
            a.e('s_nop 0')
            a.e('buffer_load_dwordx4 v8, %s, s%d offen lds' % (sr(SLX, 4), sT3))
        return 4

    def prep_finish():
        a.e('v_lshrrev_b32 v9, 5, v0')
        a.e('v_bfe_u32 v10, v0, 4, 1')
        a.e('v_bfe_u32 v11, v0, 2, 2')
        a.e('v_and_b32 v12, 3, v0')
        a.e('v_lshl_add_u32 v15, v10, 2, v12')
        a.e('v_and_b32 v13, 1, v15')
        a.e('v_lshlrev_b32 v13, 2, v13')
        a.e('v_lshrrev_b32 v14, 1, v15')
        a.e('v_add_u32 v13, v13, v14')
        a.e('v_lshlrev_b32 v13, 3, v13')
        a.e('s_waitcnt vmcnt(0)')
        for u in range(2):
            sNT, sK, sISWO = sPU[u]
            P = ACC + 8 * u
            a.e('s_cmp_eq_u32 s%d, 1' % sISWO)
            a.e('s_cselect_b32 s%d, 2, 3' % sT)
            a.e('s_mov_b32 s%d, 256' % sT2)
            a.e('s_cselect_b32 s%d, 512, s%d' % (sT2, sT2))
            a.e('v_lshlrev_b32 v14, s%d, v9' % sT)
            a.e('v_add_u32 v14, v14, v11')
            a.e('v_lshl_add_u32 v14, v14, 6, v13')
            a.e('v_add_u32 v14, s%d, v14' % sPD)
            a.e('v_add_u32 v15, s%d, v14' % sT2)
            a.e('ds_read_b64_tr_b16 %s, v14 offset:%d' % (vr(P, 2), 2048 * u))
            a.e('ds_read_b64_tr_b16 %s, v15 offset:%d' % (vr(P + 2, 2), 2048 * u))
            a.e('ds_read_b64_tr_b16 %s, v14 offset:%d' % (vr(P + 4, 2), 2048 * u + 1024))
            a.e('ds_read_b64_tr_b16 %s, v15 offset:%d' % (vr(P + 6, 2), 2048 * u + 1024))
            a.e('s_mul_i32 s%d, s%d, 112' % (sT, sNT))
            a.e('s_lshl_b32 s%d, s%d, 1' % (sT2, sK))
            a.e('s_add_u32 s%d, s%d, s%d' % (sT, sT, sT2))
            a.e('s_lshl_b32 s%d, s%d, 10' % (sT, sT))
            a.e('s_add_u32 s%d, s%d, %d' % (sT, sT, W2P_OFF))
            a.e('s_lshl_b32 s%d, s%d, 4' % (sT3, sNT))
            a.e('s_add_u32 s%d, s%d, s%d' % (sT3, sT3, sK))
            a.e('s_lshl_b32 s%d, s%d, 11' % (sT3, sT3))
            a.e('s_add_u32 s%d, s%d, %d' % (sT3, sT3, WOP_OFF))
            a.e('s_cmp_eq_u32 s%d, 1' % sISWO)
            a.e('s_cselect_b32 s%d, s%d, s%d' % (sT, sT3, sT))
            a.e('s_cselect_b32 s%d, 32, 64' % sT2)
            a.e('v_cmp_le_u32 vcc, s%d, v0' % sT2)
            a.e('s_waitcnt lgkmcnt(0)')
            a.e('v_cndmask_b32 v%d, v%d, 0, vcc' % (P + 6, P + 6))
            a.e('v_cndmask_b32 v%d, v%d, 0, vcc' % (P + 7, P + 7))
            a.e('buffer_store_dwordx4 %s, v%d, %s, s%d offen' % (vr(P, 4), vST, sr(SWS, 4), sT))
            a.e('buffer_store_dwordx4 %s, v%d, %s, s%d offen offset:1024' % (vr(P + 4, 4), vST, sr(SWS, 4), sT))

    main_loop('B', [SW1, SW1, SLX, SW3, SW3], [64 * 3584] * 5, prep_issue, None, prep_finish)
    TMP = WF[0]
    a.e('s_lshl_b32 s%d, s%d, 3' % (sT3, sRB))
    a.e('s_lshl_b32 s3, s%d, 1' % sW)
    a.e('s_add_u32 s%d, s%d, s3' % (sT3, sT3))
    a.e('s_mul_i32 s3, s%d, 112' % sT3)
    a.e('s_mul_i32 s%d, s%d, 5' % (sT, sC))
    a.e('s_add_u32 s3, s3, s%d' % sT)
    a.e('s_add_u32 s3, s3, 32')
    a.e('s_lshl_b32 s3, s3, 10')
    a.e('s_add_u32 s3, s3, %d' % H_OFF)
    nst = 0
    for r in range(2):
        for m in range(5):
            o = 36 + 4 * (nst % 4)
            silu_mul(a, accb(m, r), TMP, o, sCON)
            a.e('buffer_store_dwordx4 %s, v%d, %s, s3 offen' % (vr(o, 4), vST, sr(SWS, 4)))
            a.e('s_add_u32 s3, s3, %d' % (1024 if m < 4 else (112 - 4) * 1024))
            nst += 1
    stamp(a, 9, vSTAMP)
    stamp(a, 11, vSTAMP, real=True)
    stamp_store(a, vSTAMP, SWS, sW8, 8, STAMP_OFF, 8)
    a.lab('K1_END')
    a.e('s_endpgm')
    return a.final()


def gen_k2():
    a = Asm()
    a.sp = 36
    SWS, SOUT = 8, 12
    sW, sRB, sCB, sT, sT2 = 16, 17, 18, 19, 20
    sH = [24, 25]
    sW2 = [26, 27]
    sKVT, sPQ, sWO = 28, [29, 30], [31, 32]
    vST = 1
    vG = [2, 4]
    vOMG = [6, 8]
    vSTAMP = 15
    DF = int(os.environ.get('DF', '10'))
    FB = 16
    HB = FB + 64
    OB = HB + 40
    OP = OB + 16
    TM = OP + 8
    BB = TM + 8
    NV = BB + 64
    accA = lambda rt, nt: vr(FB + 16 * (2 * rt + nt), 16)
    accB = lambda rt, nt: vr(BB + 16 * (2 * rt + nt), 16)

    a.lab('k2_kernel')
    SDBG = 40
    vFLAG = 14
    a.e('s_cmp_ge_u32 s2, 240')
    a.e('s_cbranch_scc1 K2_END')
    a.e('s_load_dwordx4 s[4:7], s[0:1], 64')
    a.e('s_load_dwordx2 s[44:45], s[0:1], 80')
    a.e('s_cmp_lt_u32 s2, 16')
    a.e('s_cbranch_scc1 K2_HELPER')
    a.e('s_sub_u32 s2, s2, 16')
    a.e('v_lshrrev_b32 v8, 6, v0')
    a.e('v_and_b32 v0, 63, v0')
    a.e('v_readfirstlane_b32 s%d, v8' % sW)
    a.e('v_lshlrev_b32 v%d, 4, v0' % vST)
    a.e('s_and_b32 s3, s2, 7')
    a.e('s_lshr_b32 s%d, s2, 3' % sT)
    a.e('s_mul_i32 s%d, s%d, 9363' % (sT2, sT))
    a.e('s_lshr_b32 s%d, s%d, 16' % (sT2, sT2))
    a.e('s_mul_i32 s%d, s%d, 7' % (sCB, sT2))
    a.e('s_sub_u32 s%d, s%d, s%d' % (sCB, sT, sCB))
    a.e('s_lshl_b32 s3, s3, 2')
    a.e('s_add_u32 s%d, s3, s%d' % (sRB, sT2))
    if MAP == 'bad':
        a.e('s_mul_i32 s%d, s2, 9363' % sRB)
        a.e('s_lshr_b32 s%d, s%d, 16' % (sRB, sRB))
        a.e('s_mul_i32 s%d, s%d, 7' % (sCB, sRB))
        a.e('s_sub_u32 s%d, s2, s%d' % (sCB, sCB))
    sG, sD = 33, 34
    if ROT:
        a.e('s_lshl_b32 s3, s%d, 1' % sT2)
        a.e('s_add_u32 s3, s3, s%d' % sCB)
        a.e('s_sub_u32 s%d, s3, 7' % sG)
        a.e('s_cmp_ge_u32 s3, 7')
        a.e('s_cselect_b32 s%d, s%d, s3' % (sG, sG))
    else:
        a.e('s_mov_b32 s%d, 0' % sG)
    a.e('s_mul_i32 s%d, s%d, %d' % (sT, sW, 28 * 1024))
    a.e('s_lshl_b32 s3, s%d, 12' % sG)
    a.e('s_add_u32 s%d, s%d, s3' % (sT, sT))
    a.e('s_mul_i32 s%d, s%d, %d' % (sH[0], sRB, 2 * 112 * 1024))
    a.e('s_add_u32 s%d, s%d, s%d' % (sH[0], sH[0], sT))
    a.e('s_add_u32 s%d, s%d, %d' % (sH[0], sH[0], H_OFF))
    a.e('s_add_u32 s%d, s%d, %d' % (sH[1], sH[0], 112 * 1024))
    a.e('s_mul_i32 s%d, s%d, %d' % (sW2[0], sCB, 2 * 112 * 1024))
    a.e('s_add_u32 s%d, s%d, s%d' % (sW2[0], sW2[0], sT))
    a.e('s_add_u32 s%d, s%d, %d' % (sW2[0], sW2[0], W2P_OFF))
    a.e('s_add_u32 s%d, s%d, %d' % (sW2[1], sW2[0], 112 * 1024))
    a.e('s_lshl_b32 s%d, s%d, 13' % (sT, sW))
    a.e('s_add_u32 s%d, s%d, %d' % (sKVT, sT, KVT_OFF))
    a.e('s_lshl_b32 s%d, s%d, 16' % (sPQ[0], sRB))
    a.e('s_add_u32 s%d, s%d, s%d' % (sPQ[0], sPQ[0], sT))
    a.e('s_add_u32 s%d, s%d, %d' % (sPQ[0], sPQ[0], PQ_OFF))
    a.e('s_add_u32 s%d, s%d, %d' % (sPQ[1], sPQ[0], 32768))
    a.e('s_lshl_b32 s%d, s%d, 16' % (sWO[0], sCB))
    a.e('s_add_u32 s%d, s%d, s%d' % (sWO[0], sWO[0], sT))
    a.e('s_add_u32 s%d, s%d, %d' % (sWO[0], sWO[0], WOP_OFF))
    a.e('s_add_u32 s%d, s%d, %d' % (sWO[1], sWO[0], 32768))
    a.e('v_and_b32 v8, 31, v0')
    a.e('v_lshlrev_b32 v8, 2, v8')
    a.e('s_lshl_b32 s%d, s%d, 8' % (sT, sRB))
    a.e('s_add_u32 s%d, s%d, %d' % (sT, sT, G_OFF))
    a.e('s_waitcnt lgkmcnt(0)')
    srd(a, SWS, 44, WS_SRD)
    srd(a, SOUT, 4, SZ_OUT)
    srd(a, SDBG, 6, 256)
    stamp(a, 0, vSTAMP)
    stamp(a, 10, vSTAMP, real=True)
    issued = []

    def ld(dst, sbase, off, tag, agpr=False):
        d = ('a[%d:%d]' % (dst, dst + 3)) if agpr else vr(dst, 4)
        a.e('buffer_load_dwordx4 %s, v%d, %s, s%d offen offset:%d%s' % (d, vST, sr(SWS, 4), sbase, off, ' sc1' if sbase == sKVT else ''))
        issued.append(tag)

    ar = lambda i: 'a[%d:%d]' % (i, i + 3)

    a.e('buffer_load_dword v%d, v8, %s, s%d offen' % (vG[0], sr(SWS, 4), sT))
    a.e('buffer_load_dword v%d, v8, %s, s%d offen offset:128' % (vG[1], sr(SWS, 4), sT))
    issued += ['g', 'g']

    items = []
    hpos = {16: 0, 20: 1, 24: 2, 27: 3}
    for f in range(28):
        items.append(('F', f))
        if f in hpos:
            items.append(('H', hpos[f]))
    FLAG_ISSUE, FLAG_CHECK = 9, 13

    def issue(it):
        kind, idx = it
        if kind == 'F':
            b = (idx % DF) * 16
            off = (idx % 4) * 1024
            ld(b, sH[0], off, it, True)
            ld(b + 4, sH[1], off, it, True)
            ld(b + 8, sW2[0], off, it, True)
            ld(b + 12, sW2[1], off, it, True)
            if idx % 4 == 3:
                a.e('s_add_u32 s%d, s%d, 1' % (sG, sG))
                a.e('s_cmp_eq_u32 s%d, 7' % sG)
                a.e('s_cselect_b32 s%d, 0, s%d' % (sG, sG))
                a.e('s_mov_b32 s%d, 4096' % sD)
                a.e('s_cselect_b32 s%d, 0x%x, s%d' % (sD, (-6 * 4096) & 0xffffffff, sD))
                for s in sH + sW2:
                    a.e('s_add_u32 s%d, s%d, s%d' % (s, s, sD))
        else:
            b = HB
            off = (idx % 2) * 2048
            for j in range(2):
                ld(b + 4 * j, sKVT, off + 1024 * j, it)
            for rt in range(2):
                for j in range(2):
                    ld(b + 8 + 8 * rt + 4 * j, sPQ[rt], off + 1024 * j, it)
            for nt in range(2):
                for j in range(2):
                    ld(b + 24 + 8 * nt + 4 * j, sWO[nt], off + 1024 * j, it)
            if idx % 2 == 1:
                for s in [sKVT] + sPQ + sWO:
                    a.e('s_add_u32 s%d, s%d, 4096' % (s, s))

    def wait_for(it):
        last = max(i for i, t in enumerate(issued) if t == it)
        a.e('s_waitcnt vmcnt(%d)' % min(63, len(issued) - 1 - last))

    firstB = [True]
    firstA = [True]

    def compute(it, extra):
        start = len(a.lines)
        compute_body(it)
        body = a.lines[start:]
        del a.lines[start:]
        groups = []
        for ln in extra:
            if 'buffer_load' in ln or not groups:
                groups.append([ln])
            else:
                groups[-1].append(ln)
        nm = sum('v_mfma' in ln for ln in body)
        per = -(-len(groups) // nm) if groups else 0
        for ln in body:
            a.lines.append(ln)
            if 'v_mfma' in ln:
                for g in groups[:per]:
                    a.lines.extend(g)
                groups = groups[per:]
        for g in groups:
            a.lines.extend(g)

    def compute_body(it):
        kind, idx = it
        if kind == 'F':
            b = (idx % DF) * 16
            for rt in range(2):
                for nt in range(2):
                    a.e('v_mfma_f32_32x32x16_bf16 %s, %s, %s, %s' % (accB(rt, nt), ar(b + 8 + 4 * nt), ar(b + 4 * rt),
                                                                   '0' if firstB[0] else accB(rt, nt)))
            firstB[0] = False
        else:
            b = HB
            for rt in range(2):
                a.e('v_mfma_f32_32x32x16_bf16 %s, %s, %s, 0' % (vr(OB, 16), vr(b, 4), vr(b + 8 + 8 * rt, 4)))
                a.e('v_mfma_f32_32x32x16_bf16 %s, %s, %s, %s' % (vr(OB, 16), vr(b + 4, 4), vr(b + 8 + 8 * rt + 4, 4), vr(OB, 16)))
                a.e('v_add_f32 v%d, %s, v%d' % (TM, EPS, OB + 12))
                a.e('v_mov_b32 v%d, v%d' % (TM + 1, TM))
                a.e('v_permlane32_swap_b32 v%d, v%d' % (TM, TM + 1))
                a.e('v_rcp_f32 v%d, v%d' % (TM, TM + 1))
                a.e('v_mul_f32 v%d, v%d, v%d' % (TM, TM, vG[rt]))
                a.e('v_mov_b32 v%d, v%d' % (TM + 1, TM))
                for i in range(8):
                    a.e('v_pk_mul_f32 %s, %s, %s' % (vr(OB + 2 * i, 2), vr(OB + 2 * i, 2), vr(TM, 2)))
                for i in range(8):
                    a.e('v_cvt_pk_bf16_f32 v%d, v%d, v%d' % (OP + i, OB + 2 * i, OB + 2 * i + 1))
                for j in range(2):
                    for nt in range(2):
                        a.e('v_mfma_f32_32x32x16_bf16 %s, %s, %s, %s' % (
                            accA(rt, nt), vr(b + 24 + 8 * nt + 4 * j, 4), vr(OP + 4 * j, 4),
                            '0' if (firstA[0] and j == 0) else accA(rt, nt)))
            firstA[0] = False

    nxt = 0

    def can_issue(k, cur):
        kind, idx = items[k]
        if kind == 'F':
            if idx < DF:
                return True
            return items.index(('F', idx - DF)) < cur
        else:
            if idx < 1:
                return cur > FLAG_CHECK
            return items.index(('H', idx - 1)) < cur

    order = list(range(len(items)))
    pending = list(range(len(items)))
    for cur in range(len(items)):
        if cur > 0:
            wait_for(items[cur])
        cap0 = len(a.lines)
        progressed = True
        while progressed:
            progressed = False
            for k in pending:
                kind, idx = items[k]
                if can_issue(k, cur) and (k <= cur + DF + 2):
                    issue(items[k])
                    pending.remove(k)
                    progressed = True
                    break
                if kind == 'F':
                    break
        extra = a.lines[cap0:]
        del a.lines[cap0:]
        if cur == 0:
            a.lines.extend(extra)
            extra = []
            wait_for(items[cur])
        compute(items[cur], extra)
        if cur == FLAG_ISSUE:
            a.e('v_mov_b32 v13, 0')
            a.e('buffer_load_dword v%d, v13, %s, 0 offen sc1' % (vFLAG, sr(SDBG, 4)))
            issued.append('flag')
        if cur == FLAG_CHECK:
            wait_for('flag')
            a.lab('K2_POLL')
            a.e('v_readfirstlane_b32 s3, v%d' % vFLAG)
            a.e('s_cmp_ge_u32 s3, 16')
            a.e('s_cbranch_scc1 K2_READY')
            a.e('s_sleep 2')
            a.e('buffer_load_dword v%d, v13, %s, 0 offen sc1' % (vFLAG, sr(SDBG, 4)))
            a.e('s_waitcnt vmcnt(0)')
            a.e('s_branch K2_POLL')
            a.lab('K2_READY')
        if cur % 8 == 0:
            stamp(a, 1 + cur // 8, vSTAMP)
    stamp(a, 5, vSTAMP)
    for rt in range(2):
        a.e('v_sub_f32 v%d, 1.0, v%d' % (vOMG[rt], vG[rt]))
        a.e('v_cvt_pk_bf16_f32 v%d, v%d, v%d' % (vOMG[rt], vOMG[rt], vOMG[rt]))
        a.e('v_and_b32 v%d, 0xffff0000, v%d' % (vOMG[rt] + 1, vOMG[rt]))
        a.e('v_mov_b32 v%d, v%d' % (vOMG[rt], vOMG[rt] + 1))
        a.e('v_mov_b32 v%d, v%d' % (vG[rt] + 1, vG[rt]))
    a.e('s_lshl_b32 s%d, s%d, 12' % (sT, sW))
    a.e('v_add_u32 v10, s%d, v%d' % (sT, vST))
    R = BB
    for t in range(4):
        rt = t >> 1
        for i in range(8):
            a.e('v_pk_fma_f32 %s, %s, %s, %s' % (vr(R + 16 * t + 2 * i, 2), vr(R + 16 * t + 2 * i, 2), vr(vOMG[rt], 2), vr(FB + 16 * t + 2 * i, 2)))
        for q in range(4):
            a.e('ds_write_b128 v10, %s offset:%d' % (vr(R + 16 * t + 4 * q, 4), 16384 * t + 1024 * q))
    a.e('s_waitcnt lgkmcnt(0)')
    a.e('s_barrier')
    stamp(a, 6, vSTAMP)
    a.e('s_lshl_b32 s%d, s%d, 14' % (sT, sW))
    a.e('v_add_u32 v10, s%d, v%d' % (sT, vST))
    for p in range(4):
        for q in range(4):
            a.e('ds_read_b128 %s, v10 offset:%d' % (vr(R + 16 * p + 4 * q, 4), 4096 * p + 1024 * q))
    a.e('s_lshr_b32 s%d, s%d, 1' % (sT, sW))
    a.e('s_lshl_b32 s%d, s%d, 1' % (sT2, sRB))
    a.e('s_add_u32 s%d, s%d, s%d' % (sT, sT, sT2))
    a.e('s_mul_i32 s%d, s%d, %d' % (sT, sT, 32 * 896))
    a.e('s_and_b32 s%d, s%d, 1' % (sT2, sW))
    a.e('s_lshl_b32 s%d, s%d, 6' % (sT2, sT2))
    a.e('s_add_u32 s%d, s%d, s%d' % (sT, sT, sT2))
    a.e('s_lshl_b32 s%d, s%d, 7' % (sT2, sCB))
    a.e('s_add_u32 s%d, s%d, s%d' % (sT, sT, sT2))
    a.e('v_and_b32 v9, 31, v0')
    a.e('v_mul_u32_u24 v9, 896, v9')
    a.e('v_lshrrev_b32 v10, 5, v0')
    a.e('v_lshl_add_u32 v9, v10, 5, v9')
    a.e('s_waitcnt lgkmcnt(0)')
    for i in range(8):
        a.e('v_pk_add_f32 %s, %s, %s' % (vr(R + 2 * i, 2), vr(R + 2 * i, 2), vr(R + 16 + 2 * i, 2)))
        a.e('v_pk_add_f32 %s, %s, %s' % (vr(R + 32 + 2 * i, 2), vr(R + 32 + 2 * i, 2), vr(R + 48 + 2 * i, 2)))
    for i in range(8):
        a.e('v_pk_add_f32 %s, %s, %s' % (vr(R + 2 * i, 2), vr(R + 2 * i, 2), vr(R + 32 + 2 * i, 2)))
    for i in range(8):
        a.e('v_cvt_pk_bf16_f32 v%d, v%d, v%d' % (HB + i, R + 2 * i, R + 2 * i + 1))
    a.e('buffer_store_dwordx4 %s, v9, %s, s%d offen' % (vr(HB, 4), sr(SOUT, 4), sT))
    a.e('buffer_store_dwordx4 %s, v9, %s, s%d offen offset:16' % (vr(HB + 4, 4), sr(SOUT, 4), sT))
    stamp(a, 9, vSTAMP)
    stamp(a, 11, vSTAMP, real=True)
    stamp_store(a, vSTAMP, SWS, sW, 4, STAMP_OFF + (1 << 20), 8)
    a.lab('K2_END')
    a.e('s_endpgm')
    a.lab('K2_HELPER')
    a.e('v_lshlrev_b32 v1, 4, v0')
    a.e('s_lshl_b32 s3, s2, 15')
    a.e('s_add_u32 s3, s3, %d' % KVP_OFF)
    a.e('s_waitcnt lgkmcnt(0)')
    srd(a, SWS, 44, WS_SRD)
    srd(a, SDBG, 6, 256)
    for p_ in range(8):
        a.e('buffer_load_dwordx4 %s, v1, %s, s3 offen' % (vr(4 + 4 * p_, 4), sr(SWS, 4)))
        a.e('s_add_u32 s3, s3, 4096')
    a.e('v_cmp_le_u32 vcc, 224, v0')
    a.e('v_lshrrev_b32 v2, 7, v0')
    a.e('v_lshlrev_b32 v2, 10, v2')
    a.e('v_and_b32 v3, 63, v0')
    a.e('v_lshl_add_u32 v2, v3, 4, v2')
    a.e('v_bfe_u32 v3, v0, 6, 1')
    a.e('v_lshl_add_u32 v2, v3, 3, v2')
    a.e('s_lshl_b32 s3, s2, 11')
    a.e('s_add_u32 s3, s3, %d' % KVT_OFF)
    for p_ in range(1, 8):
        a.e('s_waitcnt vmcnt(%d)' % (7 - p_))
        a.e('v_pk_add_f32 v[4:5], v[4:5], %s' % vr(4 + 4 * p_, 2))
        a.e('v_pk_add_f32 v[6:7], v[6:7], %s' % vr(6 + 4 * p_, 2))
    for k in range(4):
        a.e('v_cndmask_b32 v%d, v%d, 0, vcc' % (4 + k, 4 + k))
    a.e('v_cvt_pk_bf16_f32 v8, v4, v5')
    a.e('v_cvt_pk_bf16_f32 v9, v6, v7')
    a.e('buffer_store_dwordx2 v[8:9], v2, %s, s3 offen sc1' % sr(SWS, 4))
    a.e('s_waitcnt vmcnt(0)')
    a.e('s_barrier')
    a.e('v_cmp_eq_u32 vcc, 0, v0')
    a.e('s_and_saveexec_b64 s[20:21], vcc')
    a.e('s_cbranch_execz K2_HEND')
    a.e('v_mov_b32 v10, 1')
    a.e('v_mov_b32 v11, 0')
    a.e('buffer_atomic_add v10, v11, %s, 0 offen' % sr(SDBG, 4))
    a.lab('K2_HEND')
    a.e('s_endpgm')
    return a.final(), NV


def kd(name, accoff, nfv, nsg):
    return '''.amdhsa_kernel %s
  .amdhsa_next_free_vgpr %d
  .amdhsa_next_free_sgpr %d
  .amdhsa_accum_offset %d
  .amdhsa_group_segment_fixed_size 0
  .amdhsa_kernarg_size 88
  .amdhsa_user_sgpr_count 2
  .amdhsa_user_sgpr_kernarg_segment_ptr 1
  .amdhsa_system_sgpr_workgroup_id_x 1
  .amdhsa_float_denorm_mode_32 3
.end_amdhsa_kernel
''' % (name, nfv, nsg, accoff)


def main(out):
    k1 = gen_k1()
    pol = os.environ.get('STPOL', 'sc1')
    if pol:
        k1 = '\n'.join((ln + ' ' + pol) if ('buffer_store_dwordx4' in ln and 'sc1' not in ln) else ln for ln in k1.split('\n'))
    k2, nv2 = gen_k2()
    pol2 = os.environ.get('STPOL2', '')
    if pol2:
        k2 = '\n'.join((ln + ' ' + pol2) if ('buffer_store_dwordx4' in ln and 'sc1' not in ln) else ln for ln in k2.split('\n'))
    acc2 = (nv2 + 3) // 4 * 4
    s = '; generated by gen/gen14.py\n'
    s += '; @launch kernel=k1_kernel grid=(256,1,1) block=(512,1,1) lds=%d\n' % LDS_K1
    s += '; @launch kernel=k2_kernel grid=(240,1,1) block=(256,1,1) lds=65536\n'
    s += '.amdgcn_target "amdgcn-amd-amdhsa--gfx950"\n.text\n'
    for nm, body in (('k1_kernel', k1), ('k2_kernel', k2)):
        s += '.globl %s\n.p2align 8\n.type %s,@function\n' % (nm, nm) + body
    s += '.section .rodata,"a"\n.p2align 6\n'
    s += kd('k1_kernel', 256, 256, 102)
    s += '.p2align 6\n' + kd('k2_kernel', acc2, acc2 + 256, 48)
    open(out, 'w').write(s)


if __name__ == '__main__':
    main(sys.argv[1] if len(sys.argv) > 1 else 'cdna_kernels/%s.s' % NAME)
```

```python
import sys, os
sys.path.insert(0, 'gen')
from asmlib import Asm

NAME = 'gated_mix__linear_attn_block__glu_gated_swiglu__prompt'
PQ_OFF = 0
H_OFF = PQ_OFF + 64 * 16 * 2 * 1024
KVP_OFF = H_OFF + 64 * 112 * 1024
KVT_OFF = KVP_OFF + 16 * 8 * 4096
W2P_OFF = KVT_OFF + 16 * 2 * 1024
WOP_OFF = W2P_OFF + 14 * 112 * 1024
G_OFF = WOP_OFF + 14 * 16 * 2 * 1024
WS_BYTES = G_OFF + 2048 * 4
WS_SRD = 32 << 20

SZ_X = 2048 * 448 * 2
SZ_WQKV = 448 * 1344 * 2
SZ_WO = 448 * 448 * 2
SZ_W1 = 448 * 1792 * 2
SZ_W2 = 1792 * 448 * 2
SZ_GW = 448 * 2
SZ_OUT = 2048 * 448 * 2

STAGE = 53376
XREG = 32768
WOFF_A = [0, 4096, 8192, 12288, 16384 + 32]
WOFF_B = [0, 10368]
GWX = 3 * STAGE
LDS_K1 = 163840
LOG2E = '0x3fb8aa3b'
NLOG2E = '0xbfb8aa3b'
EPS = '0x358637bd'

STAMPS = os.environ.get('STAMPS', '0') == '1'
STAMP_OFF = 16 << 20
PREFETCH = os.environ.get('PREFETCH', '0') == '1'
ROT = os.environ.get('ROT', '0') == '1'
EARLY = os.environ.get('EARLY', '0') == '1'
PF2 = os.environ.get('PF2', '0') == '1'
MAP = os.environ.get('MAP', 'blk')


def stamp(a, k, vreg, sp=None, real=False):
    if not STAMPS:
        return
    sp = a.sp
    a.e('%s s[%d:%d]' % ('s_memrealtime' if real else 's_memtime', sp, sp + 1))
    a.e('s_waitcnt lgkmcnt(0)')
    a.e('v_writelane_b32 v%d, s%d, %d' % (vreg, sp, k))


def stamp_store(a, vreg, srdws, wave_sgpr, nwaves, base, tmpv, sp=None):
    if not STAMPS:
        return
    sp = a.sp
    a.e('s_mul_i32 s%d, s2, %d' % (sp, nwaves))
    a.e('s_add_u32 s%d, s%d, s%d' % (sp, sp, wave_sgpr))
    a.e('s_lshl_b32 s%d, s%d, 8' % (sp, sp))
    a.e('s_add_u32 s%d, s%d, %d' % (sp, sp, base))
    a.e('v_lshlrev_b32 v%d, 2, v0' % tmpv)
    a.e('buffer_store_dword v%d, v%d, s[%d:%d], s%d offen' % (vreg, tmpv, srdws, srdws + 3, sp))


def v(i):
    return 'v%d' % i


def vr(i, n):
    return 'v[%d:%d]' % (i, i + n - 1)


def sr(i, n):
    return 's[%d:%d]' % (i, i + n - 1)


def srd(a, d, lo, size):
    a.e('s_mov_b32 s%d, s%d' % (d, lo))
    a.e('s_and_b32 s%d, s%d, 0xffff' % (d + 1, lo + 1))
    a.e('s_mov_b32 s%d, 0x%x' % (d + 2, size))
    a.e('s_mov_b32 s%d, 0x00020000' % (d + 3))


def phi16(a, R, T, O, sC):
    for i in range(8):
        a.e('v_pk_mul_f32 %s, %s, %s' % (vr(T + 2 * i, 2), vr(R + 2 * i, 2), sr(sC, 2)))
    for i in range(16):
        a.e('v_exp_f32 v%d, v%d clamp' % (T + i, T + i))
    for i in range(16):
        a.e('v_max_f32 v%d, 0, v%d' % (R + i, R + i))
    for i in range(8):
        a.e('v_pk_add_f32 %s, %s, %s' % (vr(R + 2 * i, 2), vr(R + 2 * i, 2), sr(sC + 2, 2)))
    for i in range(8):
        a.e('v_pk_add_f32 %s, %s, %s' % (vr(R + 2 * i, 2), vr(R + 2 * i, 2), vr(T + 2 * i, 2)))
    for i in range(8):
        a.e('v_cvt_pk_bf16_f32 v%d, v%d, v%d' % (O + i, R + 2 * i, R + 2 * i + 1))


def silu_mul(a, R, T, O, sC):
    for i in range(4):
        a.e('v_pk_mul_f32 %s, %s, %s' % (vr(T + 2 * i, 2), vr(R + 2 * i, 2), sr(sC + 4, 2)))
    for i in range(8):
        a.e('v_exp_f32 v%d, v%d' % (T + i, T + i))
    for i in range(4):
        a.e('v_pk_mul_f32 %s, %s, %s' % (vr(R + 2 * i, 2), vr(R + 2 * i, 2), vr(R + 8 + 2 * i, 2)))
    for i in range(4):
        a.e('v_pk_add_f32 %s, %s, %s' % (vr(T + 2 * i, 2), vr(T + 2 * i, 2), sr(sC + 6, 2)))
    for i in range(8):
        a.e('v_rcp_f32 v%d, v%d' % (T + i, T + i))
    for i in range(4):
        a.e('v_pk_mul_f32 %s, %s, %s' % (vr(R + 2 * i, 2), vr(R + 2 * i, 2), vr(T + 2 * i, 2)))
    for i in range(4):
        a.e('v_cvt_pk_bf16_f32 v%d, v%d, v%d' % (O + i, R + 2 * i, R + 2 * i + 1))


def consts(a, sC):
    for k, val in enumerate([LOG2E, LOG2E, EPS, EPS, NLOG2E, NLOG2E, '0x3f800000', '0x3f800000']):
        a.e('s_mov_b32 s%d, %s' % (sC + k, val))


def gen_k1():
    a = Asm()
    a.sp = 100
    SX, SWQKV, SW1, SW3, SWS, SW2, SWO, SGW, SDBG = 24, 28, 32, 36, 40, 44, 48, 52, 56
    SLX = 60
    SOFF = [64, 65, 66, 67, 68]
    DEST = [69, 70, 71, 72, 73]
    sW, sRB, sC, sCB, sXD, sT, sT2, sT3 = 74, 75, 76, 77, 78, 79, 80, 81
    sCON = 84
    sEX = 92
    sW8 = 82
    sCH, sXK, sD1, sD2 = 83, 94, 95, 23
    sGWM = 22
    ACC = 96
    WF = [16, 36]
    XF = [56, 64]
    vTID = 1
    vXO = [2, 3]
    vWO = [4, 5, 6, 7, 72]
    vXA = [73, 74, 75, 76]
    vKV, vGU, vQ0, vQ1, vQI, vC128, vST = 77, 78, 79, 80, 81, 82, 83
    vSTAMP = 95
    accb = lambda t, r: ACC + 16 * (2 * t + r)

    a.lab('k1_kernel')
    a.e('s_cmp_ge_u32 s2, 256')
    a.e('s_cbranch_scc1 K1_END')
    a.e('s_load_dwordx4 s[4:7], s[0:1], 0')
    a.e('s_load_dwordx2 s[8:9], s[0:1], 16')
    a.e('s_load_dwordx4 s[12:15], s[0:1], 32')
    a.e('s_load_dwordx4 s[16:19], s[0:1], 48')
    a.e('s_load_dwordx4 s[96:99], s[0:1], 72')
    a.e('v_mov_b32 v%d, v0' % vTID)
    a.e('v_lshrrev_b32 v8, 6, v0')
    a.e('v_and_b32 v0, 63, v0')
    a.e('v_readfirstlane_b32 s%d, v8' % sW8)
    if MAP == 'old':
        a.e('s_and_b32 s3, s2, 7')
        a.e('s_lshr_b32 s%d, s2, 3' % sT)
        a.e('s_and_b32 s%d, s%d, 3' % (sT2, sT))
        a.e('s_lshl_b32 s3, s3, 2')
        a.e('s_add_u32 s%d, s3, s%d' % (sCB, sT2))
        a.e('s_lshr_b32 s%d, s%d, 2' % (sRB, sT))
    elif MAP == 'bad':
        a.e('s_and_b32 s%d, s2, 7' % sRB)
        a.e('s_lshr_b32 s%d, s2, 3' % sCB)
    else:
        a.e('s_lshr_b32 s%d, s2, 6' % sT)
        a.e('s_add_u32 s3, s2, s%d' % sT)
        a.e('s_and_b32 s3, s3, 7')
        a.e('s_lshl_b32 s%d, s%d, 3' % (sT2, sT))
        a.e('s_add_u32 s%d, s%d, s3' % (sCB, sT2))
        a.e('s_lshr_b32 s%d, s2, 3' % sRB)
        a.e('s_and_b32 s%d, s%d, 7' % (sRB, sRB))
    a.e('s_lshr_b32 s%d, s%d, 1' % (sC, sCB))
    a.e('s_and_b32 s%d, s%d, 3' % (sW, sW8))
    if ROT:
        a.e('s_and_b32 s3, s%d, 3' % sCB)
        a.e('s_lshl_b32 s3, s3, 1')
        a.e('s_add_u32 s3, s3, s%d' % sRB)
        a.e('s_sub_u32 s%d, s3, 7' % sCH)
        a.e('s_cmp_ge_u32 s3, 7')
        a.e('s_cselect_b32 s%d, s%d, s3' % (sCH, sCH))
    else:
        a.e('s_mov_b32 s%d, 0' % sCH)
    a.e('s_lshl_b32 s%d, s%d, 7' % (sXK, sCH))
    a.e('v_and_b32 v%d, 255, v%d' % (vTID, vTID))
    consts(a, sCON)
    a.e('s_lshl_b32 s%d, s%d, 8' % (sT, sRB))
    a.e('s_lshl_b32 s%d, s%d, 6' % (sT2, sW))
    a.e('s_add_u32 s%d, s%d, s%d' % (sT, sT, sT2))
    a.e('v_lshrrev_b32 v8, 3, v0')
    a.e('v_add_u32 v8, s%d, v8' % sT)
    a.e('v_mul_u32_u24 v8, 896, v8')
    a.e('v_and_b32 v9, 7, v0')
    a.e('v_lshrrev_b32 v10, 4, v0')
    a.e('v_xor_b32 v11, v9, v10')
    a.e('v_lshl_add_u32 v%d, v11, 4, v8' % vXO[0])
    a.e('v_xor_b32 v11, 4, v11')
    a.e('v_lshl_add_u32 v%d, v11, 4, v8' % vXO[1])
    a.e('s_lshl_b32 s%d, s%d, 13' % (sXD, sW))
    a.e('v_and_b32 v8, 31, v0')
    a.e('v_lshrrev_b32 v9, 5, v0')
    a.e('v_bfe_u32 v10, v8, 1, 3')
    a.e('v_lshlrev_b32 v11, 7, v8')
    a.e('v_add_u32 v11, s%d, v11' % sXD)
    for ks in range(4):
        a.e('v_add_u32 v12, %d, v9' % (2 * ks))
        a.e('v_xor_b32 v12, v12, v10')
        a.e('v_lshl_add_u32 v%d, v12, 4, v11' % vXA[ks])
    a.e('v_lshlrev_b32 v%d, 4, v0' % vST)
    a.e('v_bfe_u32 v10, v0, 4, 1')
    a.e('v_bfe_u32 v11, v0, 2, 2')
    a.e('v_and_b32 v12, 3, v0')
    a.e('v_lshl_add_u32 v13, v9, 3, v11')
    a.e('v_and_b32 v14, 1, v12')
    a.e('v_lshlrev_b32 v14, 1, v14')
    a.e('v_lshrrev_b32 v15, 1, v12')
    a.e('v_add_u32 v14, v14, v15')
    a.e('v_lshlrev_b32 v14, 3, v14')
    a.e('s_waitcnt lgkmcnt(0)')
    srd(a, SX, 4, SZ_X)
    srd(a, SWQKV, 6, SZ_WQKV)
    srd(a, SW1, 12, SZ_W1)
    srd(a, SW3, 14, SZ_W1)
    srd(a, SWS, 98, WS_SRD)
    srd(a, SW2, 16, SZ_W2)
    srd(a, SWO, 8, SZ_WO)
    srd(a, SGW, 18, SZ_GW)
    srd(a, SDBG, 96, 256)
    stamp(a, 0, vSTAMP)
    stamp(a, 10, vSTAMP, real=True)
    a.e('s_and_b32 s%d, s%d, 1' % (sT, sCB))
    a.e('s_cmp_eq_u32 s%d, 1' % sT)
    a.e('s_cbranch_scc1 K1_TYPEB')

    sSB, sXS, sLI = 10, 11, 12

    def dma_chunk(i, slot_srd, slot_step):
        a.e('s_add_u32 s%d, s%d, s%d' % (sXS, sXD, sSB))
        for q in range(8):
            a.e('s_add_u32 m0, s%d, %d' % (sXS, q * 1024))
            a.e('s_add_u32 s%d, s%d, %d' % (sT, sXK, q * 7168))
            a.e('buffer_load_dwordx4 v%d, %s, s%d offen lds' % (vXO[q & 1], sr(SX, 4), sT))
        a.e('s_add_u32 s%d, s%d, 128' % (sXK, sXK))
        for j in range(5):
            a.e('s_add_u32 m0, s%d, s%d' % (DEST[j], sSB))
            a.e('s_nop 0')
            a.e('buffer_load_dwordx4 v%d, %s, s%d offen lds' % (vWO[j], sr(slot_srd[j], 4), SOFF[j]))
            a.e('s_add_u32 s%d, s%d, %d' % (SOFF[j], SOFF[j], slot_step[j]))
        a.e('s_add_u32 s%d, s%d, %d' % (sSB, sSB, STAGE))
        a.e('s_cmp_eq_u32 s%d, %d' % (sSB, 3 * STAGE))
        a.e('s_cselect_b32 s%d, 0, s%d' % (sSB, sSB))

    def main_loop(typ, slot_srd, slot_step, extra_at_b5=None, pre_wait=None, loader_tail=None):
        def reads(n):
            i, ks = divmod(n, 4)
            st = n & 1
            L = []
            L.append('ds_read_b128 %s, v%d' % (vr(XF[st], 4), vXA[ks]))
            L.append('ds_read_b128 %s, v%d offset:4096' % (vr(XF[st] + 4, 4), vXA[ks]))
            for t in range(5):
                for rd in range(2):
                    dst = vr(WF[st] + 4 * t + 2 * rd, 2)
                    if typ == 'A':
                        if t == 0:
                            L.append('ds_read_b64_tr_b16 %s, v%d' % (dst, vQ0 if rd == 0 else vQ1))
                        elif t in (1, 2):
                            L.append('ds_read_b64_tr_b16 %s, v%d offset:%d' % (dst, vKV, 4096 * t + ks * 1024 + rd * 256))
                        else:
                            L.append('ds_read_b64_tr_b16 %s, v%d offset:%d' % (dst, vGU, 32 * (t - 3) + ks * 1024 + rd * 256))
                    else:
                        L.append('ds_read_b64_tr_b16 %s, v%d offset:%d' % (dst, vGU, 32 * t + ks * 2560 + rd * 640))
            return L

        def addr_adv(n):
            i, ks = divmod(n, 4)
            if ks == 0:
                delta = STAGE if (i % 3) != 0 else -2 * STAGE
                for r in vXA + [vGU] + ([vKV] if typ == 'A' else []):
                    a.e('v_add_u32 v%d, %d, v%d' % (r, delta, r) if delta > 0 else
                        'v_subrev_u32 v%d, %d, v%d' % (r, -delta, r))
                if typ == 'A':
                    d2 = (delta - 3 * 1024) & 0xffffffff
                    a.e('s_add_u32 s%d, s%d, 1' % (sCH, sCH))
                    a.e('s_cmp_eq_u32 s%d, 7' % sCH)
                    a.e('s_cselect_b32 s%d, 0, s%d' % (sCH, sCH))
                    a.e('s_mov_b32 s3, 128')
                    a.e('s_cselect_b32 s3, 0x%x, s3' % ((-3456) & 0xffffffff))
                    a.e('v_mov_b32 v8, 0x%x' % d2)
                    a.e('v_mov_b32 v9, s3')
                    a.e('v_cndmask_b32 v8, v8, v9, %s' % sr(sGWM, 2))
                    a.e('v_add_u32 v%d, v8, v%d' % (vQ0, vQ0))
                    a.e('v_add_u32 v%d, v8, v%d' % (vQ1, vQ1))
            elif typ == 'A':
                a.e('v_add_u32 v%d, v%d, v%d' % (vQ0, vQI, vQ0))
                a.e('v_add_u32 v%d, v%d, v%d' % (vQ1, vQI, vQ1))

        def mfma(n, t, r):
            st = n & 1
            acc = vr(accb(t, r), 16)
            wf = vr(WF[st] + 4 * t, 4)
            xf = vr(XF[st] + 4 * r, 4)
            c = acc if n > 0 else '0'
            if typ == 'A' and t in (1, 2):
                a.e('v_mfma_f32_32x32x16_bf16 %s, %s, %s, %s' % (acc, xf, wf, c))
            else:
                a.e('v_mfma_f32_32x32x16_bf16 %s, %s, %s, %s' % (acc, wf, xf, c))

        for j in range(5):
            a.e('s_mul_i32 s3, s%d, %d' % (sCH, slot_step[j]))
            a.e('s_add_u32 s%d, s%d, s3' % (SOFF[j], SOFF[j]))
        if typ == 'A':
            a.e('s_lshl_b32 s3, s%d, 9' % sCH)
            a.e('v_mov_b32 v8, s3')
            a.e('v_cndmask_b32 v8, 0, v8, %s' % sr(sGWM, 2))
            a.e('v_add_u32 v%d, v8, v%d' % (vQ0, vQ0))
            a.e('v_add_u32 v%d, v8, v%d' % (vQ1, vQ1))
        a.e('s_cmp_lt_u32 s%d, 4' % sW8)
        a.e('s_cbranch_scc1 K1%s_COMPUTE' % typ)
        outstanding = []
        a.e('s_mov_b32 s%d, 0' % sSB)
        dma_chunk(0, slot_srd, slot_step)
        outstanding.append(13)
        stamp(a, 1, vSTAMP)
        outstanding.append(0)
        if pre_wait:
            pre_wait(sum(outstanding))
        if not EARLY:
            dma_chunk(1, slot_srd, slot_step)
            outstanding.append(13)
        stamp(a, 2, vSTAMP)
        a.e('s_waitcnt vmcnt(%d) lgkmcnt(0)' % sum(outstanding[1:]))
        outstanding.pop(0)
        stamp(a, 3, vSTAMP)
        a.e('s_barrier')
        if EARLY:
            dma_chunk(1, slot_srd, slot_step)
            outstanding.append(13)
        dma_chunk(2, slot_srd, slot_step)
        outstanding.append(13)
        if PREFETCH:
            npf = 0
            a.e('s_lshr_b32 s3, s2, 3')
            a.e('s_lshl_b32 s3, s3, 6')
            a.e('v_add_u32 v16, s3, v0')
            a.e('v_mul_u32_u24 v16, 896, v16')
            a.e('s_lshl_b32 s3, s%d, 7' % sW)
            a.e('s_add_u32 s3, s3, 384')
            a.e('buffer_load_dword v17, v16, %s, s3 offen' % sr(SX, 4))
            npf += 1
            a.e('s_and_b32 s%d, s%d, 3' % (sT2, sRB))
            for j in range(5):
                a.e('s_mul_i32 s3, s%d, %d' % (sT2, slot_step[j]))
                a.e('s_add_u32 s3, s3, s%d' % SOFF[j])
                a.e('buffer_load_dwordx4 %s, v%d, %s, s3 offen' % (vr(20 + 4 * j, 4), vWO[j], sr(slot_srd[j], 4)))
                npf += 1
            outstanding[-1] += npf
        outstanding = [outstanding[0] + outstanding[1]] + outstanding[2:]
        a.e('s_mov_b32 s%d, 0' % sLI)
        a.lab('K1%s_LLOOP' % typ)
        a.e('s_waitcnt vmcnt(13)')
        a.e('s_barrier')
        dma_chunk(3, slot_srd, slot_step)
        a.e('s_add_u32 s%d, s%d, 1' % (sLI, sLI))
        a.e('s_cmp_lt_u32 s%d, 4' % sLI)
        a.e('s_cbranch_scc1 K1%s_LLOOP' % typ)
        a.e('s_waitcnt vmcnt(13)')
        a.e('s_barrier')
        ne = extra_at_b5() if extra_at_b5 else 0
        a.e('s_waitcnt vmcnt(%d)' % ne)
        a.e('s_barrier')
        if loader_tail:
            loader_tail()
        stamp(a, 9, vSTAMP)
        stamp(a, 11, vSTAMP, real=True)
        stamp_store(a, vSTAMP, SWS, sW8, 8, STAMP_OFF, 8)
        a.e('s_endpgm')
        a.lab('K1%s_COMPUTE' % typ)
        if os.environ.get('PRIO', '0') == '1':
            a.e('s_setprio 2')
        if PF2:
            a.e('s_lshr_b32 s3, s2, 3')
            a.e('s_lshl_b32 s3, s3, 2')
            a.e('s_add_u32 s3, s3, s%d' % sW)
            a.e('s_mul_i32 s3, s3, %d' % (16 * 896))
            a.e('v_lshlrev_b32 v16, 7, v0')
            a.e('v_min_u32 v17, %d, v16' % (47 * 128))
            a.e('buffer_load_dword v18, v16, %s, s3 offen' % sr(SX, 4))
            a.e('s_add_u32 s3, s3, 8192')
            a.e('buffer_load_dword v19, v17, %s, s3 offen' % sr(SX, 4))
            a.e('v_min_u32 v16, 55, v0')
            a.e('s_mul_i32 s3, s%d, 56' % sRB)
            a.e('v_add_u32 v16, s3, v16')
            a.e('v_mul_u32_u24 v17, 3584, v16')
            a.e('v_mul_u32_u24 v16, 2688, v16')
            if typ == 'A':
                a.e('s_mul_i32 s%d, s%d, 56' % (sT, sC))
                a.e('s_lshl_b32 s%d, s%d, 6' % (sT2, sC))
                tg = []
                for rho in range(3):
                    tg.append((SWQKV, 16, sT, rho * 896))
                    tg.append((SWQKV, 16, sT, rho * 896 + 52))
                tg.append((SW1, 17, sT2, 0))
                tg.append((SW3, 17, sT2, 0))
            else:
                a.e('s_mul_i32 s%d, s%d, 160' % (sT, sC))
                a.e('s_add_u32 s%d, s%d, 1024' % (sT, sT))
                tg = [(sd, 17, sT, o) for sd in (SW1, SW3) for o in (0, 80, 156)]
            for w in range(4):
                mine = tg[2 * w:2 * w + 2]
                if not mine:
                    continue
                a.e('s_cmp_lg_u32 s%d, %d' % (sW, w))
                a.e('s_cbranch_scc1 K1%s_PF%d' % (typ, w))
                for n_, (sd, vv, ss, off) in enumerate(mine):
                    a.e('buffer_load_dword v%d, v%d, %s, s%d offen offset:%d' % (20 + n_, vv, sr(sd, 4), ss, off))
                a.lab('K1%s_PF%d' % (typ, w))
        a.e('s_barrier')
        stamp(a, 1, vSTAMP)
        for s in reads(0):
            a.e(s)
        sI, sSG, sDL = 4, 5, 6

        def step(n, cross=False, first=False):
            a.e('s_waitcnt lgkmcnt(0)')
            if cross:
                a.e('s_cmp_eq_u32 s%d, 6' % sI)
                a.e('s_cbranch_scc1 K1%s_NOBAR' % typ)
                a.e('s_barrier')
                a.lab('K1%s_NOBAR' % typ)
            mfma(0 if first else n + 4, 0, 0)
            if cross:
                a.e('s_add_u32 s%d, s%d, 1' % (sSG, sSG))
                a.e('s_cmp_eq_u32 s%d, 3' % sSG)
                a.e('s_cselect_b32 s%d, 0, s%d' % (sSG, sSG))
                a.e('s_mov_b32 s%d, %d' % (sDL, STAGE))
                a.e('s_cselect_b32 s%d, 0x%x, s%d' % (sDL, (-2 * STAGE) & 0xffffffff, sDL))
                for r in vXA + [vGU] + ([vKV] if typ == 'A' else []):
                    a.e('v_add_u32 v%d, s%d, v%d' % (r, sDL, r))
                if typ == 'A':
                    a.e('s_sub_u32 s3, s%d, 3072' % sDL)
                    a.e('v_mov_b32 v8, s3')
                    a.e('v_cndmask_b32 v8, v8, v%d, %s' % (vC128, sr(sGWM, 2)))
                    a.e('v_add_u32 v%d, v8, v%d' % (vQ0, vQ0))
                    a.e('v_add_u32 v%d, v8, v%d' % (vQ1, vQ1))
            elif typ == 'A':
                a.e('v_add_u32 v%d, v%d, v%d' % (vQ0, vQI, vQ0))
                a.e('v_add_u32 v%d, v%d, v%d' % (vQ1, vQI, vQ1))
            R = reads(n + 1)
            k = 0
            for m in range(1, 10):
                for s_ in R[k:k + 2]:
                    a.e(s_)
                k += 2
                mfma(0 if first else n + 4, m // 2, m % 2)

        a.e('s_mov_b32 s%d, 0' % sI)
        a.e('s_mov_b32 s%d, 0' % sSG)
        step(0, first=True)
        a.lab('K1%s_LOOP' % typ)
        step(1)
        step(2)
        step(3, cross=True)
        a.e('s_cmp_eq_u32 s%d, 6' % sI)
        a.e('s_cbranch_scc1 K1%s_LOOPEND' % typ)
        step(4)
        a.e('s_add_u32 s%d, s%d, 1' % (sI, sI))
        a.e('s_branch K1%s_LOOP' % typ)
        a.lab('K1%s_LOOPEND' % typ)
        a.e('s_waitcnt lgkmcnt(0)')
        a.e('s_nop 7')
        a.e('s_nop 7')
        stamp(a, 8, vSTAMP)

    a.e('v_lshl_add_u32 v15, v10, 2, v12')
    a.e('v_and_b32 v8, 6, v15')
    a.e('v_cmp_eq_u32 vcc, 6, v8')
    a.e('v_xor_b32 v8, 1, v15')
    a.e('v_cndmask_b32 v8, v15, v8, vcc')
    a.e('v_lshlrev_b32 v8, 3, v8')
    a.e('v_lshl_add_u32 v8, v13, 6, v8')
    a.e('v_add_u32 v%d, %d, v8' % (vKV, XREG))
    a.e('v_cmp_eq_u32 %s, 7, v15' % sr(sGWM, 2))
    a.e('v_lshlrev_b32 v9, 3, v13')
    a.e('v_add_u32 v9, %d, v9' % GWX)
    a.e('v_cndmask_b32 v%d, v%d, v9, %s' % (vQ0, vKV, sr(sGWM, 2)))
    a.e('v_add_u32 v8, 256, v%d' % vKV)
    a.e('v_add_u32 v9, 32, v9')
    a.e('v_cndmask_b32 v%d, v8, v9, %s' % (vQ1, sr(sGWM, 2)))
    a.e('v_mov_b32 v%d, 128' % vC128)
    a.e('v_mov_b32 v8, 1024')
    a.e('v_cndmask_b32 v%d, v8, v%d, %s' % (vQI, vC128, sr(sGWM, 2)))
    a.e('v_mul_u32_u24 v8, %d, v10' % (WOFF_A[4] - WOFF_A[3]))
    a.e('v_lshl_add_u32 v8, v13, 6, v8')
    a.e('v_add_u32 v8, v14, v8')
    a.e('v_add_u32 v%d, %d, v8' % (vGU, XREG + WOFF_A[3]))
    a.e('v_lshrrev_b32 v8, 2, v0')
    a.e('v_and_b32 v9, 3, v0')
    a.e('v_lshlrev_b32 v10, 4, v9')
    a.e('v_cmp_eq_u32 vcc, 3, v9')
    a.e('v_mov_b32 v11, 40')
    a.e('v_cndmask_b32 v11, v10, v11, vcc')
    a.e('v_mul_u32_u24 v12, 2688, v8')
    a.e('v_add_u32 v12, v12, v11')
    a.e('v_mul_u32_u24 v13, 3584, v8')
    a.e('v_add_u32 v13, v13, v10')
    sQH = 13
    a.e('s_mov_b32 s14, 0x%x' % 1969439008)
    a.e('s_mov_b32 s15, 0x%x' % 4274891657)
    a.e('s_lshl_b32 s3, s%d, 2' % sC)
    a.e('s_lshr_b64 s[14:15], s[14:15], s3')
    a.e('s_and_b32 s%d, s14, 15' % sQH)
    a.e('s_mul_i32 s3, s%d, 56' % sQH)
    a.e('v_add_u32 v%d, s3, v12' % vWO[0])
    a.e('s_mul_i32 s%d, s%d, 56' % (sT, sC))
    a.e('v_add_u32 v%d, s%d, v12' % (vWO[1], sT))
    a.e('v_mov_b32 v%d, v%d' % (vWO[2], vWO[1]))
    a.e('s_lshl_b32 s3, s%d, 6' % sC)
    a.e('v_add_u32 v%d, s3, v13' % vWO[3])
    a.e('v_mov_b32 v%d, v%d' % (vWO[4], vWO[3]))
    a.e('s_mul_i32 s%d, s%d, %d' % (SOFF[0], sW, 16 * 2688))
    a.e('s_add_u32 s%d, s%d, 896' % (SOFF[1], SOFF[0]))
    a.e('s_add_u32 s%d, s%d, 1792' % (SOFF[2], SOFF[0]))
    a.e('s_mul_i32 s%d, s%d, %d' % (SOFF[3], sW, 16 * 3584))
    a.e('s_mov_b32 s%d, s%d' % (SOFF[4], SOFF[3]))
    a.e('s_lshl_b32 s3, s%d, 10' % sW)
    for j in range(5):
        a.e('s_add_u32 s%d, s3, %d' % (DEST[j], XREG + WOFF_A[j]))
    a.e('v_lshlrev_b32 v8, 1, v%d' % vTID)
    a.e('buffer_load_ushort v10, v8, %s, 0 offen' % sr(SGW, 4))
    a.e('buffer_load_ushort v12, v8, %s, 0 offen offset:512' % sr(SGW, 4))

    def pre_wait_A(nout):
        a.e('s_waitcnt vmcnt(%d)' % nout)
        a.e('v_lshl_or_b32 v10, v10, 16, v10')
        a.e('v_mov_b32 v11, v10')
        a.e('v_lshl_or_b32 v12, v12, 16, v12')
        a.e('v_mov_b32 v13, v12')
        a.e('v_lshlrev_b32 v8, 3, v%d' % vTID)
        a.e('v_add_u32 v8, %d, v8' % GWX)
        a.e('ds_write_b64 v8, v[10:11]')
        a.e('v_cmp_gt_u32 vcc, 192, v%d' % vTID)
        a.e('s_and_saveexec_b64 %s, vcc' % sr(sEX, 2))
        a.e('ds_write_b64 v8, v[12:13] offset:2048')
        a.e('s_mov_b64 exec, %s' % sr(sEX, 2))

    def kv_tail():
        RED = STAGE
        a.e('s_barrier')
        a.e('s_cmp_lg_u32 s%d, 0' % sW)
        a.e('s_cbranch_scc1 K1A_DONE')
        KR = ACC
        a.e('v_add_u32 v8, %d, v%d' % (RED, vST))
        for p in range(4):
            for q in range(4):
                a.e('ds_read_b128 %s, v8 offset:%d' % (vr(KR + 16 * p + 4 * q, 4), 4096 * p + 1024 * q))
        a.e('s_lshl_b32 s3, s%d, 3' % sC)
        a.e('s_add_u32 s3, s3, s%d' % sRB)
        a.e('s_lshl_b32 s3, s3, 12')
        a.e('s_add_u32 s3, s3, %d' % KVP_OFF)
        a.e('s_waitcnt lgkmcnt(0)')
        for i in range(8):
            a.e('v_pk_add_f32 %s, %s, %s' % (vr(KR + 2 * i, 2), vr(KR + 2 * i, 2), vr(KR + 16 + 2 * i, 2)))
            a.e('v_pk_add_f32 %s, %s, %s' % (vr(KR + 32 + 2 * i, 2), vr(KR + 32 + 2 * i, 2), vr(KR + 48 + 2 * i, 2)))
        for i in range(8):
            a.e('v_pk_add_f32 %s, %s, %s' % (vr(KR + 2 * i, 2), vr(KR + 2 * i, 2), vr(KR + 32 + 2 * i, 2)))
        for q in range(4):
            a.e('buffer_store_dwordx4 %s, v%d, %s, s3 offen offset:%d sc1' % (vr(KR + 4 * q, 4), vST, sr(SWS, 4), 1024 * q))
        a.lab('K1A_DONE')

    main_loop('A', [SWQKV, SWQKV, SWQKV, SW1, SW3], [64 * 2688] * 3 + [64 * 3584] * 2, None, pre_wait_A, kv_tail)
    TMP = WF[0]
    PK = 36
    PV = 44
    a.e('s_lshl_b32 s%d, s%d, 3' % (sT3, sRB))
    a.e('s_lshl_b32 s3, s%d, 1' % sW)
    a.e('s_add_u32 s%d, s%d, s3' % (sT3, sT3))
    a.e('v_and_b32 v8, 31, v0')
    a.e('v_cmp_le_u32 %s, 28, v8' % sr(sGWM, 2))
    a.e('v_mov_b32 v9, 0x3f803f80')
    KVA = 56
    for r in range(2):
        phi16(a, accb(1, r), TMP, PK, sCON)
        for i in range(8):
            a.e('v_cvt_pk_bf16_f32 v%d, v%d, v%d' % (PV + i, accb(2, r) + 2 * i, accb(2, r) + 2 * i + 1))
        for i in range(8):
            a.e('v_cndmask_b32 v%d, v%d, v9, %s' % (PV + i, PV + i, sr(sGWM, 2)))
        a.e('v_mfma_f32_32x32x16_bf16 %s, %s, %s, %s' % (vr(KVA, 16), vr(PK, 4), vr(PV, 4), '0' if r == 0 else vr(KVA, 16)))
        a.e('v_mfma_f32_32x32x16_bf16 %s, %s, %s, %s' % (vr(KVA, 16), vr(PK + 4, 4), vr(PV + 4, 4), vr(KVA, 16)))
    RED = STAGE
    a.e('s_lshl_b32 s3, s%d, 12' % sW)
    a.e('v_add_u32 v8, s3, v%d' % vST)
    a.e('v_add_u32 v8, %d, v8' % RED)
    for q in range(4):
        a.e('ds_write_b128 v8, %s offset:%d' % (vr(KVA + 4 * q, 4), 1024 * q))
    a.e('s_waitcnt lgkmcnt(0)')
    a.e('s_barrier')
    a.e('v_mov_b32 v10, v%d' % (accb(0, 0) + 12))
    a.e('v_mov_b32 v11, v%d' % (accb(0, 1) + 12))
    a.e('s_lshl_b32 s3, s%d, 4' % sT3)
    a.e('s_add_u32 s3, s3, s%d' % sQH)
    a.e('s_lshl_b32 s3, s3, 11')
    a.e('s_add_u32 s%d, s3, 32768' % sT)
    for r in range(2):
        o = PK + 8 * r
        phi16(a, accb(0, r), TMP, o, sCON)
        sb = 's3' if r == 0 else 's%d' % sT
        a.e('buffer_store_dwordx4 %s, v%d, %s, %s offen' % (vr(o, 4), vST, sr(SWS, 4), sb))
        a.e('buffer_store_dwordx4 %s, v%d, %s, %s offen offset:1024' % (vr(o + 4, 4), vST, sr(SWS, 4), sb))
    a.e('s_cmp_lg_u32 s%d, 0' % sC)
    a.e('s_cbranch_scc1 K1A_NOG')
    a.e('v_cvt_pk_bf16_f32 v12, v10, v11')
    a.e('v_lshlrev_b32 v10, 16, v12')
    a.e('v_and_b32 v11, 0xffff0000, v12')
    a.e('v_pk_mul_f32 v[10:11], v[10:11], %s' % sr(sCON + 4, 2))
    a.e('v_exp_f32 v10, v10')
    a.e('v_exp_f32 v11, v11')
    a.e('v_pk_add_f32 v[10:11], v[10:11], %s' % sr(sCON + 6, 2))
    a.e('v_rcp_f32 v10, v10')
    a.e('v_rcp_f32 v11, v11')
    a.e('v_cvt_pk_bf16_f32 v12, v10, v11')
    a.e('v_lshlrev_b32 v10, 16, v12')
    a.e('v_and_b32 v11, 0xffff0000, v12')
    a.e('v_and_b32 v12, 31, v0')
    a.e('v_lshlrev_b32 v12, 2, v12')
    a.e('s_lshl_b32 s3, s%d, 7' % sT3)
    a.e('s_add_u32 s3, s3, %d' % G_OFF)
    a.e('v_cmp_le_u32 vcc, 32, v0')
    a.e('s_and_saveexec_b64 %s, vcc' % sr(sEX, 2))
    a.e('buffer_store_dword v10, v12, %s, s3 offen' % sr(SWS, 4))
    a.e('buffer_store_dword v11, v12, %s, s3 offen offset:128' % sr(SWS, 4))
    a.e('s_mov_b64 exec, %s' % sr(sEX, 2))
    a.lab('K1A_NOG')
    a.e('s_mul_i32 s3, s%d, 112' % sT3)
    a.e('s_lshl_b32 s%d, s%d, 1' % (sT, sC))
    a.e('s_add_u32 s3, s3, s%d' % sT)
    a.e('s_lshl_b32 s3, s3, 10')
    a.e('s_add_u32 s3, s3, %d' % H_OFF)
    a.e('s_add_u32 s%d, s3, %d' % (sT, 112 * 1024))
    for r in range(2):
        for m in range(2):
            o = PK + 4 * (2 * r + m)
            silu_mul(a, accb(3 + m, r), TMP, o, sCON)
            a.e('buffer_store_dwordx4 %s, v%d, %s, %s offen offset:%d' % (vr(o, 4), vST, sr(SWS, 4), 's3' if r == 0 else 's%d' % sT, 1024 * m))
    stamp(a, 9, vSTAMP)
    stamp(a, 11, vSTAMP, real=True)
    stamp_store(a, vSTAMP, SWS, sW8, 8, STAMP_OFF, 8)
    a.e('s_endpgm')

    a.lab('K1_TYPEB')
    a.e('v_mul_u32_u24 v8, %d, v10' % WOFF_B[1])
    a.e('v_mul_u32_u24 v9, 160, v13')
    a.e('v_add3_u32 v8, v8, v9, v14')
    a.e('v_add_u32 v%d, %d, v8' % (vGU, XREG))
    a.e('s_mul_i32 s%d, s%d, 160' % (sT, sC))
    a.e('s_add_u32 s%d, s%d, 1024' % (sT, sT))

    def slotB(j, q_sgpr):
        a.e('s_lshl_b32 s3, s%d, 6' % q_sgpr)
        a.e('v_add_u32 v8, s3, v0')
        a.e('v_mul_u32_u24 v9, 6554, v8')
        a.e('v_lshrrev_b32 v9, 16, v9')
        a.e('v_mul_u32_u24 v10, 10, v9')
        a.e('v_sub_u32 v10, v8, v10')
        a.e('v_mul_u32_u24 v9, 3584, v9')
        a.e('v_lshl_add_u32 v9, v10, 4, v9')
        a.e('v_add_u32 v%d, s%d, v9' % (vWO[j], sT))
        a.e('s_mov_b32 s%d, 0' % SOFF[j])
        a.e('s_lshl_b32 s%d, s%d, 10' % (DEST[j], q_sgpr))

    slotB(0, sW)
    a.e('s_add_u32 s%d, s%d, %d' % (DEST[0], DEST[0], XREG + WOFF_B[0]))
    a.e('s_add_u32 s%d, s%d, 4' % (sT2, sW))
    slotB(1, sT2)
    a.e('s_add_u32 s%d, s%d, %d' % (DEST[1], DEST[1], XREG + WOFF_B[0]))
    a.e('s_add_u32 s%d, s%d, 8' % (sT2, sW))
    a.e('s_sub_u32 s%d, s%d, 2' % (sT3, sW))
    a.e('s_cmp_lt_u32 s%d, 2' % sW)
    a.e('s_cselect_b32 s%d, s%d, s%d' % (sT2, sT2, sT3))
    a.e('s_cselect_b64 %s, %s, %s' % (sr(SLX, 2), sr(SW1, 2), sr(SW3, 2)))
    a.e('s_cselect_b64 %s, %s, %s' % (sr(SLX + 2, 2), sr(SW1 + 2, 2), sr(SW3 + 2, 2)))
    a.e('s_mov_b32 s%d, %d' % (sT3, XREG + WOFF_B[1]))
    a.e('s_cselect_b32 s%d, %d, s%d' % (sT3, XREG + WOFF_B[0], sT3))
    slotB(2, sT2)
    a.e('s_add_u32 s%d, s%d, s%d' % (DEST[2], DEST[2], sT3))
    a.e('s_add_u32 s%d, s%d, 2' % (sT2, sW))
    slotB(3, sT2)
    a.e('s_add_u32 s%d, s%d, %d' % (DEST[3], DEST[3], XREG + WOFF_B[1]))
    a.e('s_add_u32 s%d, s%d, 6' % (sT2, sW))
    slotB(4, sT2)
    a.e('s_add_u32 s%d, s%d, %d' % (DEST[4], DEST[4], XREG + WOFF_B[1]))

    PREP = STAGE
    sPU = [[4, 5, 6], [7, 8, 9]]
    sPD = 10

    def prep_issue():
        a.e('s_lshl_b32 s%d, s%d, 12' % (sPD, sW))
        a.e('s_add_u32 s%d, s%d, %d' % (sPD, sPD, PREP))
        a.e('v_lshrrev_b32 v8, 2, v0')
        a.e('v_mul_u32_u24 v8, 896, v8')
        a.e('v_and_b32 v9, 3, v0')
        a.e('v_lshl_add_u32 v8, v9, 4, v8')
        for u in range(2):
            sNT, sK, sISWO = sPU[u]
            a.e('s_lshl_b32 s%d, s%d, 4' % (sT, sRB))
            a.e('s_add_u32 s%d, s%d, s%d' % (sT, sT, sC))
            a.e('s_lshl_b32 s%d, s%d, 2' % (sT, sT))
            a.e('s_add_u32 s%d, s%d, s%d' % (sT, sT, sW))
            a.e('s_lshl_b32 s%d, s%d, 1' % (sT, sT))
            a.e('s_add_u32 s%d, s%d, %d' % (sT, sT, u))
            a.e('s_min_u32 s%d, s%d, 1007' % (sT, sT))
            a.e('s_cmp_ge_u32 s%d, 784' % sT)
            a.e('s_cselect_b32 s%d, 1, 0' % sISWO)
            a.e('s_cselect_b32 s%d, 784, 0' % sT2)
            a.e('s_sub_u32 s%d, s%d, s%d' % (sT, sT, sT2))
            a.e('s_mul_i32 s%d, s%d, 4682' % (sK, sT))
            a.e('s_lshr_b32 s%d, s%d, 16' % (sK, sK))
            a.e('s_mul_i32 s%d, s%d, 14' % (sT2, sK))
            a.e('s_sub_u32 s%d, s%d, s%d' % (sNT, sT, sT2))
            a.e('s_cmp_eq_u32 s%d, 1' % sISWO)
            a.e('s_cselect_b32 s%d, 28, 32' % sT2)
            a.e('s_mul_i32 s%d, s%d, s%d' % (sT2, sT2, sK))
            a.e('s_mul_i32 s%d, s%d, 896' % (sT2, sT2))
            a.e('s_lshl_b32 s%d, s%d, 6' % (sT3, sNT))
            a.e('s_add_u32 s%d, s%d, s%d' % (sT2, sT2, sT3))
            a.e('s_cmp_eq_u32 s%d, 1' % sISWO)
            a.e('s_cselect_b64 %s, %s, %s' % (sr(SLX, 2), sr(SWO, 2), sr(SW2, 2)))
            a.e('s_cselect_b64 %s, %s, %s' % (sr(SLX + 2, 2), sr(SWO + 2, 2), sr(SW2 + 2, 2)))
            a.e('s_add_u32 m0, s%d, %d' % (sPD, 2048 * u))
            a.e('s_add_u32 s%d, s%d, %d' % (sT3, sT2, 16 * 896))
            a.e('buffer_load_dwordx4 v8, %s, s%d offen lds' % (sr(SLX, 4), sT2))
            a.e('s_add_u32 m0, s%d, %d' % (sPD, 2048 * u + 1024))
            a.e('s_nop 0')
            a.e('buffer_load_dwordx4 v8, %s, s%d offen lds' % (sr(SLX, 4), sT3))
        return 4

    def prep_finish():
        a.e('v_lshrrev_b32 v9, 5, v0')
        a.e('v_bfe_u32 v10, v0, 4, 1')
        a.e('v_bfe_u32 v11, v0, 2, 2')
        a.e('v_and_b32 v12, 3, v0')
        a.e('v_lshl_add_u32 v15, v10, 2, v12')
        a.e('v_and_b32 v13, 1, v15')
        a.e('v_lshlrev_b32 v13, 2, v13')
        a.e('v_lshrrev_b32 v14, 1, v15')
        a.e('v_add_u32 v13, v13, v14')
        a.e('v_lshlrev_b32 v13, 3, v13')
        a.e('s_waitcnt vmcnt(0)')
        for u in range(2):
            sNT, sK, sISWO = sPU[u]
            P = ACC + 8 * u
            a.e('s_cmp_eq_u32 s%d, 1' % sISWO)
            a.e('s_cselect_b32 s%d, 2, 3' % sT)
            a.e('s_mov_b32 s%d, 256' % sT2)
            a.e('s_cselect_b32 s%d, 512, s%d' % (sT2, sT2))
            a.e('v_lshlrev_b32 v14, s%d, v9' % sT)
            a.e('v_add_u32 v14, v14, v11')
            a.e('v_lshl_add_u32 v14, v14, 6, v13')
            a.e('v_add_u32 v14, s%d, v14' % sPD)
            a.e('v_add_u32 v15, s%d, v14' % sT2)
            a.e('ds_read_b64_tr_b16 %s, v14 offset:%d' % (vr(P, 2), 2048 * u))
            a.e('ds_read_b64_tr_b16 %s, v15 offset:%d' % (vr(P + 2, 2), 2048 * u))
            a.e('ds_read_b64_tr_b16 %s, v14 offset:%d' % (vr(P + 4, 2), 2048 * u + 1024))
            a.e('ds_read_b64_tr_b16 %s, v15 offset:%d' % (vr(P + 6, 2), 2048 * u + 1024))
            a.e('s_mul_i32 s%d, s%d, 112' % (sT, sNT))
            a.e('s_lshl_b32 s%d, s%d, 1' % (sT2, sK))
            a.e('s_add_u32 s%d, s%d, s%d' % (sT, sT, sT2))
            a.e('s_lshl_b32 s%d, s%d, 10' % (sT, sT))
            a.e('s_add_u32 s%d, s%d, %d' % (sT, sT, W2P_OFF))
            a.e('s_lshl_b32 s%d, s%d, 4' % (sT3, sNT))
            a.e('s_add_u32 s%d, s%d, s%d' % (sT3, sT3, sK))
            a.e('s_lshl_b32 s%d, s%d, 11' % (sT3, sT3))
            a.e('s_add_u32 s%d, s%d, %d' % (sT3, sT3, WOP_OFF))
            a.e('s_cmp_eq_u32 s%d, 1' % sISWO)
            a.e('s_cselect_b32 s%d, s%d, s%d' % (sT, sT3, sT))
            a.e('s_cselect_b32 s%d, 32, 64' % sT2)
            a.e('v_cmp_le_u32 vcc, s%d, v0' % sT2)
            a.e('s_waitcnt lgkmcnt(0)')
            a.e('v_cndmask_b32 v%d, v%d, 0, vcc' % (P + 6, P + 6))
            a.e('v_cndmask_b32 v%d, v%d, 0, vcc' % (P + 7, P + 7))
            a.e('buffer_store_dwordx4 %s, v%d, %s, s%d offen' % (vr(P, 4), vST, sr(SWS, 4), sT))
            a.e('buffer_store_dwordx4 %s, v%d, %s, s%d offen offset:1024' % (vr(P + 4, 4), vST, sr(SWS, 4), sT))

    main_loop('B', [SW1, SW1, SLX, SW3, SW3], [64 * 3584] * 5, prep_issue, None, prep_finish)
    TMP = WF[0]
    a.e('s_lshl_b32 s%d, s%d, 3' % (sT3, sRB))
    a.e('s_lshl_b32 s3, s%d, 1' % sW)
    a.e('s_add_u32 s%d, s%d, s3' % (sT3, sT3))
    a.e('s_mul_i32 s3, s%d, 112' % sT3)
    a.e('s_mul_i32 s%d, s%d, 5' % (sT, sC))
    a.e('s_add_u32 s3, s3, s%d' % sT)
    a.e('s_add_u32 s3, s3, 32')
    a.e('s_lshl_b32 s3, s3, 10')
    a.e('s_add_u32 s3, s3, %d' % H_OFF)
    nst = 0
    for r in range(2):
        for m in range(5):
            o = 36 + 4 * (nst % 4)
            silu_mul(a, accb(m, r), TMP, o, sCON)
            a.e('buffer_store_dwordx4 %s, v%d, %s, s3 offen' % (vr(o, 4), vST, sr(SWS, 4)))
            a.e('s_add_u32 s3, s3, %d' % (1024 if m < 4 else (112 - 4) * 1024))
            nst += 1
    stamp(a, 9, vSTAMP)
    stamp(a, 11, vSTAMP, real=True)
    stamp_store(a, vSTAMP, SWS, sW8, 8, STAMP_OFF, 8)
    a.lab('K1_END')
    a.e('s_endpgm')
    return a.final()


def gen_k2():
    a = Asm()
    a.sp = 36
    SWS, SOUT = 8, 12
    sW, sRB, sCB, sT, sT2 = 16, 17, 18, 19, 20
    sH = [24, 25]
    sW2 = [26, 27]
    sKVT, sPQ, sWO = 28, [29, 30], [31, 32]
    vST = 1
    vG = [2, 4]
    vOMG = [6, 8]
    vSTAMP = 15
    DF = int(os.environ.get('DF', '10'))
    FB = 16
    HB = FB + 64
    OB = HB + 40
    OP = OB + 16
    TM = OP + 8
    BB = TM + 8
    NV = BB + 64
    accA = lambda rt, nt: vr(FB + 16 * (2 * rt + nt), 16)
    accB = lambda rt, nt: vr(BB + 16 * (2 * rt + nt), 16)

    a.lab('k2_kernel')
    SDBG = 40
    vFLAG = 14
    a.e('s_cmp_ge_u32 s2, 240')
    a.e('s_cbranch_scc1 K2_END')
    a.e('s_load_dwordx4 s[4:7], s[0:1], 64')
    a.e('s_load_dwordx2 s[44:45], s[0:1], 80')
    a.e('s_cmp_lt_u32 s2, 16')
    a.e('s_cbranch_scc1 K2_HELPER')
    a.e('s_sub_u32 s2, s2, 16')
    a.e('v_lshrrev_b32 v8, 6, v0')
    a.e('v_and_b32 v0, 63, v0')
    a.e('v_readfirstlane_b32 s%d, v8' % sW)
    a.e('v_lshlrev_b32 v%d, 4, v0' % vST)
    a.e('s_and_b32 s3, s2, 7')
    a.e('s_lshr_b32 s%d, s2, 3' % sT)
    a.e('s_mul_i32 s%d, s%d, 9363' % (sT2, sT))
    a.e('s_lshr_b32 s%d, s%d, 16' % (sT2, sT2))
    a.e('s_mul_i32 s%d, s%d, 7' % (sCB, sT2))
    a.e('s_sub_u32 s%d, s%d, s%d' % (sCB, sT, sCB))
    a.e('s_lshl_b32 s3, s3, 2')
    a.e('s_add_u32 s%d, s3, s%d' % (sRB, sT2))
    if MAP == 'bad':
        a.e('s_mul_i32 s%d, s2, 9363' % sRB)
        a.e('s_lshr_b32 s%d, s%d, 16' % (sRB, sRB))
        a.e('s_mul_i32 s%d, s%d, 7' % (sCB, sRB))
        a.e('s_sub_u32 s%d, s2, s%d' % (sCB, sCB))
    sG, sD = 33, 34
    if ROT:
        a.e('s_lshl_b32 s3, s%d, 1' % sT2)
        a.e('s_add_u32 s3, s3, s%d' % sCB)
        a.e('s_sub_u32 s%d, s3, 7' % sG)
        a.e('s_cmp_ge_u32 s3, 7')
        a.e('s_cselect_b32 s%d, s%d, s3' % (sG, sG))
    else:
        a.e('s_mov_b32 s%d, 0' % sG)
    a.e('s_mul_i32 s%d, s%d, %d' % (sT, sW, 28 * 1024))
    a.e('s_lshl_b32 s3, s%d, 12' % sG)
    a.e('s_add_u32 s%d, s%d, s3' % (sT, sT))
    a.e('s_mul_i32 s%d, s%d, %d' % (sH[0], sRB, 2 * 112 * 1024))
    a.e('s_add_u32 s%d, s%d, s%d' % (sH[0], sH[0], sT))
    a.e('s_add_u32 s%d, s%d, %d' % (sH[0], sH[0], H_OFF))
    a.e('s_add_u32 s%d, s%d, %d' % (sH[1], sH[0], 112 * 1024))
    a.e('s_mul_i32 s%d, s%d, %d' % (sW2[0], sCB, 2 * 112 * 1024))
    a.e('s_add_u32 s%d, s%d, s%d' % (sW2[0], sW2[0], sT))
    a.e('s_add_u32 s%d, s%d, %d' % (sW2[0], sW2[0], W2P_OFF))
    a.e('s_add_u32 s%d, s%d, %d' % (sW2[1], sW2[0], 112 * 1024))
    a.e('s_lshl_b32 s%d, s%d, 13' % (sT, sW))
    a.e('s_add_u32 s%d, s%d, %d' % (sKVT, sT, KVT_OFF))
    a.e('s_lshl_b32 s%d, s%d, 16' % (sPQ[0], sRB))
    a.e('s_add_u32 s%d, s%d, s%d' % (sPQ[0], sPQ[0], sT))
    a.e('s_add_u32 s%d, s%d, %d' % (sPQ[0], sPQ[0], PQ_OFF))
    a.e('s_add_u32 s%d, s%d, %d' % (sPQ[1], sPQ[0], 32768))
    a.e('s_lshl_b32 s%d, s%d, 16' % (sWO[0], sCB))
    a.e('s_add_u32 s%d, s%d, s%d' % (sWO[0], sWO[0], sT))
    a.e('s_add_u32 s%d, s%d, %d' % (sWO[0], sWO[0], WOP_OFF))
    a.e('s_add_u32 s%d, s%d, %d' % (sWO[1], sWO[0], 32768))
    a.e('v_and_b32 v8, 31, v0')
    a.e('v_lshlrev_b32 v8, 2, v8')
    a.e('s_lshl_b32 s%d, s%d, 8' % (sT, sRB))
    a.e('s_add_u32 s%d, s%d, %d' % (sT, sT, G_OFF))
    a.e('s_waitcnt lgkmcnt(0)')
    srd(a, SWS, 44, WS_SRD)
    srd(a, SOUT, 4, SZ_OUT)
    srd(a, SDBG, 6, 256)
    stamp(a, 0, vSTAMP)
    stamp(a, 10, vSTAMP, real=True)
    issued = []

    def ld(dst, sbase, off, tag, agpr=False):
        d = ('a[%d:%d]' % (dst, dst + 3)) if agpr else vr(dst, 4)
        a.e('buffer_load_dwordx4 %s, v%d, %s, s%d offen offset:%d%s' % (d, vST, sr(SWS, 4), sbase, off, ' sc1' if sbase == sKVT else ''))
        issued.append(tag)

    ar = lambda i: 'a[%d:%d]' % (i, i + 3)

    a.e('buffer_load_dword v%d, v8, %s, s%d offen' % (vG[0], sr(SWS, 4), sT))
    a.e('buffer_load_dword v%d, v8, %s, s%d offen offset:128' % (vG[1], sr(SWS, 4), sT))
    issued += ['g', 'g']

    items = []
    hpos = {16: 0, 20: 1, 24: 2, 27: 3}
    for f in range(28):
        items.append(('F', f))
        if f in hpos:
            items.append(('H', hpos[f]))
    FLAG_ISSUE, FLAG_CHECK = 9, 13

    def issue(it):
        kind, idx = it
        if kind == 'F':
            b = (idx % DF) * 16
            off = (idx % 4) * 1024
            ld(b, sH[0], off, it, True)
            ld(b + 4, sH[1], off, it, True)
            ld(b + 8, sW2[0], off, it, True)
            ld(b + 12, sW2[1], off, it, True)
            if idx % 4 == 3:
                a.e('s_add_u32 s%d, s%d, 1' % (sG, sG))
                a.e('s_cmp_eq_u32 s%d, 7' % sG)
                a.e('s_cselect_b32 s%d, 0, s%d' % (sG, sG))
                a.e('s_mov_b32 s%d, 4096' % sD)
                a.e('s_cselect_b32 s%d, 0x%x, s%d' % (sD, (-6 * 4096) & 0xffffffff, sD))
                for s in sH + sW2:
                    a.e('s_add_u32 s%d, s%d, s%d' % (s, s, sD))
        else:
            b = HB
            off = (idx % 2) * 2048
            for j in range(2):
                ld(b + 4 * j, sKVT, off + 1024 * j, it)
            for rt in range(2):
                for j in range(2):
                    ld(b + 8 + 8 * rt + 4 * j, sPQ[rt], off + 1024 * j, it)
            for nt in range(2):
                for j in range(2):
                    ld(b + 24 + 8 * nt + 4 * j, sWO[nt], off + 1024 * j, it)
            if idx % 2 == 1:
                for s in [sKVT] + sPQ + sWO:
                    a.e('s_add_u32 s%d, s%d, 4096' % (s, s))

    def wait_for(it):
        last = max(i for i, t in enumerate(issued) if t == it)
        a.e('s_waitcnt vmcnt(%d)' % min(63, len(issued) - 1 - last))

    firstB = [True]
    firstA = [True]

    def compute(it, extra):
        start = len(a.lines)
        compute_body(it)
        body = a.lines[start:]
        del a.lines[start:]
        groups = []
        for ln in extra:
            if 'buffer_load' in ln or not groups:
                groups.append([ln])
            else:
                groups[-1].append(ln)
        nm = sum('v_mfma' in ln for ln in body)
        per = -(-len(groups) // nm) if groups else 0
        for ln in body:
            a.lines.append(ln)
            if 'v_mfma' in ln:
                for g in groups[:per]:
                    a.lines.extend(g)
                groups = groups[per:]
        for g in groups:
            a.lines.extend(g)

    def compute_body(it):
        kind, idx = it
        if kind == 'F':
            b = (idx % DF) * 16
            for rt in range(2):
                for nt in range(2):
                    a.e('v_mfma_f32_32x32x16_bf16 %s, %s, %s, %s' % (accB(rt, nt), ar(b + 8 + 4 * nt), ar(b + 4 * rt),
                                                                   '0' if firstB[0] else accB(rt, nt)))
            firstB[0] = False
        else:
            b = HB
            for rt in range(2):
                a.e('v_mfma_f32_32x32x16_bf16 %s, %s, %s, 0' % (vr(OB, 16), vr(b, 4), vr(b + 8 + 8 * rt, 4)))
                a.e('v_mfma_f32_32x32x16_bf16 %s, %s, %s, %s' % (vr(OB, 16), vr(b + 4, 4), vr(b + 8 + 8 * rt + 4, 4), vr(OB, 16)))
                a.e('v_add_f32 v%d, %s, v%d' % (TM, EPS, OB + 12))
                a.e('v_mov_b32 v%d, v%d' % (TM + 1, TM))
                a.e('v_permlane32_swap_b32 v%d, v%d' % (TM, TM + 1))
                a.e('v_rcp_f32 v%d, v%d' % (TM, TM + 1))
                a.e('v_mul_f32 v%d, v%d, v%d' % (TM, TM, vG[rt]))
                a.e('v_mov_b32 v%d, v%d' % (TM + 1, TM))
                for i in range(8):
                    a.e('v_pk_mul_f32 %s, %s, %s' % (vr(OB + 2 * i, 2), vr(OB + 2 * i, 2), vr(TM, 2)))
                for i in range(8):
                    a.e('v_cvt_pk_bf16_f32 v%d, v%d, v%d' % (OP + i, OB + 2 * i, OB + 2 * i + 1))
                for j in range(2):
                    for nt in range(2):
                        a.e('v_mfma_f32_32x32x16_bf16 %s, %s, %s, %s' % (
                            accA(rt, nt), vr(b + 24 + 8 * nt + 4 * j, 4), vr(OP + 4 * j, 4),
                            '0' if (firstA[0] and j == 0) else accA(rt, nt)))
            firstA[0] = False

    nxt = 0

    def can_issue(k, cur):
        kind, idx = items[k]
        if kind == 'F':
            if idx < DF:
                return True
            return items.index(('F', idx - DF)) < cur
        else:
            if idx < 1:
                return cur > FLAG_CHECK
            return items.index(('H', idx - 1)) < cur

    order = list(range(len(items)))
    pending = list(range(len(items)))
    for cur in range(len(items)):
        if cur > 0:
            wait_for(items[cur])
        cap0 = len(a.lines)
        progressed = True
        while progressed:
            progressed = False
            for k in pending:
                kind, idx = items[k]
                if can_issue(k, cur) and (k <= cur + DF + 2):
                    issue(items[k])
                    pending.remove(k)
                    progressed = True
                    break
                if kind == 'F':
                    break
        extra = a.lines[cap0:]
        del a.lines[cap0:]
        if cur == 0:
            a.lines.extend(extra)
            extra = []
            wait_for(items[cur])
        compute(items[cur], extra)
        if cur == FLAG_ISSUE:
            a.e('v_mov_b32 v13, 0')
            a.e('buffer_load_dword v%d, v13, %s, 0 offen sc1' % (vFLAG, sr(SDBG, 4)))
            issued.append('flag')
        if cur == FLAG_CHECK:
            wait_for('flag')
            a.lab('K2_POLL')
            a.e('v_readfirstlane_b32 s3, v%d' % vFLAG)
            a.e('s_cmp_ge_u32 s3, 16')
            a.e('s_cbranch_scc1 K2_READY')
            a.e('s_sleep 2')
            a.e('buffer_load_dword v%d, v13, %s, 0 offen sc1' % (vFLAG, sr(SDBG, 4)))
            a.e('s_waitcnt vmcnt(0)')
            a.e('s_branch K2_POLL')
            a.lab('K2_READY')
        if cur % 8 == 0:
            stamp(a, 1 + cur // 8, vSTAMP)
    stamp(a, 5, vSTAMP)
    for rt in range(2):
        a.e('v_sub_f32 v%d, 1.0, v%d' % (vOMG[rt], vG[rt]))
        a.e('v_cvt_pk_bf16_f32 v%d, v%d, v%d' % (vOMG[rt], vOMG[rt], vOMG[rt]))
        a.e('v_and_b32 v%d, 0xffff0000, v%d' % (vOMG[rt] + 1, vOMG[rt]))
        a.e('v_mov_b32 v%d, v%d' % (vOMG[rt], vOMG[rt] + 1))
        a.e('v_mov_b32 v%d, v%d' % (vG[rt] + 1, vG[rt]))
    a.e('s_lshl_b32 s%d, s%d, 12' % (sT, sW))
    a.e('v_add_u32 v10, s%d, v%d' % (sT, vST))
    R = BB
    for t in range(4):
        rt = t >> 1
        for i in range(8):
            a.e('v_pk_fma_f32 %s, %s, %s, %s' % (vr(R + 16 * t + 2 * i, 2), vr(R + 16 * t + 2 * i, 2), vr(vOMG[rt], 2), vr(FB + 16 * t + 2 * i, 2)))
        for q in range(4):
            a.e('ds_write_b128 v10, %s offset:%d' % (vr(R + 16 * t + 4 * q, 4), 16384 * t + 1024 * q))
    a.e('s_waitcnt lgkmcnt(0)')
    a.e('s_barrier')
    stamp(a, 6, vSTAMP)
    a.e('s_lshl_b32 s%d, s%d, 14' % (sT, sW))
    a.e('v_add_u32 v10, s%d, v%d' % (sT, vST))
    for p in range(4):
        for q in range(4):
            a.e('ds_read_b128 %s, v10 offset:%d' % (vr(R + 16 * p + 4 * q, 4), 4096 * p + 1024 * q))
    a.e('s_lshr_b32 s%d, s%d, 1' % (sT, sW))
    a.e('s_lshl_b32 s%d, s%d, 1' % (sT2, sRB))
    a.e('s_add_u32 s%d, s%d, s%d' % (sT, sT, sT2))
    a.e('s_mul_i32 s%d, s%d, %d' % (sT, sT, 32 * 896))
    a.e('s_and_b32 s%d, s%d, 1' % (sT2, sW))
    a.e('s_lshl_b32 s%d, s%d, 6' % (sT2, sT2))
    a.e('s_add_u32 s%d, s%d, s%d' % (sT, sT, sT2))
    a.e('s_lshl_b32 s%d, s%d, 7' % (sT2, sCB))
    a.e('s_add_u32 s%d, s%d, s%d' % (sT, sT, sT2))
    a.e('v_and_b32 v9, 31, v0')
    a.e('v_mul_u32_u24 v9, 896, v9')
    a.e('v_lshrrev_b32 v10, 5, v0')
    a.e('v_lshl_add_u32 v9, v10, 5, v9')
    a.e('s_waitcnt lgkmcnt(0)')
    for i in range(8):
        a.e('v_pk_add_f32 %s, %s, %s' % (vr(R + 2 * i, 2), vr(R + 2 * i, 2), vr(R + 16 + 2 * i, 2)))
        a.e('v_pk_add_f32 %s, %s, %s' % (vr(R + 32 + 2 * i, 2), vr(R + 32 + 2 * i, 2), vr(R + 48 + 2 * i, 2)))
    for i in range(8):
        a.e('v_pk_add_f32 %s, %s, %s' % (vr(R + 2 * i, 2), vr(R + 2 * i, 2), vr(R + 32 + 2 * i, 2)))
    for i in range(8):
        a.e('v_cvt_pk_bf16_f32 v%d, v%d, v%d' % (HB + i, R + 2 * i, R + 2 * i + 1))
    a.e('buffer_store_dwordx4 %s, v9, %s, s%d offen' % (vr(HB, 4), sr(SOUT, 4), sT))
    a.e('buffer_store_dwordx4 %s, v9, %s, s%d offen offset:16' % (vr(HB + 4, 4), sr(SOUT, 4), sT))
    stamp(a, 9, vSTAMP)
    stamp(a, 11, vSTAMP, real=True)
    stamp_store(a, vSTAMP, SWS, sW, 4, STAMP_OFF + (1 << 20), 8)
    a.lab('K2_END')
    a.e('s_endpgm')
    a.lab('K2_HELPER')
    a.e('v_lshlrev_b32 v1, 4, v0')
    a.e('s_lshl_b32 s3, s2, 15')
    a.e('s_add_u32 s3, s3, %d' % KVP_OFF)
    a.e('s_waitcnt lgkmcnt(0)')
    srd(a, SWS, 44, WS_SRD)
    srd(a, SDBG, 6, 256)
    for p_ in range(8):
        a.e('buffer_load_dwordx4 %s, v1, %s, s3 offen' % (vr(4 + 4 * p_, 4), sr(SWS, 4)))
        a.e('s_add_u32 s3, s3, 4096')
    a.e('v_cmp_le_u32 vcc, 224, v0')
    a.e('v_lshrrev_b32 v2, 7, v0')
    a.e('v_lshlrev_b32 v2, 10, v2')
    a.e('v_and_b32 v3, 63, v0')
    a.e('v_lshl_add_u32 v2, v3, 4, v2')
    a.e('v_bfe_u32 v3, v0, 6, 1')
    a.e('v_lshl_add_u32 v2, v3, 3, v2')
    a.e('s_lshl_b32 s3, s2, 11')
    a.e('s_add_u32 s3, s3, %d' % KVT_OFF)
    for p_ in range(1, 8):
        a.e('s_waitcnt vmcnt(%d)' % (7 - p_))
        a.e('v_pk_add_f32 v[4:5], v[4:5], %s' % vr(4 + 4 * p_, 2))
        a.e('v_pk_add_f32 v[6:7], v[6:7], %s' % vr(6 + 4 * p_, 2))
    for k in range(4):
        a.e('v_cndmask_b32 v%d, v%d, 0, vcc' % (4 + k, 4 + k))
    a.e('v_cvt_pk_bf16_f32 v8, v4, v5')
    a.e('v_cvt_pk_bf16_f32 v9, v6, v7')
    a.e('buffer_store_dwordx2 v[8:9], v2, %s, s3 offen sc1' % sr(SWS, 4))
    a.e('s_waitcnt vmcnt(0)')
    a.e('s_barrier')
    a.e('v_cmp_eq_u32 vcc, 0, v0')
    a.e('s_and_saveexec_b64 s[20:21], vcc')
    a.e('s_cbranch_execz K2_HEND')
    a.e('v_mov_b32 v10, 1')
    a.e('v_mov_b32 v11, 0')
    a.e('buffer_atomic_add v10, v11, %s, 0 offen' % sr(SDBG, 4))
    a.lab('K2_HEND')
    a.e('s_endpgm')
    return a.final(), NV


def kd(name, accoff, nfv, nsg):
    return '''.amdhsa_kernel %s
  .amdhsa_next_free_vgpr %d
  .amdhsa_next_free_sgpr %d
  .amdhsa_accum_offset %d
  .amdhsa_group_segment_fixed_size 0
  .amdhsa_kernarg_size 88
  .amdhsa_user_sgpr_count 2
  .amdhsa_user_sgpr_kernarg_segment_ptr 1
  .amdhsa_system_sgpr_workgroup_id_x 1
  .amdhsa_float_denorm_mode_32 3
.end_amdhsa_kernel
''' % (name, nfv, nsg, accoff)


def main(out):
    k1 = gen_k1()
    pol = os.environ.get('STPOL', 'sc1')
    if pol:
        k1 = '\n'.join((ln + ' ' + pol) if ('buffer_store_dwordx4' in ln and 'sc1' not in ln) else ln for ln in k1.split('\n'))
    k2, nv2 = gen_k2()
    pol2 = os.environ.get('STPOL2', '')
    if pol2:
        k2 = '\n'.join((ln + ' ' + pol2) if ('buffer_store_dwordx4' in ln and 'sc1' not in ln) else ln for ln in k2.split('\n'))
    acc2 = (nv2 + 3) // 4 * 4
    s = '; generated by gen/gen15.py\n'
    s += '; @launch kernel=k1_kernel grid=(256,1,1) block=(512,1,1) lds=%d\n' % LDS_K1
    s += '; @launch kernel=k2_kernel grid=(240,1,1) block=(256,1,1) lds=65536\n'
    s += '.amdgcn_target "amdgcn-amd-amdhsa--gfx950"\n.text\n'
    for nm, body in (('k1_kernel', k1), ('k2_kernel', k2)):
        s += '.globl %s\n.p2align 8\n.type %s,@function\n' % (nm, nm) + body
    s += '.section .rodata,"a"\n.p2align 6\n'
    s += kd('k1_kernel', 256, 256, 102)
    s += '.p2align 6\n' + kd('k2_kernel', acc2, acc2 + 256, 48)
    open(out, 'w').write(s)


if __name__ == '__main__':
    main(sys.argv[1] if len(sys.argv) > 1 else 'cdna_kernels/%s.s' % NAME)
```
